```python
import torch

def _softmax(x, axis=-1):
    return torch.softmax(x, dim=axis)
def _gelu(x):
    return torch.nn.functional.gelu(x, approximate="tanh")
def _silu(x):
    return torch.nn.functional.silu(x)
def _sigmoid(x):
    return torch.sigmoid(x)
def _layernorm(x, axis=-1, eps=1e-5):
    m = x.mean(dim=axis, keepdim=True)
    v = x.var(dim=axis, keepdim=True, unbiased=False)
    return (x - m) / torch.sqrt(v + eps)
def _scatter_add(tgt, idx, src, axis=0):
    return tgt.clone().index_add_(axis, idx, src)
def _segment_sum(src, seg, n):
    out = torch.zeros((n,) + src.shape[1:], dtype=src.dtype)
    return out.index_add_(0, seg, src)
def _pad(x, pw):
    flat = tuple(v for pair in reversed(pw) for v in pair)
    return torch.nn.functional.pad(x, flat)

kernel_name = 'sequential_preLN__linear_kernel_hedgehog__mixer_s_mlp__prompt'

def setup_inputs():

    _w = (lambda a: (lambda t: t.to(torch.bfloat16) if t.is_floating_point() else t)(torch.as_tensor(a)))
    def _A_setup():
        B, S, D, H = 1, 2048, 640, 32
        Dh = D // H
        return {
            "x": _w((lambda *s: torch.randn(*s, dtype=torch.bfloat16) * 0.05)(B, S, D)),
            "wqkv": _w((lambda *s: torch.randn(*s, dtype=torch.bfloat16) * 0.2)(D, 3 * D)),
            "w_phi": _w((lambda *s: torch.randn(*s, dtype=torch.bfloat16) * 0.2)(H, Dh, Dh) * (Dh ** -0.5)),
            "wo": _w((lambda *s: torch.randn(*s, dtype=torch.bfloat16) * 0.05)(D, D)),
        }
    _A_in = _A_setup()

    def _B_setup():
        B, S, D, F = 1, 2048, 640, 1536
        return {
            "x":  _w((lambda *s: torch.randn(*s, dtype=torch.bfloat16) * 0.05)(B, S, D)),
            "w1": _w((lambda *s: torch.randn(*s, dtype=torch.bfloat16) * 3.2)(D, D) * (D ** -0.5)),
            "w2": _w((lambda *s: torch.randn(*s, dtype=torch.bfloat16) * 3.2)(D, D) * (D ** -0.5)),
            "w3": _w((lambda *s: torch.randn(*s, dtype=torch.bfloat16) * 3.2)(D, F) * (D ** -0.5)),
            "w4": _w((lambda *s: torch.randn(*s, dtype=torch.bfloat16) * 3.2)(F, D) * (F ** -0.5)),
        }
    _B_in = _B_setup()

    return {
        "A_x": _A_in["x"],
        "A_wqkv": _A_in["wqkv"],
        "A_w_phi": _A_in["w_phi"],
        "A_wo": _A_in["wo"],
        "B_x": _B_in["x"],
        "B_w1": _B_in["w1"],
        "B_w2": _B_in["w2"],
        "B_w3": _B_in["w3"],
        "B_w4": _B_in["w4"],
    }

def reference(A_x, A_wqkv, A_w_phi, A_wo, B_x, B_w1, B_w2, B_w3, B_w4):
    def _A_ref(x, wqkv, w_phi, wo):
        B, S, D = x.shape
        H = 32; Dh = D // H
        qkv = (lambda x, *d: x.permute(*d))((x @ wqkv).reshape(B, S, 3, H, Dh), 2, 0, 3, 1, 4)
        q, k, v = qkv[0], qkv[1], qkv[2]
        pq = torch.einsum("bhsd,hdf->bhsf", q, w_phi)
        pk = torch.einsum("bhsd,hdf->bhsf", k, w_phi)
        phi_q = torch.concatenate([_softmax(pq, axis=-1), _softmax(-pq, axis=-1)], axis=-1)
        phi_k = torch.concatenate([_softmax(pk, axis=-1), _softmax(-pk, axis=-1)], axis=-1)
        kv = torch.einsum("bhsf,bhsd->bhfd", phi_k, v)
        z  = torch.einsum("bhsf->bhf", phi_k)
        num = torch.einsum("bhqf,bhfd->bhqd", phi_q, kv)
        den = torch.einsum("bhqf,bhf->bhq", phi_q, z)[..., None] + 1e-6
        o = num / den
        return (lambda x, *d: x.permute(*d))(o, 0, 2, 1, 3).reshape(B, S, D) @ wo

    def _B_ref(x, w1, w2, w3, w4):
        B, S, D = x.shape
        h = _gelu(_layernorm(x, axis=-1) @ w1)
        c = D // 4
        g0 = _pad(h[:, :, 0*c:1*c], ((0, 0), (1, 0), (0, 0)))[:, :S, :]
        g1 = _pad(h[:, :, 1*c:2*c], ((0, 0), (0, 1), (0, 0)))[:, 1:, :]
        g2 = _pad(h[:, :, 2*c:3*c], ((0, 0), (2, 0), (0, 0)))[:, :S, :]
        g3 = _pad(h[:, :, 3*c:   ], ((0, 0), (0, 2), (0, 0)))[:, 2:, :]
        hs = torch.concatenate([g0, g1, g2, g3], axis=-1) @ w2
        x1 = x + hs
        h2 = _gelu(_layernorm(x1, axis=-1) @ w3) @ w4
        return x1 + h2

    x = A_x
    h = x + _A_ref(_layernorm(x, axis=-1), A_wqkv, A_w_phi, A_wo)
    h2 = h + _B_ref(_layernorm(h, axis=-1), B_w1, B_w2, B_w3, B_w4)
    return h2
```

```python
import re

class Asm:
    def __init__(self):
        self.lines = []
        self.uid = 0
    def __call__(self, s):
        for l in s.split("\n"):
            l = l.strip()
            if l:
                m = re.match(r"s_cselect_b32 (s\d+), (\d+|0x[0-9a-f]+), (\d+|0x[0-9a-f]+)$", l)
                if m and int(m.group(2), 0) > 64 and int(m.group(3), 0) > 64:
                    self.lines.append("s_mov_b32 %s, %s" % (m.group(1), m.group(3)))
                    self.lines.append("s_cmov_b32 %s, %s" % (m.group(1), m.group(2)))
                else:
                    self.lines.append(l)
    def label(self, name):
        self.lines.append(name + ":")
    def newlabel(self, p="L"):
        self.uid += 1
        return "%s_%d" % (p, self.uid)
    def c(self, s):
        self.lines.append("; " + s)

def vr(b, n=1):
    return "v%d" % b if n == 1 else "v[%d:%d]" % (b, b + n - 1)
def sr(b, n=1):
    return "s%d" % b if n == 1 else "s[%d:%d]" % (b, b + n - 1)

_reg = re.compile(r"\b([vsa])(?:(\d+)|\[(\d+):(\d+)\])")
def regs_of(op):
    out = set()
    for m in _reg.finditer(op):
        k = m.group(1)
        if m.group(2) is not None:
            out.add((k, int(m.group(2))))
        else:
            for i in range(int(m.group(3)), int(m.group(4)) + 1):
                out.add((k, i))
    if re.search(r"\bvcc\b", op): out.add(("s", 106)); out.add(("s", 107))
    if re.search(r"\bexec\b", op): out.add(("x", 0))
    if re.search(r"\bm0\b", op): out.add(("m", 0))
    return out

def split_ops(s):
    ops, d, cur = [], 0, ""
    for ch in s:
        if ch in "[(": d += 1
        if ch in "])": d -= 1
        if ch == "," and d == 0:
            ops.append(cur.strip()); cur = ""
        else:
            cur += ch
    if cur.strip(): ops.append(cur.strip())
    return ops

TRANS = ("v_exp_f32", "v_log_f32", "v_rcp_f32", "v_rsq_f32", "v_sqrt_f32", "v_sin_f32", "v_cos_f32")

class Ins:
    __slots__ = ("text", "mn", "kind", "wr", "rd", "srcc", "passes", "states", "sdata")
    def __init__(self, text):
        self.text = text
        t = text.split(";")[0].strip()
        parts = t.split(None, 1)
        mn = parts[0]; self.mn = mn
        ops = split_ops(parts[1]) if len(parts) > 1 else []
        self.wr, self.rd, self.srcc, self.passes, self.sdata = set(), set(), set(), 0, set()
        self.states = 1
        if mn == "s_nop":
            self.kind = "nop"; self.states = int(ops[0], 0) + 1
        elif mn.startswith("v_mfma"):
            self.kind = "mfma"
            self.wr = regs_of(ops[0]); self.rd = regs_of(ops[1]) | regs_of(ops[2]); self.srcc = regs_of(ops[3])
            self.passes = 8 if "32x32" in mn else 4
        elif mn.startswith("v_"):
            self.kind = "valu"
            if mn.startswith("v_cmp"):
                self.wr = regs_of(ops[0]); self.rd = set().union(*[regs_of(o) for o in ops[1:]])
            elif mn.startswith("v_permlane") and "swap" in mn:
                self.wr = regs_of(ops[0]) | regs_of(ops[1]); self.rd = set(self.wr)
            elif mn.startswith(("v_add_co", "v_sub_co", "v_addc_co", "v_subb_co")):
                self.wr = regs_of(ops[0]) | regs_of(ops[1]); self.rd = set().union(*[regs_of(o) for o in ops[2:]])
            else:
                self.wr = regs_of(ops[0]); self.rd = set().union(*[regs_of(o) for o in ops[1:]]) if len(ops) > 1 else set()
                if mn.startswith(("v_fmac", "v_dot2c", "v_writelane")) or "dpp" in mn or "sdwa" in mn: self.rd |= self.wr
        elif mn.startswith(("buffer_", "global_")):
            self.kind = "vmem"
            if "load" in mn and " lds" not in (" " + t) and "load_lds" not in mn:
                self.wr = regs_of(ops[0]); self.rd = set().union(*[regs_of(o) for o in ops[1:]])
            else:
                self.rd = set().union(*[regs_of(o) for o in ops]) if ops else set()
                if "lds" in t: self.rd.add(("m", 0))
                if "store" in mn and ("x4" in mn or "x3" in mn):
                    self.sdata = regs_of(ops[0]) if mn.startswith("buffer") else regs_of(ops[1])
        elif mn.startswith("ds_"):
            self.kind = "ds"
            if "read" in mn or "bpermute" in mn or "swizzle" in mn or "rtn" in mn:
                self.wr = regs_of(ops[0]); self.rd = set().union(*[regs_of(o) for o in ops[1:]])
            else:
                self.rd = set().union(*[regs_of(o) for o in ops])
        elif mn.startswith("s_"):
            self.kind = "salu"
            if mn.startswith(("s_cmp", "s_cbranch", "s_branch", "s_waitcnt", "s_barrier", "s_sleep", "s_setprio", "s_endpgm", "s_bitcmp")):
                self.rd = set().union(*[regs_of(o) for o in ops]) if ops else set()
            else:
                self.wr = regs_of(ops[0]) if ops else set()
                self.rd = set().union(*[regs_of(o) for o in ops[1:]]) if len(ops) > 1 else set()
                if "saveexec" in mn: self.wr.add(("x", 0))
        else:
            raise ValueError("unknown instr: " + text)

def need(p, c):
    n = 0
    vw = {r for r in p.wr if r[0] in "va"}
    sw = {r for r in p.wr if r[0] == "s"}
    if p.kind == "valu":
        if c.kind == "mfma" and vw & (c.rd | c.srcc): n = max(n, 2)
        if c.kind == "valu":
            if p.mn.startswith(TRANS) and vw & c.rd and not c.mn.startswith(TRANS): n = max(n, 1)
            if p.mn.startswith(TRANS) and vw & c.rd: n = max(n, 1)
            if c.mn.startswith("v_permlane") and vw & c.rd: n = max(n, 2)
            if "dpp" in c.text and vw & c.rd: n = max(n, 2)
            if c.mn.startswith(("v_readfirstlane", "v_readlane")) and vw & c.rd: n = max(n, 1)
            if sw & c.rd: n = max(n, 4 if c.mn.startswith(("v_readlane", "v_writelane")) else 2)
            if c.mn.startswith("v_cndmask") and len(split_ops(c.text.split(None,1)[1])) == 3 and ("s",106) in sw: n = max(n, 2)
            if ("sdwa" in p.mn or "op_sel" in p.text and not p.mn.startswith("v_pk")) and vw & c.rd: n = max(n, 1)
        if c.kind == "vmem" and sw & c.rd: n = max(n, 5)
        if c.kind == "salu" and sw & c.rd: n = max(n, 1)
        if c.kind == "salu" and c.mn.startswith("s_cbranch_vcc") and ("s",106) in sw: n = max(n, 1)
    if p.kind == "mfma":
        T = {4: (6, 8, 3), 8: (10, 12, 7)}[p.passes]
        if c.kind == "mfma":
            if p.wr & c.rd: n = max(n, T[1])
            if p.wr & c.srcc:
                if not (p.wr == c.srcc and p.passes == c.passes): n = max(n, T[0])
            elif p.wr & c.wr: n = max(n, T[1])
        elif c.kind in ("valu", "vmem", "ds"):
            if p.wr & (c.rd | c.wr): n = max(n, T[1])
            if c.kind == "valu" and p.srcc & c.wr: n = max(n, T[2])
    if p.kind == "vmem" and p.sdata and (p.sdata & c.wr): n = max(n, 2)
    if p.kind == "salu":
        if ("m", 0) in p.wr and c.kind == "vmem" and ("m", 0) in c.rd: n = max(n, 1)
    return n

def finalize(lines):
    out, hist = [], []
    nn = 0
    for l in lines:
        if l.startswith(";") or l.endswith(":") or l.startswith("."):
            out.append(l); continue
        c = Ins(l)
        dist, req = 0, 0
        for p in reversed(hist):
            r = need(p, c) - dist
            if r > req: req = r
            dist += p.states
            if dist >= 20: break
        while req > 0:
            k = min(req, 16)
            nop = Ins("s_nop %d" % (k - 1)); hist.append(nop); out.append(nop.text); req -= k; nn += 1
        hist.append(c); out.append(l)
        if len(hist) > 40: hist = hist[-40:]
    return out, nn
```

```python
import sys, math, struct
from asmlib import *

KN = "sequential_preLN__linear_kernel_hedgehog__mixer_s_mlp__prompt_kernel"
OPT = dict(ts=0, rot=0, forceslow=0, stop=99)
for a in sys.argv[2:]:
    k, v = a.split("="); OPT[k] = int(v)

def f2u(f): return struct.unpack("<I", struct.pack("<f", f))[0]

QKV = 0x0000000; O_ = 0x0800000; H_ = 0x0B00000; HH = 0x0E00000; X1 = 0x1100000; G_ = 0x1400000
WP = 0x1A00000; WSL = 798720
CSP1 = 0x2100000; CSP3 = 0x2110000
KVP = 0x2200000
STH = 0x2400000; STX = 0x2420000
ZR = 0x2480000
FQKV = ZR; FW = ZR + 4096; FKV = ZR + 12288; FO = ZR + 16384
FH = ZR + 20480; FHH = ZR + 24576; FX1 = ZR + 28672; FG = ZR + 32768
XS = ZR + 49152
TS = 0x2500000
SB = {2: 0, 3: 102400, 4: 204800, 5: 307200, 6: 552960}
UB = {"wo": 0, "w1": 200, "w2": 400, "w3": 600, "w4": 1080}
RING = 143360; SEG = 20480
STG = 65536
PK = 102400; VV = 122880
MZ = 143360
WPHI = MZ + 2048 - 160
KVT = MZ + 3072
CS0 = MZ + 5632
CS1 = MZ + 6144
CS3 = MZ + 6656
LDS_BYTES = 163840

sW, sXCD, sIDX = 3, 4, 5
sX, sWQ, sWS, sOUT, sDBG, sSRC = 8, 12, 16, 20, 24, 28
pWPHI, pWO, pW1, pW2, pW3, pW4 = 68, 70, 74, 76, 78, 80
sFAST = 6; sCNT = 7
sT = 32
sTS = 48
sK = 88

A = Asm()
nts = [0]
def stamp(i):
    if OPT["ts"]:
        A("s_memrealtime s[100:101]\ns_waitcnt lgkmcnt(0)\ns_mov_b32 s%d, s100" % (sTS + i))

def srd(dst, p, nbytes):
    A("s_mov_b32 s%d, s%d\ns_and_b32 s%d, s%d, 0xffff\ns_mov_b32 s%d, 0x%x\ns_mov_b32 s%d, 0x20000" % (dst, p, dst+1, p+1, dst+2, nbytes, dst+3))

POLL_LIMIT = 40000
def poll(vaddr, vtmp, soff="0", srdb=sWS, cond=None, sleep=1):
    L, D = A.newlabel("P"), A.newlabel("PD")
    A("s_mov_b32 s%d, %d" % (sCNT, POLL_LIMIT))
    A.label(L)
    A("buffer_load_dword v%d, v%d, s[%d:%d], %s offen sc1" % (vtmp, vaddr, srdb, srdb+3, soff))
    A("s_waitcnt vmcnt(0)")
    if cond: cond()
    else: A("v_cmp_eq_u32 vcc, 0, v%d" % vtmp)
    A("s_cbranch_vccz %s" % D)
    if sleep: A("s_sleep %d" % sleep)
    A("s_sub_u32 s%d, s%d, 1\ns_cbranch_scc0 %s" % (sCNT, sCNT, L))
    A.label(D)

def dual(fn, sreg=sFAST):
    S, E = A.newlabel("SL"), A.newlabel("SE")
    A("s_cmp_eq_u32 s%d, 0\ns_cbranch_scc1 %s" % (sreg, S))
    fn("")
    A("s_branch %s" % E)
    A.label(S)
    A("s_nop 1")
    fn(" sc1")
    A.label(E)

def dbg_check(va, vt, vt2):
    A("v_lshlrev_b32 v%d, 2, v%d" % (va, vL))
    def cond():
        A("v_subrev_u32 v%d, s%d, v%d" % (vt2, sK+10, vt))
        A("v_not_b32 v%d, v%d" % (va+1, vt))
        A("v_and_b32 v%d, v%d, v%d" % (vt2, vt2, va+1))
        A("v_and_b32 v%d, 0x80808080, v%d" % (vt2, vt2))
        A("v_cmp_ne_u32 vcc, 0, v%d" % vt2)
    A("s_mov_b32 s%d, 0x01010101" % (sK+10))
    poll(va, vt, srdb=sDBG, cond=cond, sleep=2)
    A("s_getreg_b32 s%d, hwreg(HW_REG_XCC_ID, 0, 4)" % sT)
    A("s_add_u32 s%d, s%d, 1\ns_mul_i32 s%d, s%d, s%d" % (sT, sT, sT, sT, sK+10))
    A("v_cmp_ne_u32 vcc, s%d, v%d" % (sT, vt))
    A("s_lshl_b32 s%d, s%d, 3" % (sT+1, sXCD))
    A("s_nop 1")
    A("s_lshr_b64 s[%d:%d], vcc, s%d" % (sT+2, sT+3, sT+1))
    A("s_and_b32 s%d, s%d, 0xff" % (sT+2, sT+2))
    A("s_cmp_eq_u32 s%d, 0\ns_cselect_b32 s%d, 1, 0" % (sT+2, sFAST))
    if OPT["forceslow"]: A("s_mov_b32 s%d, 0" % sFAST)

vL = 1
vG, vTT = 2, 3
vONE = 4

def prologue():
    A("s_cmp_ge_u32 s2, 256\ns_cbranch_scc1 L_end")
    A("s_load_dwordx16 s[64:79], s[0:1], 0\ns_load_dwordx8 s[80:87], s[0:1], 64")
    stamp(0)
    A("v_and_b32 v%d, 63, v0\nv_lshrrev_b32 v5, 6, v0" % vL)
    A("v_lshrrev_b32 v%d, 4, v%d\nv_and_b32 v%d, 15, v%d\nv_mov_b32 v%d, 1" % (vG, vL, vTT, vL, vONE))
    A("v_readfirstlane_b32 s%d, v5" % sW)
    A("s_and_b32 s%d, s2, 7\ns_lshr_b32 s%d, s2, 3" % (sXCD, sIDX))
    A("s_mov_b32 s%d, 0" % sFAST)
    A("s_waitcnt lgkmcnt(0)")
    srd(sX, 64, 2621440); srd(sWQ, 66, 2457600); srd(sWS, 86, 0x10000000); srd(sOUT, 82, 2621440); srd(sDBG, 84, 256)
    srd(sSRC, pWPHI, 25600)

def init_wave0():
    A("v_lshlrev_b32 v6, 2, v%d\nv_mov_b32 v7, 0" % vL)
    A("s_lshl_b32 s%d, s2, 8\ns_add_u32 s%d, s%d, 0x%x" % (sT, sT, sT, ZR))
    A("buffer_store_dword v7, v6, s[%d:%d], s%d offen sc1" % (sWS, sWS+3, sT))
    A("s_getreg_b32 s%d, hwreg(HW_REG_XCC_ID, 0, 4)\ns_add_u32 s%d, s%d, 1" % (sT+1, sT+1, sT+1))
    A("s_lshl_b32 s%d, s%d, 5\ns_add_u32 s%d, s%d, s%d" % (sT+2, sXCD, sT+2, sT+2, sIDX))
    A("v_mov_b32 v6, s%d\nv_mov_b32 v7, s%d" % (sT+2, sT+1))
    A("s_waitcnt vmcnt(0)")
    A("s_mov_b64 exec, 1")
    A("buffer_store_byte v7, v6, s[%d:%d], 0 offen sc1" % (sDBG, sDBG+3))
    A("s_mov_b64 exec, -1")

def init_wave1():
    A("v_lshlrev_b32 v6, 4, v%d" % vL)
    A("s_mul_i32 s%d, s%d, 800" % (sT, sIDX))
    A("buffer_load_dwordx4 v[12:15], v6, s[%d:%d], s%d offen" % (sSRC, sSRC+3, sT))
    A("v_mov_b32 v8, 0\nv_mov_b32 v9, 0\nv_mov_b32 v10, 0\nv_mov_b32 v11, 0")
    A("v_add_u32 v7, 0x%x, v6" % MZ)
    for i in range(3): A("ds_write_b128 v7, v[8:11] offset:%d" % (i*1024))
    A("s_waitcnt vmcnt(0)")
    A("v_cmp_gt_u32 vcc, 50, v%d\ns_and_saveexec_b64 s[%d:%d], vcc" % (vL, sT+2, sT+3))
    A("ds_write_b128 v7, v[12:15] offset:2048")
    A("s_mov_b64 exec, -1")
    A("s_waitcnt lgkmcnt(0)")

def s1a_ids():
    A("s_and_b32 s%d, s%d, 1\ns_lshl_b32 s%d, s%d, 1\ns_add_u32 s%d, s%d, s%d" % (sRT, sIDX, sT, sXCD, sRT, sRT, sT))
    A("s_lshr_b32 s%d, s%d, 1" % (sCT, sIDX))
sRT, sCT = 64, 65

def s1a_loader():
    A("s_sub_u32 s%d, s%d, 4" % (sT, sW))
    A("v_lshrrev_b32 v6, 3, v%d" % vL)
    A("s_lshl_b32 s%d, s%d, 7\ns_lshl_b32 s%d, s%d, 5\ns_add_u32 s%d, s%d, s%d" % (sT+1, sRT, sT+2, sT, sT+1, sT+1, sT+2))
    A("v_add_u32 v6, s%d, v6" % (sT+1))
    A("v_mul_u32_u24 v6, 1280, v6")
    A("v_and_b32 v7, 7, v%d\nv_xor_b32 v7, v7, v%d" % (vL, vG))
    for i in range(4):
        A("v_xor_b32 v16, %d, v7\nv_lshlrev_b32 v16, 4, v16" % ((i & 1) << 2))
        A("v_add3_u32 v%d, v6, v16, s%d" % (8+i, sT+3) if False else "v_add_u32 v%d, v6, v16" % (8+i))
        A("v_add_u32 v%d, %d, v%d" % (8+i, i*10240 - i*1024, 8+i))
    A("s_lshl_b32 s%d, s%d, 4" % (sT+1, sT))
    A("v_add_u32 v6, s%d, v%d\nv_mul_u32_u24 v6, 3840, v6" % (sT+1, vG))
    A("v_lshlrev_b32 v7, 2, v%d\nv_xor_b32 v7, v7, v%d\nv_lshlrev_b32 v7, 4, v7" % (vG, vTT))
    A("s_lshl_b32 s%d, s%d, 8" % (sT+1, sCT))
    A("v_add3_u32 v6, v6, v7, s%d" % (sT+1))
    for i in range(4):
        A("v_add_u32 v%d, %d, v6" % (12+i, i*4*3840 - i*1024))
    if OPT["rot"]:
        A("s_and_b32 s%d, s%d, 1\ns_mul_i32 s%d, s%d, 5\ns_add_u32 s%d, s%d, s%d" % (sT+4, sRT, sT+4, sT+4, sT+4, sT+4, sCT))
        for _ in range(2):
            A("s_cmp_ge_u32 s%d, 10\ns_cselect_b32 s%d, 10, 0\ns_sub_u32 s%d, s%d, s%d" % (sT+4, sT+6, sT+4, sT+4, sT+6))
    else:
        A("s_mov_b32 s%d, 0" % (sT+4))
    A("s_lshl_b32 s%d, s%d, 12" % (sT+5, sT))
    def issue(i):
        slot = (i % 4) * 32768
        A("s_lshl_b32 s%d, s%d, 7\ns_mul_i32 s%d, s%d, %d" % (sT+6, sT+4, sT+7, sT+4, 64*3840))
        A("s_add_u32 m0, s%d, %d" % (sT+5, slot))
        for q in range(4):
            A("buffer_load_dwordx4 v%d, s[%d:%d], s%d offen offset:%d lds" % (8+q, sX, sX+3, sT+6, q*1024))
        A("s_add_u32 m0, s%d, %d" % (sT+5, slot + 16384))
        for q in range(4):
            A("buffer_load_dwordx4 v%d, s[%d:%d], s%d offen offset:%d lds" % (12+q, sWQ, sWQ+3, sT+7, q*1024))
        A("s_add_u32 s%d, s%d, 1\ns_cmp_eq_u32 s%d, 10\ns_cselect_b32 s%d, 0, s%d" % (sT+4, sT+4, sT+4, sT+4, sT+4))
    for i in range(4): issue(i)
    relayout_setup()
    extra = 0
    for i in range(10):
        issued = min(10, i + 3 + (1 if i == 0 else 0))
        A("s_waitcnt vmcnt(%d)" % ((issued - i - 1) * 8 + extra))
        A("s_barrier")
        if 1 <= i <= 6: issue(i + 3)
        if i == 7:
            relayout_issue(); extra = 8
    A("s_barrier")

sRU = 36
def relayout_decode(uoff):
    U, CU, KS, RS, MT, T1, T2 = sT+8, sT+9, sT+10, sT+11, sT+12, sT+13, sT+1
    A("s_lshl_b32 s%d, s2, 2\ns_add_u32 s%d, s%d, s%d\ns_add_u32 s%d, s%d, %d" % (U, U, U, sW, U, U, uoff - 4))
    A("s_mov_b32 s%d, 0\ns_mov_b32 s%d, s%d" % (MT, T1, U))
    A("s_mov_b32 s%d, s%d\ns_mov_b32 s%d, s%d" % (sSRC, pWO, sSRC+1, pWO+1))
    for m, (nm, p) in enumerate([("w1", pW1), ("w2", pW2), ("w3", pW3), ("w4", pW4)], 1):
        A("s_cmp_ge_u32 s%d, %d" % (U, UB[nm]))
        A("s_cselect_b32 s%d, %d, s%d" % (MT, m, MT))
        A("s_cselect_b32 s%d, s%d, s%d\ns_cselect_b32 s%d, s%d, s%d" % (sSRC, p, sSRC, sSRC+1, p+1, sSRC+1))
        A("s_cselect_b32 s%d, %d, 0\ns_sub_u32 s%d, s%d, s%d" % (T2, UB[nm] - [0,0,200,400,600][m], T1, T1, T2))
    A("s_and_b32 s%d, s%d, 0xffff" % (sSRC+1, sSRC+1))
    A("s_cmp_ge_u32 s%d, 3\ns_cselect_b32 s%d, 1966080, 819200" % (MT, sSRC+2))
    A("s_mov_b32 s%d, 0x20000" % (sSRC+3))
    A("s_cmp_eq_u32 s%d, 3\ns_cselect_b32 s%d, 3072, 1280" % (MT, RS))
    A("s_cmp_eq_u32 s%d, 4\ns_cselect_b32 s%d, %d, %d" % (MT, T2, (1<<20)//48 + 1, (1<<20)//20 + 1))
    A("s_mul_i32 s%d, s%d, s%d\ns_lshr_b32 s%d, s%d, 20" % (CU, T1, T2, CU, CU))
    A("s_cmp_eq_u32 s%d, 4\ns_cselect_b32 s%d, 48, 20" % (MT, T2))
    A("s_mul_i32 s%d, s%d, s%d\ns_sub_u32 s%d, s%d, s%d" % (T2, CU, T2, KS, T1, T2))

def relayout_setup():
    pass

def relayout_issue():
    U, CU, KS, RS, MT = sT+8, sT+9, sT+10, sT+11, sT+12
    for n in range(2):
        relayout_decode(n * 1024)
        A("s_cmp_lt_u32 s%d, 1560\ns_cselect_b32 s%d, s%d, 0" % (U, sSRC+2, sSRC+2))
        A("v_lshrrev_b32 v20, 3, v%d\nv_mul_lo_u32 v20, v20, s%d" % (vL, RS))
        A("v_and_b32 v21, 7, v%d\nv_lshl_add_u32 v20, v21, 4, v20" % vL)
        A("s_mul_i32 s%d, s%d, s%d\ns_lshl_b32 s%d, s%d, 5" % (sT+13, KS, RS, sT+13, sT+13))
        A("s_lshl_b32 s%d, s%d, 7\ns_add_u32 s%d, s%d, s%d" % (sT+1, CU, sT+13, sT+13, sT+1))
        A("s_lshl_b32 s%d, s%d, 3" % (sT+2, RS))
        A("s_sub_u32 s%d, s%d, 4\ns_lshl_b32 s%d, s%d, 13" % (sT+1, sW, sT+1, sT+1))
        for q in range(4):
            A("s_add_u32 m0, s%d, %d" % (sT+1, STG + n*4096 + q*1024))
            A("buffer_load_dwordx4 v20, s[%d:%d], s%d offen lds" % (sSRC, sSRC+3, sT+13))
            if q < 3: A("s_add_u32 s%d, s%d, s%d" % (sT+13, sT+13, sT+2))

def relayout_finish():
    U, CU, KS, RS, MT = sT+8, sT+9, sT+10, sT+11, sT+12
    A("s_waitcnt vmcnt(0)")
    dbg_check(20, 22, 23)
    for i in range(4): A("v_mov_b32 v%d, 0x3f803f80" % (24+i))
    A("v_lshlrev_b32 v28, 4, v%d" % vL)
    A("v_lshlrev_b32 v29, 4, v%d" % vG)
    A("v_bfe_u32 v30, v%d, 2, 2\nv_lshl_add_u32 v30, v%d, 3, v30\nv_lshlrev_b32 v30, 7, v30" % (vL, vG))
    A("s_sub_u32 s%d, s%d, 4\ns_lshl_b32 s%d, s%d, 13\ns_add_u32 s%d, s%d, %d" % (sT+1, sW, sT+1, sT+1, sT+1, sT+1, STG))
    A("v_add_u32 v30, s%d, v30\nv_and_b32 v31, 3, v%d" % (sT+1, vL))
    for n in range(2):
        skip = A.newlabel("RS")
        relayout_decode(n * 1024)
        if n == 1: A("s_cmp_ge_u32 s%d, 1560\ns_cbranch_scc1 %s" % (U, skip))
        for grp in range(2):
            GA, DA, DB, CA, CB, PR, T1, T2 = sT+2, sT+3, sT+4, sT+5, sT+6, sT+7, sT+13, sT+1
            W3, DN = A.newlabel("W3"), A.newlabel("DN")
            A("s_lshl_b32 s%d, s%d, 1\ns_add_u32 s%d, s%d, %d" % (GA, CU, GA, GA, grp))
            A("s_cmp_eq_u32 s%d, 3\ns_cbranch_scc1 %s" % (MT, W3))
            A("s_mul_i32 s%d, s%d, 52\ns_lshr_b32 s%d, s%d, 8" % (T1, GA, T1, T1))
            A("s_mul_i32 s%d, s%d, 5\ns_sub_u32 s%d, s%d, s%d" % (T2, T1, T2, GA, T2))
            A("s_lshl_b32 s%d, s%d, 1" % (T1, T1))
            A("s_cmp_lg_u32 s%d, 2\ns_cselect_b32 s%d, 1, 0" % (T2, PR))
            A("s_cmp_ge_u32 s%d, 3\ns_addc_u32 s%d, s%d, 0" % (T2, T1, T1))
            A("s_cmp_ge_u32 s%d, 3\ns_cselect_b32 s%d, 3, 0\ns_sub_u32 s%d, s%d, s%d\ns_lshl_b32 s%d, s%d, 1" % (T2, CA, T2, T2, CA, T2, T2))
            A("s_mul_i32 s%d, s%d, %d\ns_lshl_b32 s%d, s%d, 10\ns_add_u32 s%d, s%d, s%d" % (DA, T1, WSL, CA, T2, DA, DA, CA))
            A("s_mul_i32 s%d, s%d, 5120\ns_add_u32 s%d, s%d, s%d" % (CA, KS, DA, DA, CA))
            A("s_mul_i32 s%d, s%d, 102400\ns_cmp_eq_u32 s%d, 4\ns_cselect_b32 s%d, %d, s%d" % (CA, MT, MT, CA, SB[6], CA))
            A("s_add_u32 s%d, s%d, s%d\ns_add_u32 s%d, s%d, 0x%x" % (DA, DA, CA, DA, DA, WP))
            A("s_cmp_eq_u32 s%d, 1\ns_cselect_b32 s%d, 1024, %d\ns_add_u32 s%d, s%d, s%d" % (PR, DB, WSL, DB, DB, DA))
            A("s_mul_i32 s%d, s%d, 320\ns_lshl_b32 s%d, s%d, 6\ns_add_u32 s%d, s%d, s%d" % (CA, T1, T2, T2, CA, CA, T2))
            A("s_mul_i32 s%d, s%d, 2560\ns_add_u32 s%d, s%d, s%d\ns_add_u32 s%d, s%d, 0x%x" % (T2, KS, CA, CA, T2, CA, CA, CSP1))
            A("s_cmp_eq_u32 s%d, 1\ns_cselect_b32 s%d, 64, 320\ns_add_u32 s%d, s%d, s%d" % (PR, CB, CB, CB, CA))
            A("s_branch %s" % DN)
            A.label(W3)
            A("s_mul_i32 s%d, s%d, 43\ns_lshr_b32 s%d, s%d, 8" % (T1, GA, T1, T1))
            A("s_mul_i32 s%d, s%d, 6\ns_sub_u32 s%d, s%d, s%d" % (T2, T1, T2, GA, T2))
            A("s_mul_i32 s%d, s%d, %d\ns_mul_i32 s%d, s%d, 40960\ns_add_u32 s%d, s%d, s%d" % (DA, T1, WSL, T2, T2, DA, DA, T2))
            A("s_lshl_b32 s%d, s%d, 11\ns_add_u32 s%d, s%d, s%d\ns_add_u32 s%d, s%d, 0x%x" % (T2, KS, DA, DA, T2, DA, DA, WP + SB[5]))
            A("s_add_u32 s%d, s%d, 1024" % (DB, DA))
            A("s_mul_i32 s%d, s%d, 6144\ns_lshl_b32 s%d, s%d, 7\ns_add_u32 s%d, s%d, s%d\ns_add_u32 s%d, s%d, 0x%x" % (CA, KS, T2, GA, CA, CA, T2, CA, CA, CSP3))
            A("s_add_u32 s%d, s%d, 64\ns_mov_b32 s%d, 1" % (CB, CA, PR))
            A.label(DN)
            A("s_add_u32 s%d, s%d, 3" % (T1, PR))
            A("v_lshlrev_b32 v32, s%d, v31\nv_add_u32 v32, v32, v30" % T1)
            A("s_cmp_eq_u32 s%d, 1\ns_cselect_b32 s%d, 8, 32" % (PR, T1))
            A("v_add_u32 v33, s%d, v32" % T1)
            o = n*4096 + grp*64
            A("ds_read_b64_tr_b16 v[36:37], v32 offset:%d\nds_read_b64_tr_b16 v[38:39], v32 offset:%d" % (o, o+512))
            A("ds_read_b64_tr_b16 v[40:41], v33 offset:%d\nds_read_b64_tr_b16 v[42:43], v33 offset:%d" % (o, o+512))
            A("s_waitcnt lgkmcnt(0)")
            A("buffer_store_dwordx4 v[36:39], v28, s[%d:%d], s%d offen sc1" % (sWS, sWS+3, DA))
            A("buffer_store_dwordx4 v[40:43], v28, s[%d:%d], s%d offen sc1" % (sWS, sWS+3, DB))
            NC = A.newlabel("NC")
            A("s_bitcmp1_b32 s%d, 0\ns_cbranch_scc0 %s" % (MT, NC))
            A("v_mfma_f32_16x16x32_bf16 v[44:47], v[36:39], v[24:27], 0")
            A("v_mfma_f32_16x16x32_bf16 v[48:51], v[40:43], v[24:27], 0")
            A("s_mov_b32 exec_lo, 0x00010001\ns_mov_b32 exec_hi, 0x00010001")
            A("buffer_store_dwordx4 v[44:47], v29, s[%d:%d], s%d offen sc1" % (sWS, sWS+3, CA))
            A("buffer_store_dwordx4 v[48:51], v29, s[%d:%d], s%d offen sc1" % (sWS, sWS+3, CB))
            A("s_mov_b64 exec, -1")
            A.label(NC)
            A("s_nop 1")
        A("s_lshl_b32 s%d, s%d, 2\nv_mov_b32 v%d, s%d" % (sT+1, U, 34+n, sT+1))
        if n == 0:
            A("v_mov_b32 v35, v34")
        A.label(skip)
    A("s_waitcnt vmcnt(0)")
    A("s_mov_b32 s%d, 0x%x" % (sT+1, FW))
    A("s_mov_b64 exec, 1")
    A("buffer_store_dword v%d, v34, s[%d:%d], s%d offen sc1" % (vONE, sWS, sWS+3, sT+1))
    A("buffer_store_dword v%d, v35, s[%d:%d], s%d offen sc1" % (vONE, sWS, sWS+3, sT+1))
    A("s_mov_b64 exec, -1")

def s1a_compute():
    ACC, CSA, SEL = 64, 128, 132
    XA, WA = 8, 16
    FB = 136
    A("s_lshr_b32 s%d, s%d, 1\ns_and_b32 s%d, s%d, 1" % (sT, sW, sT+1, sW))
    A("v_and_b32 v20, 31, v%d\nv_lshrrev_b32 v21, 5, v%d" % (vL, vL))
    A("s_lshl_b32 s%d, s%d, 13" % (sT+2, sT))
    A("v_lshlrev_b32 v22, 7, v20\nv_add_u32 v22, s%d, v22" % (sT+2))
    A("v_bfe_u32 v23, v20, 1, 3\nv_xor_b32 v23, v23, v21")
    for k in range(4):
        A("v_xor_b32 v24, %d, v23\nv_lshl_add_u32 v%d, v24, 4, v22\nv_add_u32 v%d, 0x10000, v%d" % (2*k, XA+2*k, XA+2*k+1, XA+2*k))
    A("v_bfe_u32 v24, v%d, 2, 2" % vL)
    A("v_lshl_add_u32 v25, v21, 3, v24\nv_lshlrev_b32 v25, 8, v25")
    A("v_and_b32 v26, 1, v%d\nv_lshlrev_b32 v26, 5, v26" % vG)
    A("v_and_b32 v27, 1, v%d\nv_lshl_add_u32 v26, v27, 4, v26" % vL)
    A("v_bfe_u32 v27, v%d, 1, 1\nv_lshl_add_u32 v26, v27, 3, v26" % vL)
    A("v_add_u32 v25, v25, v26\nv_add_u32 v25, 0x4000, v25")
    A("s_lshl_b32 s%d, s%d, 1" % (sT+2, sT+1))
    for nt in range(2):
        A("s_add_u32 s%d, s%d, %d" % (sT+3, sT+2, nt))
        A("v_xor_b32 v27, s%d, v24\nv_lshl_add_u32 v%d, v27, 6, v25\nv_add_u32 v%d, 0x10000, v%d" % (sT+3, WA+2*nt, WA+2*nt+1, WA+2*nt))
    A("v_and_b32 v27, 1, v%d\nv_cmp_eq_u32 vcc, v27, v%d\nv_mov_b32 v28, 0x3f803f80" % (vG, vTT))
    for i in range(4): A("v_cndmask_b32 v%d, 0, v28, vcc" % (SEL+i))
    for i in range(64): A("v_mov_b32 v%d, 0" % (ACC+i))
    for i in range(4): A("v_mov_b32 v%d, 0" % (CSA+i))
    def reads(ci, k, buf):
        slot = (ci % 4) * 32768; hi = slot >> 16; so = slot & 0xffff
        b = FB + 16*buf
        for mt in range(2):
            A("ds_read_b128 v[%d:%d], v%d offset:%d" % (b+4*mt, b+4*mt+3, XA+2*k+hi, so + mt*4096))
        for nt in range(2):
            for hh in range(2):
                r = b + 8 + 4*nt + 2*hh
                A("ds_read_b64_tr_b16 v[%d:%d], v%d offset:%d" % (r, r+1, WA+2*nt+hi, so + (16*k + 4*hh)*256))
    def mfmas(buf, wm):
        b = FB + 16*buf
        for nt in range(2):
            for mt in range(2):
                a = ACC + 32*nt + 16*mt
                A("v_mfma_f32_32x32x16_bf16 v[%d:%d], v[%d:%d], v[%d:%d], v[%d:%d]" % (a, a+15, b+8+4*nt, b+11+4*nt, b+4*mt, b+4*mt+3, a, a+15))
    A("s_cmp_eq_u32 s%d, 0\ns_cbranch_scc1 L_nswap" % sT)
    for hi in range(2):
        A("v_mov_b32 v27, v%d\nv_mov_b32 v%d, v%d\nv_mov_b32 v%d, v27" % (WA+hi, WA+hi, WA+2+hi, WA+2+hi))
    A.label("L_nswap")
    def step(buf):
        b = FB + 16*buf
        mfmas(buf, 0)
        A("v_mfma_f32_16x16x32_bf16 v[%d:%d], v[%d:%d], v[%d:%d], v[%d:%d]" % (CSA, CSA+3, b+8, b+11, SEL, SEL+3, CSA, CSA+3))
    A("s_barrier")
    stamp(1)
    reads(0, 0, 0)
    for ci in range(10):
        for k in range(4):
            n = ci*4 + k
            if k < 3:
                reads(ci, k+1, (n+1) & 1)
                A("s_waitcnt lgkmcnt(6)")
            else:
                A("s_waitcnt lgkmcnt(0)")
                if ci < 9:
                    A("s_barrier")
                    reads(ci+1, 0, (n+1) & 1)
            step(n & 1)
            if ci == 7 and k == 0:
                dbg_check(30, 32, 33)
                A("s_lshr_b32 s%d, s%d, 1\ns_and_b32 s%d, s%d, 1" % (sT, sW, sT+1, sW))
    stamp(2)
    A("s_lshl_b32 s%d, s%d, 7\ns_lshl_b32 s%d, s%d, 6\ns_add_u32 s%d, s%d, s%d" % (sT+2, sRT, sT+3, sT, sT+2, sT+2, sT+3))
    A("s_lshl_b32 s%d, s%d, 3\ns_add_u32 s%d, s%d, 0x%x" % (sT+3, sT+2, sT+3, sT+3, XS))
    A("v_lshlrev_b32 v30, 3, v20")
    L, D = A.newlabel("P"), A.newlabel("PD")
    A("s_mov_b32 s%d, %d" % (sCNT, POLL_LIMIT))
    A.label(L)
    A("buffer_load_dwordx2 v[32:33], v30, s[%d:%d], s%d offen sc1" % (sWS, sWS+3, sT+3))
    A("buffer_load_dwordx2 v[34:35], v30, s[%d:%d], s%d offen offset:256 sc1" % (sWS, sWS+3, sT+3))
    A("s_lshl_b32 s%d, s%d, 1\ns_add_u32 s%d, s%d, s%d\ns_lshl_b32 s%d, s%d, 7\ns_add_u32 s%d, s%d, %d" % (sT+4, sT+1, sT+4, sT+4, sT, sT+4, sT+4, sT+4, sT+4, CS0))
    A("v_lshlrev_b32 v31, 6, v%d\nv_lshl_add_u32 v31, v%d, 4, v31\nv_add_u32 v31, s%d, v31" % (vTT, vG, sT+4))
    A("s_mov_b32 exec_lo, 0x00030003\ns_mov_b32 exec_hi, 0x00030003")
    A("ds_write_b128 v31, v[%d:%d]" % (CSA, CSA+3))
    A("s_mov_b64 exec, -1")
    A("s_waitcnt vmcnt(0)")
    A("v_min_u32 v36, v33, v35\nv_cmp_eq_u32 vcc, 0, v36")
    A("s_cbranch_vccz %s" % D)
    A("s_sleep 1\ns_sub_u32 s%d, s%d, 1\ns_cbranch_scc0 %s" % (sCNT, sCNT, L))
    A.label(D)
    A("s_waitcnt lgkmcnt(0)\ns_barrier")
    CSR = 136
    A("v_lshlrev_b32 v31, 4, v21")
    A("s_lshl_b32 s%d, s%d, 8\ns_add_u32 s%d, s%d, %d" % (sT+4, sT+1, sT+4, sT+4, CS0))
    A("s_lshl_b32 s%d, s%d, 7" % (sT+5, sT))
    A("v_add3_u32 v37, v31, s%d, 0" % (sT+4) if False else "v_add_u32 v37, s%d, v31" % (sT+4))
    A("v_add_u32 v38, s%d, v37" % (sT+5))
    A("s_xor_b32 s%d, s%d, 128" % (sT+5, sT+5))
    A("v_add_u32 v39, s%d, v37" % (sT+5))
    for nt in range(2):
        for q in range(4):
            A("ds_read_b128 v[%d:%d], v%d offset:%d" % (CSR+16*nt+4*q, CSR+16*nt+4*q+3, 38+nt, 32*q))
    A("v_lshrrev_b32 v40, 4, v20\nv_mul_u32_u24 v40, 61440, v40\nv_lshl_add_u32 v40, v21, 8, v40\nv_lshl_add_u32 v40, v%d, 4, v40" % vTT)
    A("s_lshr_b32 s%d, s%d, 4\ns_mul_i32 s%d, s%d, 61440" % (sT+2, sT+2, sT+2, sT+2))
    A("s_lshl_b32 s%d, s%d, 12\ns_lshl_b32 s%d, s%d, 11\ns_add_u32 s%d, s%d, s%d\ns_add_u32 s%d, s%d, s%d" % (sT+3, sCT, sT+4, sT+1, sT+2, sT+2, sT+3, sT+2, sT+2, sT+4))
    A("s_lshl_b32 s%d, s%d, 10" % (sT+3, sT))
    A("s_add_u32 s%d, s%d, s%d" % (sT+4, sT+2, sT+3))
    A("s_xor_b32 s%d, s%d, 1024\ns_add_u32 s%d, s%d, s%d" % (sT+3, sT+3, sT+6, sT+2, sT+3))
    A("s_add_u32 s%d, s%d, %d\ns_add_u32 s%d, s%d, %d" % (sT+5, sT+4, 2*61440, sT+7, sT+6, 2*61440))
    A("s_waitcnt lgkmcnt(0)")
    OUTR = 168
    for nt in range(2):
        for mt in range(2):
            a = ACC + 32*nt + 16*mt; st = 32 + 2*mt
            for i in range(0, 16, 2):
                A("v_pk_mul_f32 v[%d:%d], v[%d:%d], v[%d:%d] op_sel:[0,1] op_sel_hi:[1,1]" % (a+i, a+i+1, a+i, a+i+1, st, st+1))
            for i in range(0, 16, 2):
                c = CSR + 16*nt + i
                A("v_pk_fma_f32 v[%d:%d], v[%d:%d], v[%d:%d], v[%d:%d] op_sel_hi:[1,0,1] neg_lo:[0,1,0] neg_hi:[0,1,0]" % (a+i, a+i+1, c, c+1, st, st+1, a+i, a+i+1))
            o = OUTR + 8*(2*nt+mt)
            for i in range(8):
                A("v_cvt_pk_bf16_f32 v%d, v%d, v%d" % (o+i, a+2*i, a+2*i+1))
    A("s_lshl_b32 s%d, s%d, 1\ns_add_u32 s%d, s%d, s%d\ns_lshl_b32 s%d, s%d, 5" % (sT+8, sRT, sT+8, sT+8, sT, sT+8, sT+8))
    A("s_lshl_b32 s%d, s%d, 1\ns_add_u32 s%d, s%d, s%d\ns_add_u32 s%d, s%d, s%d\ns_lshl_b32 s%d, s%d, 2\ns_add_u32 s%d, s%d, 0x%x" % (sT+9, sCT, sT+8, sT+8, sT+9, sT+8, sT+8, sT+1, sT+8, sT+8, sT+8, sT+8, FQKV))
    A("v_mov_b32 v41, 0")
    def st(p):
        for nt in range(2):
            for mt in range(2):
                o = OUTR + 8*(2*nt+mt)
                for qq in range(2):
                    A("buffer_store_dwordx4 v[%d:%d], v40, s[%d:%d], s%d offen offset:%d%s" % (o+4*qq, o+4*qq+3, sWS, sWS+3, sT+4+2*nt+mt, 512*qq, p))
        setflag(41, sT+8, p)
    dual(st)

def setflag(vz, soff, p):
    A("s_waitcnt vmcnt(0)")
    A("s_mov_b64 exec, 1")
    A("buffer_store_dword v%d, v%d, s[%d:%d], s%d offen%s" % (vONE, vz, sWS, sWS+3, soff, p))
    A("s_mov_b64 exec, -1")

def spare_stats():
    A("s_lshl_b32 s%d, s%d, 7\ns_lshl_b32 s%d, s%d, 4\ns_add_u32 s%d, s%d, s%d" % (sT, sRT, sT+1, sW, sT, sT, sT+1))
    A("v_lshrrev_b32 v6, 3, v%d\nv_add_u32 v7, s%d, v6\nv_mul_u32_u24 v8, 1280, v7" % (vL, sT))
    A("v_and_b32 v9, 7, v%d\nv_lshl_add_u32 v8, v9, 4, v8\nv_add_u32 v9, 10240, v8" % vL)
    D = 64
    for h in range(2):
        for i in range(10):
            r = D + 40*h + 4*i
            A("buffer_load_dwordx4 v[%d:%d], v%d, s[%d:%d], 0 offen offset:%d" % (r, r+3, 8+h, sX, sX+3, 128*i))
    A("s_mov_b32 s%d, 0xffff0000" % (sT+2))
    for h in range(2):
        s1, s2 = 12+4*h, 14+4*h
        for r in (s1, s1+1, s2, s2+1): A("v_mov_b32 v%d, 0" % r)
        for i in range(10):
            A("s_waitcnt vmcnt(%d)" % (19 - 10*h - i))
            for q in range(4):
                r = D + 40*h + 4*i + q; t = 20 + 2*(q & 1)
                A("v_lshlrev_b32 v%d, 16, v%d\nv_and_b32 v%d, s%d, v%d" % (t, r, t+1, sT+2, r))
                A("v_pk_add_f32 v[%d:%d], v[%d:%d], v[%d:%d]" % (s1, s1+1, s1, s1+1, t, t+1))
                A("v_pk_fma_f32 v[%d:%d], v[%d:%d], v[%d:%d], v[%d:%d]" % (s2, s2+1, t, t+1, t, t+1, s2, s2+1))
        A("v_add_f32 v%d, v%d, v%d\nv_add_f32 v%d, v%d, v%d" % (s1, s1, s1+1, s2, s2, s2+1))
        for r in (s1, s2):
            A("v_add_f32_dpp v%d, v%d, v%d quad_perm:[1,0,3,2] row_mask:0xf bank_mask:0xf" % (r, r, r))
        for r in (s1, s2):
            A("v_add_f32_dpp v%d, v%d, v%d quad_perm:[2,3,0,1] row_mask:0xf bank_mask:0xf" % (r, r, r))
        for r in (s1, s2):
            A("v_add_f32_dpp v%d, v%d, v%d row_half_mirror row_mask:0xf bank_mask:0xf" % (r, r, r))
        lnstats(s1, s2, s1+1)
        A("v_mul_f32 v%d, v%d, v%d" % (s1, s1, s1+1))
    dbg_check(24, 26, 27)
    A("s_lshl_b32 s%d, s%d, 7\ns_lshl_b32 s%d, s%d, 4\ns_add_u32 s%d, s%d, s%d" % (sT, sRT, sT+1, sW, sT, sT, sT+1))
    A("s_lshl_b32 s%d, s%d, 3\ns_add_u32 s%d, s%d, 0x%x" % (sT, sT, sT, sT, XS))
    A("v_lshlrev_b32 v6, 3, v6")
    def st(p):
        A("s_mov_b32 exec_lo, 0x01010101\ns_mov_b32 exec_hi, 0x01010101")
        A("buffer_store_dwordx2 v[12:13], v6, s[%d:%d], s%d offen%s" % (sWS, sWS+3, sT, p))
        A("buffer_store_dwordx2 v[16:17], v6, s[%d:%d], s%d offen offset:64%s" % (sWS, sWS+3, sT, p))
        A("s_mov_b64 exec, -1")
    dual(st)

def lnstats(s1, s2, rs):
    A("v_mul_f32 v%d, 0x%x, v%d\nv_mul_f32 v%d, 0x%x, v%d" % (s1, f2u(1/640), s1, s2, f2u(1/640), s2))
    A("v_fma_f32 v%d, -v%d, v%d, v%d\nv_max_f32 v%d, 0, v%d" % (s2, s1, s1, s2, s2, s2))
    A("v_add_f32 v%d, 0x%x, v%d\nv_rsq_f32 v%d, v%d" % (rs, f2u(1e-5), s2, rs, rs))

LOG2E = 1.4426950408889634
def s1b_common(isq):
    AF, BQ, BV, P, E, PH = 64, 124, 136, 148, 168, 208
    wl = 91
    A("s_and_b32 s%d, s%d, 3" % (wl, sW))
    A("s_lshr_b32 s%d, s%d, 1\ns_mul_i32 s%d, s%d, 5\ns_and_b32 s%d, s%d, 1\ns_lshl_b32 s%d, s%d, 1\ns_add_u32 s%d, s%d, s%d" % (sC0, sIDX, sC0, sC0, sPAR, sIDX, sT, sPAR, sC0, sC0, sT))
    A("v_bfe_u32 v6, v%d, 2, 2\nv_and_b32 v7, 3, v%d" % (vL, vL))
    A("s_mul_i32 s%d, s%d, 160\ns_sub_u32 s%d, %d, s%d" % (sT, sPAR, sT, WPHI + 160, sT))
    A("v_mul_u32_u24 v8, 40, v6\nv_add_u32 v8, s%d, v8\nv_mov_b32 v9, 0x%x" % (sT, MZ))
    A("v_cmp_eq_u32 vcc, v7, v%d\nv_cndmask_b32 v8, v9, v8, vcc" % vG)
    n = 0
    for u in range(3):
        for tp in range(5):
            r = AF + 4*(5*u + tp)
            for hh in range(2):
                A("ds_read_b64_tr_b16 v[%d:%d], v8 offset:%d" % (r+2*hh, r+2*hh+1, (8*u+4*hh)*40 + 8*tp))
    A("s_lshl_b32 s%d, s%d, 2\ns_add_u32 s%d, s%d, s%d" % (sRB, sXCD, sRB, sRB, wl))
    A("v_and_b32 v10, 1, v%d\nv_lshlrev_b32 v10, 1, v10" % vL)
    if not isq:
        A("v_bfe_u32 v11, v%d, 1, 1\nv_mul_u32_u24 v11, 80, v11\nv_add3_u32 v10, v10, v11, s%d\nv_add_u32 v10, 80, v10" % (vL, sC0))
    else:
        A("v_add_u32 v10, s%d, v10" % sC0)
    A("v_lshrrev_b32 v10, 3, v10\nv_lshlrev_b32 v10, 2, v10")
    A("s_lshl_b32 s%d, s%d, 7\ns_add_u32 s%d, s%d, 0x%x" % (sT, sRB, sT, sT, FQKV))
    A("v_mul_u32_u24 v12, 61440, v%d\nv_lshl_add_u32 v12, v%d, 4, v12" % (vG, vTT))
    A("s_mul_i32 s%d, s%d, %d\ns_lshl_b32 s%d, s%d, 8\ns_add_u32 s%d, s%d, s%d" % (sT+1, sRB, 4*61440, sT+2, sC0, sT+1, sT+1, sT+2))
    if not isq:
        A("s_add_u32 s%d, s%d, %d\ns_add_u32 s%d, s%d, %d" % (sT+2, sT+1, 160*256, sT+1, sT+1, 80*256))
    poll(10, 11, soff="s%d" % sT)
    stamp(3)
    for u in range(3):
        A("buffer_load_dwordx4 v[%d:%d], v12, s[%d:%d], s%d offen offset:%d sc1" % (BQ+4*u, BQ+4*u+3, sWS, sWS+3, sT+1, 256*u))
    if not isq:
        for u in range(3):
            A("buffer_load_dwordx4 v[%d:%d], v12, s[%d:%d], s%d offen offset:%d sc1" % (BV+4*u, BV+4*u+3, sWS, sWS+3, sT+2, 256*u))
    A("s_waitcnt lgkmcnt(0)")
    for u in range(3):
        A("s_waitcnt vmcnt(%d)" % ((0 if isq else 3) + 2 - u))
        for tp in range(5):
            r = AF + 4*(5*u + tp)
            A("v_mfma_f32_16x16x32_bf16 v[%d:%d], v[%d:%d], v[%d:%d], %s" % (P+4*tp, P+4*tp+3, r, r+3, BQ+4*u, BQ+4*u+3, "0" if u == 0 else "v[%d:%d]" % (P+4*tp, P+4*tp+3)))
    if not isq:
        A("s_waitcnt vmcnt(0)")
        A("s_lshl_b32 s%d, s%d, 6" % (sT, wl))
        A("v_add_u32 v13, s%d, v%d\nv_mul_u32_u24 v14, 48, v13\nv_add_u32 v14, 0x%x, v14" % (sT, vL, VV))
        A("v_mul_u32_u24 v13, 80, v13\nv_add_u32 v13, 0x%x, v13" % PK)
        od, dn = A.newlabel("OD"), A.newlabel("DN")
        A("s_cmp_eq_u32 s%d, 1\ns_cbranch_scc1 %s" % (sPAR, od))
        A("v_mov_b32 v%d, 0x3f80\nv_mov_b32 v%d, 0\ns_branch %s" % (BV+10, BV+11, dn))
        A.label(od)
        A("v_mov_b32 v%d, 0x3f80\nv_mov_b32 v%d, 0" % (BV, BV+1))
        A.label(dn)
        for u in range(3):
            A("ds_write_b128 v14, v[%d:%d] offset:%d" % (BV+4*u, BV+4*u+3, 16*u))
    M, N = 16, 18
    A("v_max3_f32 v%d, v%d, v%d, v%d\nv_min3_f32 v%d, v%d, v%d, v%d" % (M, P, P+1, P+2, N, P, P+1, P+2))
    for i in range(3, 19, 2):
        A("v_max3_f32 v%d, v%d, v%d, v%d\nv_min3_f32 v%d, v%d, v%d, v%d" % (M, M, P+i, P+i+1, N, N, P+i, P+i+1))
    A("v_max_f32 v%d, v%d, v%d\nv_min_f32 v%d, v%d, v%d" % (M, M, P+19, N, N, P+19))
    A("s_mov_b32 s%d, 0x%x\ns_mov_b32 s%d, 0x%x" % (sT+2, f2u(LOG2E), sT+3, f2u(LOG2E)))
    A("v_mul_f32 v%d, s%d, v%d\nv_mul_f32 v%d, s%d, v%d" % (M, sT+2, M, N, sT+2, N))
    for i in range(0, 20, 2):
        A("v_pk_fma_f32 v[%d:%d], v[%d:%d], s[%d:%d], v[%d:%d] op_sel_hi:[1,1,0] neg_lo:[0,0,1] neg_hi:[0,0,1]" % (E+i, E+i+1, P+i, P+i+1, sT+2, sT+3, M, M+1))
        A("v_pk_fma_f32 v[%d:%d], v[%d:%d], s[%d:%d], v[%d:%d] op_sel_hi:[1,1,0] neg_lo:[1,0,0] neg_hi:[1,0,0]" % (E+20+i, E+21+i, P+i, P+i+1, sT+2, sT+3, N, N+1))
    for i in range(40): A("v_exp_f32 v%d, v%d" % (E+i, E+i))
    for hlf, S in ((0, M), (20, N)):
        A("v_pk_add_f32 v[%d:%d], v[%d:%d], v[%d:%d]" % (S, S+1, E+hlf, E+hlf+1, E+hlf+2, E+hlf+3))
    for i in range(4, 20, 2):
        for hlf, S in ((0, M), (20, N)):
            A("v_pk_add_f32 v[%d:%d], v[%d:%d], v[%d:%d]" % (S, S+1, S, S+1, E+hlf+i, E+hlf+i+1))
    A("v_add_f32 v%d, v%d, v%d\nv_add_f32 v%d, v%d, v%d" % (M, M, M+1, N, N, N+1))
    A("v_rcp_f32 v%d, v%d\nv_rcp_f32 v%d, v%d" % (M, M, N, N))
    for i in range(0, 40, 2):
        S = M if i < 20 else N
        A("v_pk_mul_f32 v[%d:%d], v[%d:%d], v[%d:%d] op_sel_hi:[1,0]" % (E+i, E+i+1, E+i, E+i+1, S, S+1))
    for i in range(20):
        A("v_cvt_pk_bf16_f32 v%d, v%d, v%d" % (PH+i, E+2*i, E+2*i+1))
    return PH
sC0, sPAR, sRB = 66, 67, 72

def s1b_k():
    PH = s1b_common(False)
    for i in range(5):
        A("ds_write_b128 v13, v[%d:%d] offset:%d" % (PH+4*i, PH+4*i+3, 16*i))
    A("s_waitcnt lgkmcnt(0)\ns_barrier")
    stamp(4)
    skip = A.newlabel("KVS")
    A("s_cmp_eq_u32 s%d, 3\ns_cbranch_scc1 %s" % (sW, skip))
    A("v_lshl_add_u32 v8, v%d, 3, v6" % vG)
    A("s_lshl_b32 s%d, s%d, 5\ns_add_u32 s%d, s%d, %d" % (sT, sW, sT, sT, PK))
    A("v_mul_u32_u24 v9, 80, v8\nv_lshl_add_u32 v9, v7, 3, v9\nv_add_u32 v9, s%d, v9" % sT)
    A("s_lshl_b32 s%d, s%d, 3\ns_add_u32 s%d, s%d, %d" % (sT, sPAR, sT, sT, VV))
    A("v_mul_u32_u24 v10, 48, v8\nv_add_u32 v10, s%d, v10" % sT)
    A("v_lshl_add_u32 v11, v7, 3, v10")
    A("s_mul_i32 s%d, s%d, 48\ns_sub_u32 s%d, 40, s%d" % (sT+1, sPAR, sT+1, sT+1))
    A("v_mov_b32 v12, s%d\nv_cmp_eq_u32 vcc, 0, v7\nv_cndmask_b32 v12, v12, 32, vcc" % (sT+1) if False else
      "v_mov_b32 v12, s%d\nv_mov_b32 v15, 32\nv_cmp_eq_u32 vcc, 0, v7\nv_cndmask_b32 v12, v12, v15, vcc" % (sT+1))
    A("v_add_u32 v12, v12, v10")
    F = 64; D0, D1 = 160, 164
    for s in range(8):
        for k, (ad, st) in enumerate(((9, 80), (11, 48), (12, 48))):
            r = F + 12*s + 4*k
            for hh in range(2):
                A("ds_read_b64_tr_b16 v[%d:%d], v%d offset:%d" % (r+2*hh, r+2*hh+1, ad, (32*s+4*hh)*st))
        if s >= 1:
            A("s_waitcnt lgkmcnt(6)")
            r = F + 12*(s-1)
            for k, D in ((1, D0), (2, D1)):
                A("v_mfma_f32_16x16x32_bf16 v[%d:%d], v[%d:%d], v[%d:%d], %s" % (D, D+3, r+4*k, r+4*k+3, r, r+3, "0" if s == 1 else "v[%d:%d]" % (D, D+3)))
    A("s_waitcnt lgkmcnt(0)")
    r = F + 84
    for k, D in ((1, D0), (2, D1)):
        A("v_mfma_f32_16x16x32_bf16 v[%d:%d], v[%d:%d], v[%d:%d], v[%d:%d]" % (D, D+3, r+4*k, r+4*k+3, r, r+3, D, D+3))
    A("v_lshlrev_b32 v8, 4, v%d" % vL)
    A("s_mul_i32 s%d, s%d, 49152\ns_lshl_b32 s%d, s%d, 11\ns_add_u32 s%d, s%d, s%d\ns_add_u32 s%d, s%d, 0x%x" % (sT, sIDX, sT+1, sW, sT, sT, sT+1, sT, sT, KVP))
    A("s_mul_i32 s%d, s%d, 6144\ns_add_u32 s%d, s%d, s%d" % (sT+1, sXCD, sT+1, sT+1, sT))
    A("s_lshl_b32 s%d, s%d, 2\ns_add_u32 s%d, s%d, s%d\ns_lshl_b32 s%d, s%d, 5\ns_add_u32 s%d, s%d, 0x%x" % (sT+2, sIDX, sT+2, sT+2, sW, sT+2, sT+2, sT+2, sT+2, FKV))
    A("s_lshl_b32 s%d, s%d, 2\nv_mov_b32 v9, s%d" % (sT+3, sXCD, sT+3))
    A("buffer_store_dwordx4 v[%d:%d], v8, s[%d:%d], s%d offen sc1" % (D0, D0+3, sWS, sWS+3, sT+1))
    A("buffer_store_dwordx4 v[%d:%d], v8, s[%d:%d], s%d offen offset:1024 sc1" % (D1, D1+3, sWS, sWS+3, sT+1))
    setflag(9, sT+2, " sc1")
    A("v_and_b32 v9, 7, v%d\nv_lshlrev_b32 v9, 2, v9" % vL)
    poll(9, 10, soff="s%d" % (sT+2), sleep=2)
    stamp(5)
    for x in range(8):
        for dt in range(2):
            r = F + 8*x + 4*dt
            A("buffer_load_dwordx4 v[%d:%d], v8, s[%d:%d], s%d offen offset:%d sc1" % (r, r+3, sWS, sWS+3, sT, 1024*dt))
        if x < 7: A("s_add_u32 s%d, s%d, 6144" % (sT, sT))
    A("s_mul_i32 s%d, s%d, %d\ns_add_u32 s%d, s%d, %d" % (sT, sW, 16*48, sT, sT, KVT))
    A("v_mul_u32_u24 v9, 48, v%d\nv_lshl_add_u32 v9, v%d, 3, v9\nv_add_u32 v9, s%d, v9" % (vTT, vG, sT))
    for x in range(1, 8):
        A("s_waitcnt vmcnt(%d)" % (14 - 2*x))
        for i in range(0, 8, 2):
            A("v_pk_add_f32 v[%d:%d], v[%d:%d], v[%d:%d]" % (F+i, F+i+1, F+i, F+i+1, F+8*x+i, F+8*x+i+1))
    for i in range(4):
        A("v_cvt_pk_bf16_f32 v%d, v%d, v%d" % (10+i, F+2*i, F+2*i+1))
    A("ds_write_b64 v9, v[10:11]")
    A("s_mov_b32 exec_hi, 0")
    A("ds_write_b64 v9, v[12:13] offset:32")
    A("s_mov_b64 exec, -1")
    A.label(skip)
    A("s_waitcnt lgkmcnt(0)\ns_barrier")
    stamp(6)

def s1b_q():
    A("s_barrier")
    ld_setup()
    PH = s1b_common(True)
    wflags_all()
    for sg in range(5): ld_seg(sg)
    A("v_mul_u32_u24 v8, 48, v6\nv_add_u32 v8, 0x%x, v8\nv_mov_b32 v9, 0x%x" % (KVT, MZ))
    A("v_cmp_eq_u32 vcc, v7, v%d\nv_cndmask_b32 v8, v9, v8, vcc" % vG)
    A("v_mul_u32_u24 v12, 20480, v%d\nv_lshl_add_u32 v12, v%d, 4, v12" % (vG, vTT))
    A("s_mul_i32 s%d, s%d, %d\ns_lshl_b32 s%d, s%d, 8\ns_add_u32 s%d, s%d, s%d\ns_add_u32 s%d, s%d, 0x%x" % (sT+1, sRB, 4*20480, sT+2, sC0, sT+1, sT+1, sT+2, sT+1, sT+1, O_))
    A("s_lshl_b32 s%d, s%d, 5\ns_add_u32 s%d, s%d, s%d\ns_lshl_b32 s%d, s%d, 2\ns_add_u32 s%d, s%d, 0x%x" % (sT+2, sRB, sT+2, sT+2, sIDX, sT+2, sT+2, sT+2, sT+2, FO))
    A("v_mov_b32 v13, 0")
    A("s_barrier")
    F = 64; D = 184
    order = [(u, tp) for u in range(5) for tp in range(6)]
    def rd(n):
        u, tp = order[n]; r = F + 4*n
        for hh in range(2):
            A("ds_read_b64_tr_b16 v[%d:%d], v8 offset:%d" % (r+2*hh, r+2*hh+1, (8*u+4*hh)*48 + 8*tp))
    for n in range(6): rd(n)
    for n in range(30):
        if n + 6 < 30: rd(n + 6)
        A("s_waitcnt lgkmcnt(%d)" % (2*min(6, 29 - n)))
        u, tp = order[n]; r = F + 4*n
        A("v_mfma_f32_16x16x32_bf16 v[%d:%d], v[%d:%d], v[%d:%d], %s" % (D+4*tp, D+4*tp+3, r, r+3, PH+4*u, PH+4*u+3, "0" if u == 0 else "v[%d:%d]" % (D+4*tp, D+4*tp+3)))
    A("v_add_f32 v16, 0x%x, v%d\nv_rcp_f32 v16, v16" % (f2u(1e-6), D+20))
    for i in range(0, 20, 2):
        A("v_pk_mul_f32 v[%d:%d], v[%d:%d], v[16:17] op_sel_hi:[1,0]" % (D+i, D+i+1, D+i, D+i+1))
    for i in range(10):
        A("v_cvt_pk_bf16_f32 v%d, v%d, v%d" % (20+i, D+2*i, D+2*i+1))
    def st(p):
        od, dn = A.newlabel("OD"), A.newlabel("DN")
        A("s_cmp_eq_u32 s%d, 1\ns_cbranch_scc1 %s" % (sPAR, od))
        A("buffer_store_dwordx4 v[20:23], v12, s[%d:%d], s%d offen%s" % (sWS, sWS+3, sT+1, p))
        A("buffer_store_dwordx4 v[24:27], v12, s[%d:%d], s%d offen offset:256%s" % (sWS, sWS+3, sT+1, p))
        A("buffer_store_dwordx2 v[28:29], v12, s[%d:%d], s%d offen offset:512%s" % (sWS, sWS+3, sT+1, p))
        A("s_branch %s" % dn)
        A.label(od)
        A("buffer_store_dwordx2 v[20:21], v12, s[%d:%d], s%d offen offset:8%s" % (sWS, sWS+3, sT+1, p))
        A("buffer_store_dwordx4 v[22:25], v12, s[%d:%d], s%d offen offset:256%s" % (sWS, sWS+3, sT+1, p))
        A("buffer_store_dwordx4 v[26:29], v12, s[%d:%d], s%d offen offset:512%s" % (sWS, sWS+3, sT+1, p))
        A.label(dn)
        setflag(13, sT+2, p)
    dual(st)
    stamp(7)

sJ, sWB, sLW = 73, 82, 83
vLD = 5
def ld_setup():
    A("s_lshr_b32 s%d, s%d, 2" % (sJ, sIDX))
    A("s_mul_i32 s%d, s%d, %d\ns_add_u32 s%d, s%d, 0x%x" % (sWB, sJ, WSL, sWB, sWB, WP))
    A("s_sub_u32 s%d, s%d, 4\ns_mul_i32 s%d, s%d, 5120" % (sLW, sW, sLW, sLW))
    A("v_lshlrev_b32 v%d, 4, v%d\nv_add_u32 v%d, s%d, v%d" % (vLD, vL, vLD, sLW, vLD))
def ld_seg(sg):
    l = (sg % 7) * SEG
    A("s_add_u32 s%d, s%d, %d\ns_add_u32 m0, s%d, %d" % (sT, sWB, sg*SEG, sLW, l))
    for q in range(4):
        A("buffer_load_dwordx4 v%d, s[%d:%d], s%d offen offset:%d sc1 lds" % (vLD, sWS, sWS+3, sT, 1024*q))
    A("s_add_u32 s%d, s%d, 4096\ns_add_u32 m0, s%d, %d" % (sT, sT, sLW, l + 4096))
    A("buffer_load_dwordx4 v%d, s[%d:%d], s%d offen sc1 lds" % (vLD, sWS, sWS+3, sT))
def wflags_all():
    A("s_mul_i32 s%d, s%d, 5\ns_lshr_b32 s%d, s%d, 2" % (sT, sJ, sT, sT))
    A("s_mul_i32 s%d, s%d, 80\ns_add_u32 s%d, s%d, 0x%x" % (sT+1, sT, sT+1, sT+1, FW))
    A("s_mul_i32 s%d, s%d, 240\ns_add_u32 s%d, s%d, 0x%x" % (sT+2, sJ, sT+2, sT+2, FW + UB["w3"]*4))
    A("s_mul_i32 s%d, s%d, 192\ns_add_u32 s%d, s%d, 0x%x" % (sT+3, sT, sT+3, sT+3, FW + UB["w4"]*4))
    A("v_min_u32 v30, 39, v%d\nv_lshlrev_b32 v30, 2, v30" % vL)
    A("v_min_u32 v31, 59, v%d\nv_lshlrev_b32 v31, 2, v31" % vL)
    A("v_min_u32 v32, 47, v%d\nv_lshlrev_b32 v32, 3, v32" % vL)
    L, D = A.newlabel("P"), A.newlabel("PD")
    A("s_mov_b32 s%d, %d" % (sCNT, POLL_LIMIT))
    A.label(L)
    for i in range(3):
        A("buffer_load_dword v%d, v30, s[%d:%d], s%d offen offset:%d sc1" % (33+i, sWS, sWS+3, sT+1, 800*i))
    A("buffer_load_dword v36, v31, s[%d:%d], s%d offen sc1" % (sWS, sWS+3, sT+2))
    A("buffer_load_dwordx2 v[38:39], v32, s[%d:%d], s%d offen sc1" % (sWS, sWS+3, sT+3))
    A("s_waitcnt vmcnt(0)")
    A("v_min3_u32 v33, v33, v34, v35\nv_min3_u32 v33, v33, v36, v38\nv_min_u32 v33, v33, v39")
    A("v_cmp_eq_u32 vcc, 0, v33\ns_cbranch_vccz %s" % D)
    A("s_sleep 4\ns_sub_u32 s%d, s%d, 1\ns_cbranch_scc0 %s" % (sCNT, sCNT, L))
    A.label(D)
def cs_issue(base, ncol, rowb, va, vd):
    A("s_sub_u32 s%d, s%d, 4\ns_lshl_b32 s%d, s%d, 6" % (sT, sW, sT, sT))
    A("v_add_u32 v%d, s%d, v%d\nv_min_u32 v%d, %d, v%d\nv_lshlrev_b32 v%d, 2, v%d" % (va, sT, vL, va, ncol-1, va, va, va))
    A("s_mul_i32 s%d, s%d, %d\ns_add_u32 s%d, s%d, 0x%x" % (sT, sJ, ncol*4, sT, sT, base))
    for s in range(20):
        A("buffer_load_dword v%d, v%d, s[%d:%d], s%d offen sc1" % (vd+s, va, sWS, sWS+3, sT))
        if s < 19: A("s_add_u32 s%d, s%d, %d" % (sT, sT, rowb))
def cs_finish(va, vd, dst):
    for s in range(1, 20): A("v_add_f32 v%d, v%d, v%d" % (vd, vd, vd+s))
    A("v_add_u32 v%d, 0x%x, v%d\nds_write_b32 v%d, v%d" % (va, dst, va, va, vd))

SCHED = []
def build_sched():
    pos = [0, 5, 7, 10, 12, 15] + list(range(17, 39, 2))
    out = []
    loaded = 5
    for i, p in enumerate(pos):
        nxt = pos[i+1] if i + 1 < len(pos) else 39
        out.append((p, nxt))
    return out
SCHED = build_sched()

def loader_main():
    issued = 5
    for (p, nxt) in SCHED:
        assert nxt <= issued, (p, nxt, issued)
        A("s_waitcnt vmcnt(%d)" % min(63, (issued - nxt) * 5))
        A("s_barrier")
        tgt = min(39, p + 7)
        if p == 0:
            cs_issue(CSP1, 80, 2560, 30, 32); cs_issue(CSP3, 192, 6144, 31, 52)
        while issued < tgt:
            ld_seg(issued); issued += 1
        if p == 0:
            A("s_waitcnt vmcnt(10)")
            cs_finish(30, 32, CS1); cs_finish(31, 52, CS3)
            A("s_waitcnt lgkmcnt(0)")

vAF, vST, vSTH, vRM, vRMH, vZ = 6, 7, 8, 9, 10, 11
vWB = 12
vS4 = 16
vMEAN, vRSTD, vSC = 20, 21, 22
ACC = 24
WBUF = 44
HRES = 84
AFR = 104
TMP = 184
sTT, sS0, sAOFF, sHOFF = 84, 85, 86, 87

def c_setup():
    A("s_lshr_b32 s%d, s%d, 2" % (sJ, sIDX))
    A("s_and_b32 s%d, s%d, 3\ns_lshl_b32 s%d, s%d, 2\ns_add_u32 s%d, s%d, s%d" % (sTT, sIDX, sT, sXCD, sTT, sTT, sT))
    A("s_mov_b32 s%d, s%d" % (sRB, sTT))
    A("s_lshl_b32 s%d, s%d, 2\ns_add_u32 s%d, s%d, s%d" % (sTT, sTT, sTT, sTT, sW))
    A("s_lshr_b32 s%d, s%d, 1\ns_mul_i32 s%d, s%d, 5\ns_and_b32 s%d, s%d, 1" % (sT, sJ, sT, sT, sPAR, sJ))
    A("s_mul_i32 s%d, s%d, 3\ns_add_u32 s%d, s%d, s%d" % (sS0, sPAR, sS0, sS0, sT))
    A("s_mul_i32 s%d, s%d, 20480" % (sT+1, sTT))
    A("s_lshl_b32 s%d, s%d, 10\ns_add_u32 s%d, s%d, s%d" % (sAOFF, sS0, sAOFF, sAOFF, sT+1))
    A("s_add_u32 s%d, s%d, 2\ns_lshl_b32 s%d, s%d, 10\ns_lshl_b32 s%d, s%d, 9" % (sT+2, sT, sHOFF, sT+2, sT+3, sPAR))
    A("s_add_u32 s%d, s%d, s%d\ns_add_u32 s%d, s%d, s%d" % (sHOFF, sHOFF, sT+3, sHOFF, sHOFF, sT+1))
    A("v_lshlrev_b32 v%d, 4, v%d" % (vAF, vL))
    A("v_lshrrev_b32 v%d, 1, v%d\nv_lshlrev_b32 v%d, 8, v%d\nv_lshl_add_u32 v%d, v%d, 4, v%d" % (vSTH, vG, vSTH, vSTH, vSTH, vTT, vSTH))
    A("v_and_b32 v%d, 1, v%d\nv_lshl_add_u32 v%d, v%d, 3, v%d" % (TMP, vG, vSTH, TMP, vSTH))
    A("v_lshrrev_b32 v%d, 5, v%d\nv_lshlrev_b32 v%d, 6, v%d\nv_lshl_add_u32 v%d, v%d, 2, v%d" % (vST, vL, vST, vST, vST, vTT, vST))
    A("s_lshl_b32 s%d, s%d, 4" % (sT+1, sTT))
    A("v_add_u32 v%d, s%d, v%d\nv_mul_u32_u24 v%d, 1280, v%d" % (TMP, sT+1, vTT, TMP+1, TMP))
    A("s_lshl_b32 s%d, s%d, 6" % (sT+3, sS0))
    A("v_lshl_add_u32 v%d, v%d, 4, v%d\nv_add_u32 v%d, s%d, v%d" % (vRM, vG, TMP+1, vRM, sT+3, vRM))
    A("s_lshl_b32 s%d, s%d, 6\ns_lshl_b32 s%d, s%d, 5\ns_add_u32 s%d, s%d, s%d" % (sT+2, sT+2, sT+3, sPAR, sT+2, sT+2, sT+3))
    A("v_lshl_add_u32 v%d, v%d, 3, v%d\nv_add_u32 v%d, s%d, v%d" % (vRMH, vG, TMP+1, vRMH, sT+2, vRMH))
    A("v_mov_b32 v%d, 0" % vZ)
    A("v_mov_b32 v%d, v%d\nv_add_u32 v%d, 0x10000, v%d\nv_add_u32 v%d, 0x20000, v%d" % (vWB, vAF, vWB+1, vAF, vWB+2, vAF))
    for q, dl in enumerate((-1, 1, -2, 2)):
        r = vS4 + q
        A("v_add_u32 v%d, %d, v%d" % (TMP+2, dl, TMP))
        A("v_lshrrev_b32 v%d, 4, v%d\nv_mul_u32_u24 v%d, 20480, v%d" % (r, TMP+2, r, r))
        A("v_and_b32 v%d, 15, v%d\nv_lshl_add_u32 v%d, v%d, 4, v%d\nv_lshl_add_u32 v%d, v%d, 8, v%d" % (TMP+3, TMP+2, r, TMP+3, r, r, vG, r))
        A("v_bfrev_b32 v%d, 1\nv_cmp_gt_u32 vcc, 0x800, v%d\nv_cndmask_b32 v%d, v%d, v%d, vcc" % (TMP+3, TMP+2, r, TMP+3, r))

def acc_reg(tile, r):
    return ACC + 4*tile + r

barrier_at = {p: True for (p, _) in SCHED}
def wread(dst, off):
    a = off % RING
    A("ds_read_b128 v[%d:%d], v%d offset:%d" % (dst, dst+3, vWB + (a >> 16), a & 0xffff))

def gemm5(stage, nks, afr, nout_after, wbuf=WBUF):
    sb = SB[stage]
    def grp(s):
        for t in range(5): wread(wbuf + 20*(s & 1) + 4*t, sb + s*5120 + t*1024)
    def bar_before(s):
        off = sb + s*5120
        return off % SEG == 0 and (off // SEG) in barrier_at
    pend = []
    def issue(s):
        if s >= nks: return False
        if bar_before(s): return False
        grp(s); return True
    s_iss = 0
    for s in range(nks):
        if s_iss == s:
            if bar_before(s):
                A("s_waitcnt lgkmcnt(0)\ns_barrier")
            grp(s); s_iss += 1
        if s_iss == s + 1 and s_iss < nks:
            if bar_before(s_iss):
                A("s_waitcnt lgkmcnt(0)\ns_barrier")
                grp(s_iss); s_iss += 1
                waited = True
            else:
                grp(s_iss); s_iss += 1
                waited = False
            if not waited: A("s_waitcnt vmcnt(%d) lgkmcnt(5)" % min(63, nks - 1 - s + nout_after))
            else: A("s_waitcnt vmcnt(%d)" % min(63, nks - 1 - s + nout_after))
        else:
            A("s_waitcnt vmcnt(%d) lgkmcnt(0)" % min(63, nks - 1 - s + nout_after))
        for t in range(5):
            w = wbuf + 20*(s & 1) + 4*t; a = ACC + 4*t
            A("v_mfma_f32_16x16x32_bf16 v[%d:%d], v[%d:%d], v[%d:%d], v[%d:%d]" % (a, a+3, w, w+3, afr+4*s, afr+4*s+3, a, a+3))

def end_bar(stage):
    pass

def aloads(base, tstride, nks, afr, voff=None):
    A("s_mul_i32 s%d, s%d, %d\ns_add_u32 s%d, s%d, 0x%x" % (sT, sTT, tstride, sT, sT, base) if voff is None else "s_mov_b32 s%d, 0x%x" % (sT, base))
    for s in range(nks):
        v = vAF if voff is None else voff + s // 5
        A("buffer_load_dwordx4 v[%d:%d], v%d, s[%d:%d], s%d offen offset:%d sc1" % (afr+4*s, afr+4*s+3, v, sWS, sWS+3, sT, (s & 3)*1024))
        if s & 3 == 3 and s + 1 < nks: A("s_add_u32 s%d, s%d, 4096" % (sT, sT))

def poll8(fbase):
    A("s_lshl_b32 s%d, s%d, 5\ns_add_u32 s%d, s%d, 0x%x" % (sT+1, sTT, sT+1, sT+1, fbase))
    A("v_and_b32 v%d, 7, v%d\nv_lshlrev_b32 v%d, 2, v%d" % (TMP, vL, TMP, TMP))
    poll(TMP, TMP+1, soff="s%d" % (sT+1))

def pack10(src, dst):
    for i in range(10): A("v_cvt_pk_bf16_f32 v%d, v%d, v%d" % (dst+i, src+2*i, src+2*i+1))

def store_af(base, pk, fbase, stb=None, sreg=sFAST):
    A("s_add_u32 s%d, s%d, 0x%x\ns_add_u32 s%d, s%d, 0x%x" % (sT, sAOFF, base, sT+1, sHOFF, base))
    A("s_lshl_b32 s%d, s%d, 3\ns_add_u32 s%d, s%d, s%d" % (sT+2, sTT, sT+2, sT+2, sJ))
    if stb is not None: A("s_lshl_b32 s%d, s%d, 7\ns_add_u32 s%d, s%d, 0x%x" % (sT+3, sT+2, sT+3, sT+3, stb))
    A("s_lshl_b32 s%d, s%d, 2\ns_add_u32 s%d, s%d, 0x%x" % (sT+2, sT+2, sT+2, sT+2, fbase))
    def st(p):
        A("buffer_store_dwordx4 v[%d:%d], v%d, s[%d:%d], s%d offen%s" % (pk, pk+3, vAF, sWS, sWS+3, sT, p))
        A("buffer_store_dwordx4 v[%d:%d], v%d, s[%d:%d], s%d offen offset:1024%s" % (pk+4, pk+7, vAF, sWS, sWS+3, sT, p))
        A("buffer_store_dwordx2 v[%d:%d], v%d, s[%d:%d], s%d offen%s" % (pk+8, pk+9, vSTH, sWS, sWS+3, sT+1, p))
        if stb is not None:
            stats_partial(ACC, TMP+12)
            A("buffer_store_dword v%d, v%d, s[%d:%d], s%d offen%s" % (TMP+12, vST, sWS, sWS+3, sT+3, p))
        setflag(vZ, sT+2, p)
    dual(st, sreg)

def stats_partial(src, t):
    a, b = t, t+2
    A("v_pk_add_f32 v[%d:%d], v[%d:%d], v[%d:%d]" % (a, a+1, src, src+1, src+2, src+3))
    A("v_pk_mul_f32 v[%d:%d], v[%d:%d], v[%d:%d]" % (b, b+1, src, src+1, src, src+1))
    for i in range(2, 20, 2):
        if i > 2: A("v_pk_add_f32 v[%d:%d], v[%d:%d], v[%d:%d]" % (a, a+1, a, a+1, src+i, src+i+1))
        A("v_pk_fma_f32 v[%d:%d], v[%d:%d], v[%d:%d], v[%d:%d]" % (b, b+1, src+i, src+i+1, src+i, src+i+1, b, b+1))
    A("v_add_f32 v%d, v%d, v%d\nv_add_f32 v%d, v%d, v%d" % (a, a, a+1, b, b, b+1))
    A("v_permlane32_swap_b32 v%d, v%d\nv_add_f32 v%d, v%d, v%d\nv_mov_b32 v%d, v%d" % (a, b, a, a, b, b, a))
    A("v_permlane16_swap_b32 v%d, v%d\nv_add_f32 v%d, v%d, v%d" % (a, b, a, a, b))

def stats_load(stb):
    A("s_lshl_b32 s%d, s%d, 10\ns_add_u32 s%d, s%d, 0x%x" % (sT+1, sTT, sT+1, sT+1, stb))
    A("v_lshlrev_b32 v%d, 8, v%d\nv_lshl_add_u32 v%d, v%d, 2, v%d" % (TMP+2, vG, TMP+2, vTT, TMP+2))
    for i in range(4):
        A("buffer_load_dword v%d, v%d, s[%d:%d], s%d offen offset:%d sc1" % (TMP+4+i, TMP+2, sWS, sWS+3, sT+1, 64*i))
def stats_finish(nyounger):
    a, b = TMP+4, TMP+5
    A("s_waitcnt vmcnt(%d)" % nyounger)
    A("v_add_f32 v%d, v%d, v%d\nv_add_f32 v%d, v%d, v%d" % (a, a, TMP+6, b, b, TMP+7))
    A("v_permlane32_swap_b32 v%d, v%d\nv_add_f32 v%d, v%d, v%d\nv_mov_b32 v%d, v%d" % (a, b, a, a, b, b, a))
    A("v_permlane16_swap_b32 v%d, v%d\nv_add_f32 v%d, v%d, v%d\nv_mov_b32 v%d, v%d" % (a, b, a, a, b, b, a))
    A("v_permlane32_swap_b32 v%d, v%d" % (a, b))
    lnstats(a, b, vRSTD)
    A("v_mov_b32 v%d, v%d" % (vMEAN, a))

GC0 = -2*0.7978845608028654*LOG2E
GC1 = GC0*0.044715
def gelu(src, n, t, sc):
    for i in range(0, n, 2):
        A("v_pk_mul_f32 v[%d:%d], v[%d:%d], v[%d:%d] op_sel_hi:[1,0]" % (src+i, src+i+1, src+i, src+i+1, sc, sc+1))
    for i in range(0, n, 2):
        A("v_pk_mul_f32 v[%d:%d], v[%d:%d], v[%d:%d]" % (t+i, t+i+1, src+i, src+i+1, src+i, src+i+1))
    for i in range(0, n, 2):
        A("v_pk_fma_f32 v[%d:%d], v[%d:%d], s[%d:%d], v[%d:%d] op_sel_hi:[1,1,0]" % (t+i, t+i+1, t+i, t+i+1, sK, sK+1, vGC0, vGC0+1))
    for i in range(0, n, 2):
        A("v_pk_mul_f32 v[%d:%d], v[%d:%d], v[%d:%d]" % (t+i, t+i+1, t+i, t+i+1, src+i, src+i+1))
    for i in range(n): A("v_exp_f32 v%d, v%d" % (t+i, t+i))
    for i in range(0, n, 2):
        A("v_pk_add_f32 v[%d:%d], v[%d:%d], 1.0 op_sel_hi:[1,0]" % (t+i, t+i+1, t+i, t+i+1))
    for i in range(n): A("v_rcp_f32 v%d, v%d" % (t+i, t+i))
    for i in range(0, n, 2):
        A("v_pk_mul_f32 v[%d:%d], v[%d:%d], v[%d:%d]" % (src+i, src+i+1, src+i, src+i+1, t+i, t+i+1))
vGC0 = 254

def c_main():
    c_setup()
    A("s_mov_b32 s%d, 0x%x\ns_mov_b32 s%d, 0x%x\nv_mov_b32 v%d, 0x%x" % (sK, f2u(GC1), sK+1, f2u(GC1), vGC0, f2u(GC0)))
    A("s_mov_b32 s%d, 0xffff0000" % (sK+2))
    PKR = TMP + 20
    A("buffer_load_dwordx4 v[%d:%d], v%d, s[%d:%d], 0 offen" % (PKR, PKR+3, vRM, sX, sX+3))
    A("buffer_load_dwordx4 v[%d:%d], v%d, s[%d:%d], 0 offen offset:64" % (PKR+4, PKR+7, vRM, sX, sX+3))
    A("buffer_load_dwordx2 v[%d:%d], v%d, s[%d:%d], 0 offen" % (PKR+8, PKR+9, vRMH, sX, sX+3))
    A("s_waitcnt vmcnt(0)")
    for i in range(10):
        A("v_lshlrev_b32 v%d, 16, v%d\nv_and_b32 v%d, s%d, v%d" % (ACC+2*i, PKR+i, ACC+2*i+1, sK+2, PKR+i))
    A("s_lshl_b32 s%d, s%d, 7\ns_add_u32 s%d, s%d, 0x%x" % (sT+1, sRB, sT+1, sT+1, FO))
    A("v_and_b32 v%d, 31, v%d\nv_lshlrev_b32 v%d, 2, v%d" % (TMP, vL, TMP, TMP))
    poll(TMP, TMP+1, soff="s%d" % (sT+1))
    stamp(7)
    aloads(O_, 20480, 20, AFR)
    gemm5(2, 20, AFR, 0)
    A("s_barrier")
    pack10(ACC, PKR)
    store_af(H_, PKR, FH, STH)
    stamp(8)
    for i in range(20): A("v_mov_b32 v%d, v%d" % (HRES+i, ACC+i))
    A("v_lshlrev_b32 v%d, 4, v%d\nv_add_u32 v%d, 0x%x, v%d" % (TMP+3, vG, TMP+3, CS1, TMP+3))
    for t in range(5): A("ds_read_b128 v[%d:%d], v%d offset:%d" % (ACC+4*t, ACC+4*t+3, TMP+3, 64*t))
    poll8(FH)
    stats_load(STH)
    aloads(H_, 20480, 20, AFR)
    stats_finish(20)
    A("s_waitcnt lgkmcnt(0)")
    for i in range(0, 20, 2):
        A("v_pk_mul_f32 v[%d:%d], v[%d:%d], v[%d:%d] op_sel_hi:[1,0] neg_lo:[0,1] neg_hi:[0,1]" % (ACC+i, ACC+i+1, ACC+i, ACC+i+1, vMEAN, vMEAN+1))
    A("v_mul_f32 v%d, v%d, v%d\nv_mul_f32 v%d, v%d, v%d" % (TMP+6, vRSTD, vRSTD, TMP+6, TMP+6, TMP+5))
    A("v_add_f32 v%d, 0x%x, v%d\nv_rsq_f32 v%d, v%d\nv_mul_f32 v%d, v%d, v%d" % (TMP+6, f2u(1e-5), TMP+6, TMP+6, TMP+6, vSC, TMP+6, vRSTD))
    barrier_at.pop(5)
    gemm5(3, 20, AFR, 0)
    A("s_barrier")
    gelu(ACC, 20, TMP+30, vSC)
    pack10(ACC, PKR)
    A("s_add_u32 s%d, s%d, 1\ns_and_b32 s%d, s%d, 14\ns_cmp_lg_u32 s%d, 0\ns_cselect_b32 s%d, s%d, 0" % (sT+4, sTT, sT+4, sT+4, sT+4, sT+4, sFAST))
    store_af(HH, PKR, FHH, None, sreg=sT+4)
    stamp(9)
    A("v_mul_f32 v%d, v%d, v%d" % (vMEAN, vMEAN, vRSTD))
    for i in range(0, 20, 2):
        A("v_pk_fma_f32 v[%d:%d], v[%d:%d], v[%d:%d], v[%d:%d] op_sel:[0,1,0] op_sel_hi:[1,1,0] neg_lo:[0,0,1] neg_hi:[0,0,1]" % (ACC+i, ACC+i+1, HRES+i, HRES+i+1, vMEAN, vMEAN+1, vMEAN, vMEAN+1))
    A("s_lshl_b32 s%d, s%d, 3\ns_sub_u32 s%d, s%d, 8" % (sT+1, sTT, sT+1, sT+1))
    A("v_min_u32 v%d, 23, v%d\nv_add_u32 v%d, s%d, v%d\nv_max_i32 v%d, 0, v%d\nv_min_i32 v%d, 0x3ff, v%d\nv_lshlrev_b32 v%d, 2, v%d" % (TMP, vL, TMP, sT+1, TMP, TMP, TMP, TMP, TMP, TMP, TMP))
    A("s_mov_b32 s%d, 0x%x" % (sT+1, FHH))
    poll(TMP, TMP+1, soff="s%d" % (sT+1))
    aloads(HH, 0, 20, AFR, voff=vS4)
    barrier_at.pop(10)
    gemm5(4, 20, AFR, 0)
    A("s_barrier")
    pack10(ACC, PKR)
    store_af(X1, PKR, FX1, STX)
    stamp(10)
    for i in range(0, 20, 2):
        A("v_pk_add_f32 v[%d:%d], v[%d:%d], v[%d:%d]" % (HRES+i, HRES+i+1, HRES+i, HRES+i+1, ACC+i, ACC+i+1))
    A("v_lshlrev_b32 v%d, 4, v%d\nv_add_u32 v%d, 0x%x, v%d" % (TMP+3, vG, TMP+3, CS3, TMP+3))
    poll8(FX1)
    stats_load(STX)
    aloads(X1, 20480, 20, AFR)
    stats_finish(20)
    A("v_mov_b32 v%d, v%d" % (vSC, vRSTD))
    A("s_mul_i32 s%d, s%d, 49152\ns_mul_i32 s%d, s%d, 6144\ns_add_u32 s%d, s%d, s%d\ns_add_u32 s%d, s%d, 0x%x" % (sT+5, sTT, sT+6, sJ, sT+5, sT+5, sT+6, sT+5, sT+5, G_))
    A("s_add_u32 s%d, s%d, 4096" % (sT+6, sT+5))
    GP = TMP + 40
    for p in range(6):
        a = ACC + 8*(p & 1)
        if p > 0: A("s_barrier")
        for t in range(2): A("ds_read_b128 v[%d:%d], v%d offset:%d" % (a+4*t, a+4*t+3, TMP+3, 128*p + 64*t))
        sb = SB[5] + p*40960
        def grp(q):
            for i in range(4): wread(WBUF + 16*(q & 1) + 4*i, sb + q*4096 + i*1024)
        grp(0)
        A("s_waitcnt lgkmcnt(4)")
        for i in range(0, 8, 2):
            A("v_pk_mul_f32 v[%d:%d], v[%d:%d], v[%d:%d] op_sel_hi:[1,0] neg_lo:[0,1] neg_hi:[0,1]" % (a+i, a+i+1, a+i, a+i+1, vMEAN, vMEAN+1))
        for q in range(10):
            if q < 9: grp(q+1)
            w = "lgkmcnt(%d)" % (4 if q < 9 else 0)
            if p == 0: w = "vmcnt(%d) " % (18 - 2*q) + w
            A("s_waitcnt " + w)
            for i in range(4):
                s = 2*q + (i >> 1); t = i & 1; wr = WBUF + 16*(q & 1) + 4*i
                A("v_mfma_f32_16x16x32_bf16 v[%d:%d], v[%d:%d], v[%d:%d], v[%d:%d]" % (a+4*t, a+4*t+3, wr, wr+3, AFR+4*s, AFR+4*s+3, a+4*t, a+4*t+3))
        gelu(a, 8, TMP+30, vSC)
        for i in range(4): A("v_cvt_pk_bf16_f32 v%d, v%d, v%d" % (GP+4*p+i, a+2*i, a+2*i+1))
    A("s_barrier")
    A("s_lshl_b32 s%d, s%d, 3\ns_add_u32 s%d, s%d, s%d\ns_lshl_b32 s%d, s%d, 2\ns_add_u32 s%d, s%d, 0x%x" % (sT+2, sTT, sT+2, sT+2, sJ, sT+2, sT+2, sT+2, sT+2, FG))
    def st(pp):
        for p in range(6):
            A("buffer_store_dwordx4 v[%d:%d], v%d, s[%d:%d], s%d offen offset:%d%s" % (GP+4*p, GP+4*p+3, vAF, sWS, sWS+3, sT+5 + (p >> 2), (p & 3)*1024, pp))
        setflag(vZ, sT+2, pp)
    dual(st)
    stamp(11)
    for i in range(20): A("v_mov_b32 v%d, v%d" % (ACC+i, HRES+i))
    poll8(FG)
    A6 = 84
    A("s_mul_i32 s%d, s%d, 49152\ns_add_u32 s%d, s%d, 0x%x" % (sT, sTT, sT, sT, G_))
    def ld6(s):
        r = A6 + 4*(s % 42)
        A("buffer_load_dwordx4 v[%d:%d], v%d, s[%d:%d], s%d offen offset:%d sc1" % (r, r+3, vAF, sWS, sWS+3, sT, (s & 3)*1024))
        if s & 3 == 3: A("s_add_u32 s%d, s%d, 4096" % (sT, sT))
    for s in range(42): ld6(s)
    barrier_at.pop(27)
    sb = SB[6]
    def grp(s):
        for t in range(5): wread(WBUF + 20*(s & 1) + 4*t, sb + s*5120 + t*1024)
    grp(0)
    for s in range(48):
        issued = 42 + min(6, s)
        vm = issued - 1 - s
        if s + 1 < 48:
            off = sb + (s+1)*5120
            if off % SEG == 0 and (off // SEG) in barrier_at:
                A("s_waitcnt lgkmcnt(0)\ns_barrier"); grp(s+1); A("s_waitcnt vmcnt(%d)" % vm)
            else:
                grp(s+1); A("s_waitcnt vmcnt(%d) lgkmcnt(5)" % vm)
        else:
            A("s_waitcnt vmcnt(0) lgkmcnt(0)")
        r = A6 + 4*(s % 42)
        for t in range(5):
            w = WBUF + 20*(s & 1) + 4*t; a = ACC + 4*t
            A("v_mfma_f32_16x16x32_bf16 v[%d:%d], v[%d:%d], v[%d:%d], v[%d:%d]" % (a, a+3, w, w+3, r, r+3, a, a+3))
        if s < 6: ld6(42 + s)
    pack10(ACC, WBUF)
    A("buffer_store_dwordx4 v[%d:%d], v%d, s[%d:%d], 0 offen" % (WBUF, WBUF+3, vRM, sOUT, sOUT+3))
    A("buffer_store_dwordx4 v[%d:%d], v%d, s[%d:%d], 0 offen offset:64" % (WBUF+4, WBUF+7, vRM, sOUT, sOUT+3))
    A("buffer_store_dwordx2 v[%d:%d], v%d, s[%d:%d], 0 offen" % (WBUF+8, WBUF+9, vRMH, sOUT, sOUT+3))
    stamp(12)

def ts_dump():
    if not OPT["ts"]: return
    A("s_waitcnt vmcnt(0)")
    stamp(13)
    A("s_lshl_b32 s%d, s2, 3\ns_add_u32 s%d, s%d, s%d\ns_lshl_b32 s%d, s%d, 6\ns_add_u32 s%d, s%d, 0x%x" % (sT, sT, sT, sW, sT, sT, sT, sT, TS))
    for i in range(16): A("v_mov_b32 v%d, s%d" % (64+i, sTS+i))
    A("v_mov_b32 v63, 0\ns_mov_b64 exec, 1")
    for i in range(4):
        A("buffer_store_dwordx4 v[%d:%d], v63, s[%d:%d], s%d offen offset:%d" % (64+4*i, 67+4*i, sWS, sWS+3, sT, 16*i))

def main():
    prologue()
    if OPT["ts"]:
        for i in range(1, 16): A("s_mov_b32 s%d, 0" % (sTS+i))
    s1a_ids()
    A("s_cmp_ge_u32 s%d, 4\ns_cbranch_scc1 L_H" % sW)
    A("s_cmp_lg_u32 s%d, 0\ns_cbranch_scc1 L_c1" % sW)
    init_wave0()
    A.label("L_c1")
    A("s_cmp_lg_u32 s%d, 1\ns_cbranch_scc1 L_c2" % sW)
    init_wave1()
    A.label("L_c2")
    A("s_cmp_ge_u32 s%d, 30\ns_cbranch_scc1 L_cspare" % sIDX)
    s1a_compute()
    A("s_branch L_c3")
    A.label("L_cspare")
    spare_stats()
    A("s_barrier")
    A.label("L_c3")
    s1b_k()
    c_main()
    A("s_branch L_fin")
    A.label("L_H")
    A("s_cmp_ge_u32 s%d, 30\ns_cbranch_scc1 L_hspare" % sIDX)
    s1a_loader()
    A("s_branch L_h3")
    A.label("L_hspare")
    spare_stats()
    relayout_issue()
    A("s_barrier")
    A.label("L_h3")
    relayout_finish()
    s1b_q()
    loader_main()
    A.label("L_fin")
    ts_dump()
    A.label("L_end")
    A("s_endpgm")
    body, nn = finalize(A.lines)
    hdr = open("sequential_preLN__linear_kernel_hedgehog__mixer_s_mlp__prompt.s.ref").read().split("; Override launch")[0]
    out = hdr + "; @launch grid=(256,1,1) block=(512,1,1) lds=%d\n" % LDS_BYTES
    out += '.amdgcn_target "amdgcn-amd-amdhsa--gfx950"\n.text\n.globl %s\n.p2align 8\n.type %s,@function\n%s:\n' % (KN, KN, KN)
    out += "\n".join(("" if l.endswith(":") else "  ") + l for l in body) + "\n"
    out += '.section .rodata,"a"\n.p2align 6\n.amdhsa_kernel %s\n' % KN
    out += "  .amdhsa_next_free_vgpr 256\n  .amdhsa_next_free_sgpr 102\n  .amdhsa_accum_offset 256\n  .amdhsa_group_segment_fixed_size 0\n  .amdhsa_kernarg_size 96\n  .amdhsa_user_sgpr_count 2\n  .amdhsa_user_sgpr_kernarg_segment_ptr 1\n  .amdhsa_system_sgpr_workgroup_id_x 1\n.end_amdhsa_kernel\n"
    open(sys.argv[1], "w").write(out)
    print("written", sys.argv[1], "lines", len(body), "nops", nn)
main()
```

```python
import sys, struct
from asmlib import *

KN = "sequential_preLN__linear_kernel_hedgehog__mixer_s_mlp__prompt_kernel"
OPT = dict(ts=0, rot=1, forceslow=0)
for a in sys.argv[2:]:
    k, v = a.split("="); OPT[k] = int(v)
def f2u(f): return struct.unpack("<I", struct.pack("<f", f))[0]

OH = 0x000000
QKV = 0x300000
G_ = QKV; GST = 61440
WP = 0xC00000; WSL = 798720
CSP1 = 0x1300000; CSP3 = 0x1310000
KVP = 0x1400000
ST = 0xB00000
XS = 0xB20000
HALO = 0xB40000
ZR = 0xB90000
FKV = ZR; FO = ZR + 4096; FH = ZR + 8192; FHH = ZR + 12288; FX1 = ZR + 16384; FG = ZR + 20480
FQKV = ZR + 32768; FW = ZR + 36864
TS = 0x2500000
SB = {2: 0, 3: 102400, 4: 204800, 5: 307200, 6: 552960}
UB = {"wo": 0, "w1": 200, "w2": 400, "w3": 600, "w4": 1080}
RING = 143360; SEG = 20480
PK = 102400; VV = 122880
MZ = 143360
WPHI = MZ + 2048 - 160
CNT = MZ + 3040
KVT = MZ + 3072
CS0 = MZ + 5632
CS1 = MZ + 6144
CS3 = MZ + 6656
LDS_BYTES = 163840
sW, sXCD, sIDX, sFAST, sCNT = 3, 4, 5, 6, 7
sX, sWQ, sWS, sOUT, sDBG, sSRC = 8, 12, 16, 20, 24, 28
sT = 32
sPAR, sRB, sJ, sTT, sS0, sAOFF, sHOFF, sAB, sLW, sWL, sC0, sEDGE, sWB, sRT, sCT = range(48, 63)
pWPHI, pWO, pW1, pW2, pW3, pW4 = 68, 70, 74, 76, 78, 80
sK = 88
vL, vG, vTT, vONE = 1, 2, 3, 4

A = Asm()
STN = []
def stamp(name):
    if OPT["ts"]:
        if name not in STN: STN.append(name)
        assert len(STN) <= 64
        A("%s s[100:101]\ns_waitcnt lgkmcnt(0)\nv_writelane_b32 v253, s100, %d" % ("s_memtime" if OPT["ts"] == 2 else "s_memrealtime", STN.index(name)))
class Capture:
    def __enter__(self):
        self.save = A.lines; A.lines = []; return self
    def __exit__(self, *a):
        self.out = A.lines; A.lines = self.save
def R(b): return "s[%d:%d]" % (b, b + 3)
def V4(b): return "v[%d:%d]" % (b, b + 3)
def V2(b): return "v[%d:%d]" % (b, b + 1)
def srd(dst, p, nbytes):
    A("s_mov_b32 s%d, s%d\ns_and_b32 s%d, s%d, 0xffff\ns_mov_b32 s%d, 0x%x\ns_mov_b32 s%d, 0x20000" % (dst, p, dst+1, p+1, dst+2, nbytes, dst+3))
def mfma16(d, a, b, c=None):
    return "v_mfma_f32_16x16x32_bf16 %s, %s, %s, %s" % (V4(d), V4(a), V4(b), "0" if c == 0 else V4(d))

POLL_LIMIT = 40000
def spin(loads, cond, sleep=0, issued=False):
    L, D, E = A.newlabel("P"), A.newlabel("PD"), A.newlabel("PE")
    A("s_mov_b32 s%d, %d" % (sCNT, POLL_LIMIT))
    if issued: A("s_branch %s" % E)
    A.label(L)
    loads()
    A.label(E)
    A("s_waitcnt vmcnt(0)")
    cond()
    A("s_cbranch_vccz %s" % D)
    if sleep: A("s_sleep %d" % sleep)
    A("s_sub_u32 s%d, s%d, 1\ns_cbranch_scc0 %s" % (sCNT, sCNT, L))
    A.label(D)
def poll(vaddr, vtmp, soff, sleep=0):
    spin(lambda: A("buffer_load_dword v%d, v%d, %s, s%d offen sc1" % (vtmp, vaddr, R(sWS), soff)),
         lambda: A("v_cmp_eq_u32 vcc, 0, v%d" % vtmp), sleep)
def dual(fn, sreg=sFAST):
    S, E = A.newlabel("SL"), A.newlabel("SE")
    A("s_cmp_eq_u32 s%d, 0\ns_cbranch_scc1 %s" % (sreg, S))
    fn("")
    A("s_branch %s" % E)
    A.label(S)
    A("s_nop 1")
    fn(" sc1")
    A.label(E)
def setflag(vz, soff, p, wait=True):
    if wait: A("s_waitcnt vmcnt(0)")
    A("s_mov_b64 exec, 1")
    A("buffer_store_dword v%d, v%d, %s, s%d offen%s" % (vONE, vz, R(sWS), soff, p))
    A("s_mov_b64 exec, -1")
def dbg_issue(va, vt):
    A("v_lshlrev_b32 v%d, 2, v%d" % (va, vL))
    A("buffer_load_dword v%d, v%d, %s, 0 offen sc1" % (vt, va, R(sDBG)))
def dbg_check(va, vt, vt2):
    A("s_mov_b32 s98, 0x01010101")
    def cond():
        A("v_subrev_u32 v%d, s98, v%d\nv_not_b32 v%d, v%d" % (vt2, vt, va+1, vt))
        A("v_and_b32 v%d, v%d, v%d\nv_and_b32 v%d, 0x80808080, v%d" % (vt2, vt2, va+1, vt2, vt2))
        A("v_cmp_ne_u32 vcc, 0, v%d" % vt2)
    spin(lambda: A("buffer_load_dword v%d, v%d, %s, 0 offen sc1" % (vt, va, R(sDBG))), cond, sleep=2, issued=True)
    A("s_getreg_b32 s94, hwreg(HW_REG_XCC_ID, 0, 4)")
    A("s_add_u32 s94, s94, 1\ns_mul_i32 s94, s94, s98")
    A("v_cmp_ne_u32 vcc, s94, v%d" % vt)
    A("s_lshl_b32 s95, s%d, 3\ns_nop 1" % sXCD)
    A("s_lshr_b64 s[96:97], vcc, s95\ns_and_b32 s96, s96, 0xff")
    A("s_cmp_eq_u32 s96, 0\ns_cselect_b32 s%d, 1, 0" % sFAST)
    if OPT["forceslow"]: A("s_mov_b32 s%d, 0" % sFAST)
def lds_signal(k, va):
    A("v_mov_b32 v%d, 0x%x" % (va, CNT + 4*k))
    A("s_mov_b64 exec, 1\nds_add_u32 v%d, v%d\ns_mov_b64 exec, -1" % (va, vONE))
def lds_wait(k, n, va, vt, sreg=None):
    L, D = A.newlabel("W"), A.newlabel("WD")
    if sreg is None: A("v_mov_b32 v%d, 0x%x" % (va, CNT + 4*k))
    else: A("v_mov_b32 v%d, s%d" % (va, sreg))
    A("s_mov_b32 s%d, %d" % (sCNT, 4000000))
    A.label(L)
    A("ds_read_b32 v%d, v%d\ns_waitcnt lgkmcnt(0)" % (vt, va))
    A("v_cmp_gt_u32 vcc, %d, v%d\ns_cbranch_vccz %s" % (n, vt, D))
    A("s_sub_u32 s%d, s%d, 1\ns_cbranch_scc0 %s" % (sCNT, sCNT, L))
    A.label(D)
def lnstats(s1, s2, rs):
    A("v_mul_f32 v%d, 0x%x, v%d\nv_mul_f32 v%d, 0x%x, v%d" % (s1, f2u(1/640), s1, s2, f2u(1/640), s2))
    A("v_fma_f32 v%d, -v%d, v%d, v%d\nv_max_f32 v%d, 0, v%d" % (s2, s1, s1, s2, s2, s2))
    A("v_add_f32 v%d, 0x%x, v%d\nv_rsq_f32 v%d, v%d" % (rs, f2u(1e-5), s2, rs, rs))

def prologue():
    A("s_cmp_ge_u32 s2, 256\ns_cbranch_scc1 L_end")
    if OPT["ts"]: A("v_mov_b32 v253, 0")
    stamp("entry")
    A("s_load_dwordx16 s[64:79], s[0:1], 0\ns_load_dwordx8 s[80:87], s[0:1], 64")
    A("v_and_b32 v%d, 63, v0\nv_lshrrev_b32 v5, 6, v0" % vL)
    A("v_lshrrev_b32 v%d, 4, v%d\nv_and_b32 v%d, 15, v%d\nv_mov_b32 v%d, 1" % (vG, vL, vTT, vL, vONE))
    A("v_readfirstlane_b32 s%d, v5" % sW)
    A("s_and_b32 s%d, s2, 7\ns_lshr_b32 s%d, s2, 3" % (sXCD, sIDX))
    A("s_mov_b32 s%d, 0\ns_and_b32 s%d, s%d, 3\ns_and_b32 s%d, s%d, 1" % (sFAST, sWL, sW, sPAR, sIDX))
    A("s_lshr_b32 s%d, s%d, 2" % (sJ, sIDX))
    A("s_lshl_b32 s%d, s%d, 1\ns_add_u32 s%d, s%d, s%d\ns_lshr_b32 s%d, s%d, 1" % (sRT, sXCD, sRT, sRT, sPAR, sCT, sIDX))
    A("s_waitcnt lgkmcnt(0)")
    srd(sX, 64, 2621440); srd(sWQ, 66, 2457600)

def more_srds():
    srd(sWS, 86, 0x10000000); srd(sOUT, 82, 2621440); srd(sDBG, 84, 256)

def init_c():
    l1, l2, l3 = A.newlabel("I"), A.newlabel("I"), A.newlabel("I")
    A("s_cmp_lg_u32 s%d, 0\ns_cbranch_scc1 %s" % (sW, l1))
    A("s_lshl_b32 s%d, s%d, 8\ns_lshl_b32 s%d, s%d, 3\ns_add_u32 s%d, s%d, s%d" % (sT, sXCD, sT+1, sIDX, sT, sT, sT+1))
    A("v_lshrrev_b32 v6, 3, v%d\nv_add_u32 v7, s%d, v6\nv_mul_u32_u24 v8, 1280, v7" % (vL, sT))
    A("v_and_b32 v9, 7, v%d\nv_lshl_add_u32 v8, v9, 4, v8" % vL)
    D = 64
    for i in range(10):
        A("buffer_load_dwordx4 %s, v8, %s, 0 offen offset:%d" % (V4(D+4*i), R(sX), 128*i))
    more_srds()
    A("v_lshlrev_b32 v10, 2, v%d\nv_mov_b32 v11, 0" % vL)
    A("s_lshl_b32 s%d, s2, 8\ns_add_u32 s%d, s%d, 0x%x" % (sT+1, sT+1, sT+1, ZR))
    A("buffer_store_dword v11, v10, %s, s%d offen sc1" % (R(sWS), sT+1))
    for r in (24, 25, 26, 27): A("v_mov_b32 v%d, -1" % r)
    A("v_lshlrev_b32 v10, 4, v%d\ns_mul_i32 s%d, s2, 1280\ns_add_u32 s%d, s%d, 0x%x" % (vL, sT+1, sT+1, sT+1, HALO))
    A("buffer_store_dwordx4 v[24:27], v10, %s, s%d offen sc1" % (R(sWS), sT+1))
    A("s_mov_b64 exec, 0xffff\nbuffer_store_dwordx4 v[24:27], v10, %s, s%d offen offset:1024 sc1\ns_mov_b64 exec, -1" % (R(sWS), sT+1))
    A("s_mov_b32 s%d, 0xffff0000" % (sT+2))
    s1, s2 = 12, 14
    for r in (12, 13, 14, 15): A("v_mov_b32 v%d, 0" % r)
    for i in range(10):
        A("s_waitcnt vmcnt(%d)" % (12 - i))
        for q in range(4):
            r = D + 4*i + q; t = 20 + 2*(q & 1)
            A("v_lshlrev_b32 v%d, 16, v%d\nv_and_b32 v%d, s%d, v%d" % (t, r, t+1, sT+2, r))
            A("v_pk_add_f32 %s, %s, %s" % (V2(s1), V2(s1), V2(t)))
            A("v_pk_fma_f32 %s, %s, %s, %s" % (V2(s2), V2(t), V2(t), V2(s2)))
    A("v_add_f32 v12, v12, v13\nv_add_f32 v14, v14, v15")
    for m in ("quad_perm:[1,0,3,2]", "quad_perm:[2,3,0,1]", "row_half_mirror"):
        for r in (s1, s2): A("v_add_f32_dpp v%d, v%d, v%d %s row_mask:0xf bank_mask:0xf" % (r, r, r, m))
    lnstats(s1, s2, s1+1)
    A("v_mul_f32 v12, v12, v13\nv_lshlrev_b32 v7, 3, v7\ns_mov_b32 s%d, 0x%x" % (sT+1, XS))
    A("s_mov_b32 exec_lo, 0x01010101\ns_mov_b32 exec_hi, 0x01010101")
    A("buffer_store_dwordx2 v[12:13], v7, %s, s%d offen sc1" % (R(sWS), sT+1))
    A("s_mov_b64 exec, -1")
    A("s_getreg_b32 s94, hwreg(HW_REG_XCC_ID, 0, 4)\ns_add_u32 s94, s94, 1")
    A("s_lshl_b32 s95, s%d, 5\ns_add_u32 s95, s95, s%d" % (sXCD, sIDX))
    A("v_mov_b32 v8, s95\nv_mov_b32 v9, s94")
    A("s_waitcnt vmcnt(0)")
    A("s_mov_b64 exec, 1\nbuffer_store_byte v9, v8, %s, 0 offen sc1\ns_mov_b64 exec, -1" % R(sDBG))
    stamp("pub")
    A("s_branch %s" % l3)
    A.label(l1)
    more_srds()
    A("s_cmp_lg_u32 s%d, 1\ns_cbranch_scc1 %s" % (sW, l3))
    srd(sSRC, pWPHI, 25600)
    A("v_lshlrev_b32 v6, 4, v%d\nv_add_u32 v7, 0x%x, v6\ns_mul_i32 s%d, s%d, 800" % (vL, MZ, sT, sIDX))
    A("buffer_load_dwordx4 v[12:15], v6, %s, s%d offen" % (R(sSRC), sT))
    for r in (8, 9, 10, 11): A("v_mov_b32 v%d, 0" % r)
    for i in range(3): A("ds_write_b128 v7, v[8:11] offset:%d" % (1024*i))
    A("s_waitcnt vmcnt(0)")
    A("v_cmp_gt_u32 vcc, 50, v%d\ns_and_saveexec_b64 s[96:97], vcc" % vL)
    A("ds_write_b128 v7, v[12:15] offset:2048")
    A("s_mov_b64 exec, -1")
    A.label(l3)

def stouch(pbase, soff, nbytes, off0=0):
    A("s_add_u32 s90, s%d, s%d\ns_addc_u32 s91, s%d, 0" % (pbase, soff, pbase+1))
    for o in range(off0, off0 + nbytes, 64): A("s_load_dword s99, s[90:91], 0x%x" % o)

def s1a_loader():
    A("v_lshrrev_b32 v6, 3, v%d" % vL)
    A("s_lshl_b32 s%d, s%d, 7\ns_lshl_b32 s%d, s%d, 5\ns_add_u32 s%d, s%d, s%d" % (sT+1, sRT, sT+2, sWL, sT+1, sT+1, sT+2))
    A("v_add_u32 v6, s%d, v6\nv_mul_u32_u24 v6, 1280, v6" % (sT+1))
    A("v_and_b32 v7, 7, v%d\nv_xor_b32 v7, v7, v%d" % (vL, vG))
    for i in range(4):
        A("v_xor_b32 v16, %d, v7\nv_lshl_add_u32 v%d, v16, 4, v6" % ((i & 1) << 2, 8+i))
        if i: A("v_add_u32 v%d, %d, v%d" % (8+i, i*10240 - i*1024, 8+i))
    A("s_lshl_b32 s%d, s%d, 4" % (sT+1, sWL))
    A("v_add_u32 v6, s%d, v%d\nv_mul_u32_u24 v6, 3840, v6" % (sT+1, vG))
    A("v_lshlrev_b32 v7, 2, v%d\nv_xor_b32 v7, v7, v%d\nv_lshlrev_b32 v7, 4, v7" % (vG, vTT))
    A("s_lshl_b32 s%d, s%d, 8" % (sT+1, sCT))
    A("v_add3_u32 v12, v6, v7, s%d" % (sT+1))
    for i in range(1, 4): A("v_add_u32 v%d, %d, v12" % (12+i, i*4*3840 - i*1024))
    C = sT+4
    if OPT["rot"]:
        A("s_mul_i32 s%d, s%d, 5\ns_add_u32 s%d, s%d, s%d" % (C, sPAR, C, C, sCT))
        A("s_cmp_ge_u32 s%d, 10\ns_cselect_b32 s%d, 10, 0\ns_sub_u32 s%d, s%d, s%d" % (C, sT+6, C, C, sT+6))
    else:
        A("s_mov_b32 s%d, 0" % C)
    A("s_lshl_b32 s%d, s%d, 12" % (sT+5, sWL))
    def issue(i):
        slot = (i % 4) * 32768
        A("s_lshl_b32 s%d, s%d, 7\ns_mul_i32 s%d, s%d, %d" % (sT+6, C, sT+7, C, 64*3840))
        A("s_add_u32 m0, s%d, %d" % (sT+5, slot))
        for q in range(4): A("buffer_load_dwordx4 v%d, %s, s%d offen offset:%d lds" % (8+q, R(sX), sT+6, q*1024))
        A("s_add_u32 m0, s%d, %d" % (sT+5, slot + 16384))
        for q in range(4): A("buffer_load_dwordx4 v%d, %s, s%d offen offset:%d lds" % (12+q, R(sWQ), sT+7, q*1024))
        A("s_add_u32 s%d, s%d, 1\ns_cmp_eq_u32 s%d, 10\ns_cselect_b32 s%d, 0, s%d" % (C, C, C, C, C))
    NI = OPT.get("ni", 2)
    for i in range(NI): issue(i)
    more_srds()
    stamp("H_iss")
    A("s_lshr_b32 s%d, s%d, 1\ns_lshl_b32 s%d, s%d, 1\ns_add_u32 s%d, s%d, s%d\ns_mul_i32 s%d, s%d, %d" % (sT+8, sWL, sT+9, sRT, sT+8, sT+8, sT+9, sT+8, sT+8, 4*61440))
    A("s_lshl_b32 s%d, s%d, 12\ns_add_u32 s%d, s%d, s%d\ns_and_b32 s%d, s%d, 1\ns_lshl_b32 s%d, s%d, 11" % (sT+9, sCT, sT+8, sT+8, sT+9, sT+9, sWL, sT+9, sT+9))
    A("s_add_u32 s%d, s%d, s%d\ns_add_u32 s%d, s%d, 0x%x" % (sT+8, sT+8, sT+9, sT+8, sT+8, QKV))
    issued = NI
    for i in range(10):
        A("s_waitcnt vmcnt(%d)" % ((issued - i - 1) * 8 + (1 if i == 9 else 0)))
        if i in (0, 1, 3, 6, 9): stamp("H_c%d" % i)
        A("s_barrier")
        tgt = min(10, i + 4, issued + OPT.get("nstep", 2))
        while issued < tgt:
            issue(issued); issued += 1
        if OPT.get("spt", 1) and i < 8:
            stouch(86, sT+8, 1024, off0=(i >> 1)*61440 + (i & 1)*1024)
        if i == 8: dbg_issue(36, 34)
    A("s_barrier")

U, CU, KS, RS, MT = sT+8, sT+9, sT+10, sT+11, sT+12
def rl_decode(mats):
    T1, T2 = sT+13, sT+1
    P = {"wo": pWO, "w1": pW1, "w2": pW2, "w3": pW3, "w4": pW4}; ID = {"wo": 0, "w1": 1, "w2": 2, "w3": 3, "w4": 4}
    m0 = mats[0]
    A("s_mov_b32 s%d, %d\ns_mov_b32 s%d, %d" % (MT, ID[m0], T2, UB[m0]))
    A("s_mov_b32 s%d, s%d\ns_mov_b32 s%d, s%d" % (sSRC, P[m0], sSRC+1, P[m0]+1))
    for nm in mats[1:]:
        A("s_cmp_ge_u32 s%d, %d" % (U, UB[nm]))
        A("s_cmov_b32 s%d, %d\ns_cmov_b32 s%d, %d\ns_cmov_b32 s%d, s%d\ns_cmov_b32 s%d, s%d" % (MT, ID[nm], T2, UB[nm], sSRC, P[nm], sSRC+1, P[nm]+1))
    A("s_sub_u32 s%d, s%d, s%d\ns_and_b32 s%d, s%d, 0xffff" % (T1, U, T2, sSRC+1, sSRC+1))
    A("s_mov_b32 s%d, %d\ns_mov_b32 s%d, 0x20000" % (sSRC+2, 819200 if m0 == "wo" else 1966080, sSRC+3))
    A("s_cmp_eq_u32 s%d, 3\ns_cselect_b32 s%d, 3072, 1280" % (MT, RS))
    A("s_cmp_eq_u32 s%d, 4\ns_cselect_b32 s%d, %d, %d" % (MT, T2, (1<<20)//48 + 1, (1<<20)//20 + 1))
    A("s_mul_i32 s%d, s%d, s%d\ns_lshr_b32 s%d, s%d, 20" % (CU, T1, T2, CU, CU))
    A("s_cmp_eq_u32 s%d, 4\ns_cselect_b32 s%d, 48, 20" % (MT, T2))
    A("s_mul_i32 s%d, s%d, s%d\ns_sub_u32 s%d, s%d, s%d" % (T2, CU, T2, KS, T1, T2))
def rl_issue(sst):
    A("v_lshrrev_b32 v20, 3, v%d\nv_mul_lo_u32 v20, v20, s%d" % (vL, RS))
    A("v_and_b32 v21, 7, v%d\nv_lshl_add_u32 v20, v21, 4, v20" % vL)
    A("s_mul_i32 s%d, s%d, s%d\ns_lshl_b32 s%d, s%d, 5" % (sT+13, KS, RS, sT+13, sT+13))
    A("s_lshl_b32 s%d, s%d, 7\ns_add_u32 s%d, s%d, s%d\ns_lshl_b32 s%d, s%d, 3" % (sT+1, CU, sT+13, sT+13, sT+1, sT+2, RS))
    for q in range(4):
        A("s_add_u32 m0, s%d, %d" % (sst, q*1024))
        A("buffer_load_dwordx4 v20, %s, s%d offen lds" % (R(sSRC), sT+13))
        if q < 3: A("s_add_u32 s%d, s%d, s%d" % (sT+13, sT+13, sT+2))
def rl_consts():
    for i in range(4): A("v_mov_b32 v%d, 0x3f803f80" % (24+i))
    A("v_lshlrev_b32 v28, 4, v%d\nv_lshlrev_b32 v29, 4, v%d" % (vL, vG))
    A("v_bfe_u32 v30, v%d, 2, 2\nv_lshl_add_u32 v30, v%d, 3, v30\nv_lshlrev_b32 v30, 7, v30" % (vL, vG))
    A("v_and_b32 v31, 3, v%d\nv_lshl_add_u32 v30, v31, 3, v30" % vL)
def rl_finish(sst, batch):
    A("v_add_u32 v31, s%d, v30" % sst)
    for i in range(4):
        for hh in range(2): A("ds_read_b64_tr_b16 %s, v31 offset:%d" % (V2(36+4*i+2*hh), 32*i + 512*hh))
    D, CA, T1, T2, BASE, CB = sT+2, sT+3, sT+13, sT+1, sT+4, sT+5
    w3, dn = A.newlabel("W3"), A.newlabel("DN")
    dst = [sT+14, sT+15, 92, 93]; cdst = [sT+6, sT+7, 88, 89]
    if batch == 2:
        A("s_cmp_eq_u32 s%d, 3\ns_cbranch_scc1 %s" % (MT, w3))
        A("s_mul_i32 s%d, s%d, 43\ns_lshr_b32 s%d, s%d, 8\ns_mul_i32 s%d, s%d, 6\ns_sub_u32 s%d, s%d, s%d" % (T1, KS, T1, T1, T2, T1, T2, KS, T2))
        A("s_lshl_b32 s%d, s%d, 1\ns_and_b32 s%d, s%d, 1\ns_add_u32 s%d, s%d, s%d\ns_lshr_b32 s%d, s%d, 1\ns_lshl_b32 s%d, s%d, 4\ns_add_u32 s%d, s%d, s%d" % (T1, T1, BASE, T2, T1, T1, BASE, T2, T2, T2, T2, T1, T1, T2))
        A("s_mul_i32 s%d, s%d, 5120\ns_add_u32 s%d, s%d, 0x%x" % (BASE, T1, BASE, BASE, WP + SB[6]))
    else:
        A("s_mul_i32 s%d, s%d, 5120\ns_mul_i32 s%d, s%d, 102400\ns_add_u32 s%d, s%d, s%d\ns_add_u32 s%d, s%d, 0x%x" % (BASE, KS, T1, MT, BASE, BASE, T1, BASE, BASE, WP))
        A("s_mul_i32 s%d, s%d, 2560\ns_add_u32 s%d, s%d, 0x%x" % (CB, KS, CB, CB, CSP1))
    for i in range(4):
        A("s_lshl_b32 s%d, s%d, 2\ns_add_u32 s%d, s%d, %d" % (D, CU, D, D, i))
        A("s_mul_i32 s%d, s%d, 52\ns_lshr_b32 s%d, s%d, 8\ns_mul_i32 s%d, s%d, 5\ns_sub_u32 s%d, s%d, s%d" % (T1, D, T1, T1, T2, T1, T2, D, T2))
        A("s_and_b32 s%d, s%d, 1\ns_sub_u32 s%d, s%d, s%d\ns_cmp_lt_i32 s%d, 0\ns_cselect_b32 s%d, 4, s%d" % (D, T1, T2, T2, D, T2, T2, T2))
        A("s_mul_i32 s%d, s%d, %d\ns_lshl_b32 s%d, s%d, 10\ns_add_u32 s%d, s%d, s%d\ns_add_u32 s%d, s%d, s%d" % (D, T1, WSL, CA, T2, D, D, CA, dst[i], D, BASE))
        if batch == 1:
            A("s_mul_i32 s%d, s%d, 320\ns_lshl_b32 s%d, s%d, 6\ns_add_u32 s%d, s%d, s%d\ns_add_u32 s%d, s%d, s%d" % (D, T1, CA, T2, D, D, CA, cdst[i], D, CB))
    if batch == 2:
        A("s_branch %s" % dn)
        A.label(w3)
        A("s_mul_i32 s%d, s%d, 43\ns_lshr_b32 s%d, s%d, 7\ns_mul_i32 s%d, s%d, 3\ns_sub_u32 s%d, s%d, s%d" % (T1, CU, T1, T1, T2, T1, T2, CU, T2))
        A("s_mul_i32 s%d, s%d, %d\ns_mul_i32 s%d, s%d, 81920\ns_add_u32 s%d, s%d, s%d" % (D, T1, WSL, T2, T2, D, D, T2))
        A("s_lshl_b32 s%d, s%d, 11\ns_add_u32 s%d, s%d, s%d\ns_add_u32 s%d, s%d, 0x%x" % (T2, KS, D, D, T2, dst[0], D, WP + SB[5]))
        A("s_add_u32 s%d, s%d, 1024\ns_add_u32 s%d, s%d, 40960\ns_add_u32 s%d, s%d, 41984" % (dst[1], dst[0], dst[2], dst[0], dst[3], dst[0]))
        A("s_mul_i32 s%d, s%d, 6144\ns_lshl_b32 s%d, s%d, 8\ns_add_u32 s%d, s%d, s%d\ns_add_u32 s%d, s%d, 0x%x" % (D, KS, T2, CU, D, D, T2, cdst[0], D, CSP3))
        for i in range(1, 4): A("s_add_u32 s%d, s%d, %d" % (cdst[i], cdst[0], 64*i))
        A.label(dn)
    A("s_waitcnt lgkmcnt(0)")
    for i in range(4): A("buffer_store_dwordx4 %s, v28, %s, s%d offen sc1" % (V4(36+4*i), R(sWS), dst[i]))
    nc = A.newlabel("NC")
    A("s_bitcmp1_b32 s%d, 0\ns_cbranch_scc0 %s" % (MT, nc))
    for i in range(4): A(mfma16(52+4*i, 36+4*i, 24, 0))
    A("s_mov_b32 exec_lo, 0x00010001\ns_mov_b32 exec_hi, 0x00010001")
    for i in range(4): A("buffer_store_dwordx4 %s, v29, %s, s%d offen sc1" % (V4(52+4*i), R(sWS), cdst[i]))
    A("s_mov_b64 exec, -1")
    A.label(nc)
    A("s_nop 1")

def spare_main():
    SW, STG = 63, 62
    A("s_lshl_b32 s%d, s%d, 4\ns_lshl_b32 s%d, s%d, 3\ns_add_u32 s%d, s%d, s%d\ns_add_u32 s%d, s%d, s%d" % (SW, sXCD, sT, sPAR, SW, SW, sT, SW, SW, sW))
    rl_consts()
    mats = ["wo", "w1", "w2"]
    def unit(i): A("s_add_u32 s%d, s%d, %d\ns_min_u32 s%d, s%d, 599" % (U, SW, 128*i, U, U))
    def stg(k): A("s_lshl_b32 s%d, s%d, 14\ns_add_u32 s%d, s%d, %d" % (STG, sW, STG, STG, 4096*k))
    for i in range(4):
        unit(i); rl_decode(mats); stg(i); rl_issue(STG)
    for i in range(5):
        unit(i); rl_decode(mats); stg(i % 4)
        if i == 0: A("s_waitcnt vmcnt(12)")
        else: A("s_waitcnt vmcnt(0)" if i in (1, 4) else "s_nop 0")
        rl_finish(STG, 1)
        if i == 1:
            unit(4); rl_decode(mats); stg(0); rl_issue(STG)
    dbg_issue(32, 34)
    dbg_check(32, 34, 35)
    A("v_lshlrev_b32 v20, 7, v%d\nv_add_u32 v20, s%d, v20\nv_min_u32 v20, 599, v20\nv_lshlrev_b32 v20, 2, v20\ns_mov_b32 s94, 0x%x" % (vL, SW, FW))
    A("s_mov_b64 exec, 31\nbuffer_store_dword v%d, v20, %s, s94 offen sc1\ns_mov_b64 exec, -1" % (vONE, R(sWS)))

def rl_batch2():
    sk = A.newlabel("RB")
    A("s_lshl_b32 s%d, s2, 2\ns_add_u32 s%d, s%d, s%d\ns_add_u32 s%d, s%d, 600" % (U, U, U, sW, U, U))
    A("s_cmp_ge_u32 s%d, 1560\ns_cbranch_scc1 %s" % (U, sk))
    rl_decode(["w3", "w4"])
    A("s_lshl_b32 s62, s%d, 12\ns_add_u32 s62, s62, %d" % (sW, PK))
    rl_issue(62)
    rl_consts()
    A("s_waitcnt vmcnt(0)")
    rl_finish(62, 2)
    A.label(sk)
def rl_batch2_flag():
    sk = A.newlabel("RB")
    A("s_lshl_b32 s94, s2, 2\ns_add_u32 s94, s94, s%d\ns_cmp_ge_u32 s94, 960\ns_cbranch_scc1 %s" % (sW, sk))
    A("s_lshl_b32 s94, s94, 2\ns_add_u32 s94, s94, 0x%x" % (FW + 2400))
    setflag(vZ, 94, " sc1", wait=False)
    A.label(sk)

def s1a_compute():
    ACC, CSA, SEL = 64, 128, 132
    XA, WA = 8, 16
    FB = 136
    A("s_lshr_b32 s%d, s%d, 1\ns_and_b32 s%d, s%d, 1" % (sT, sW, sT+1, sW))
    A("v_and_b32 v20, 31, v%d\nv_lshrrev_b32 v21, 5, v%d" % (vL, vL))
    A("s_lshl_b32 s%d, s%d, 13" % (sT+2, sT))
    A("v_lshlrev_b32 v22, 7, v20\nv_add_u32 v22, s%d, v22" % (sT+2))
    A("v_bfe_u32 v23, v20, 1, 3\nv_xor_b32 v23, v23, v21")
    for k in range(4):
        A("v_xor_b32 v24, %d, v23\nv_lshl_add_u32 v%d, v24, 4, v22\nv_add_u32 v%d, 0x10000, v%d" % (2*k, XA+2*k, XA+2*k+1, XA+2*k))
    A("v_bfe_u32 v24, v%d, 2, 2" % vL)
    A("v_lshl_add_u32 v25, v21, 3, v24\nv_lshlrev_b32 v25, 8, v25")
    A("v_and_b32 v26, 1, v%d\nv_lshlrev_b32 v26, 5, v26" % vG)
    A("v_and_b32 v27, 1, v%d\nv_lshl_add_u32 v26, v27, 4, v26" % vL)
    A("v_bfe_u32 v27, v%d, 1, 1\nv_lshl_add_u32 v26, v27, 3, v26" % vL)
    A("v_add_u32 v25, v25, v26\nv_add_u32 v25, 0x4000, v25")
    A("s_lshl_b32 s%d, s%d, 1\ns_add_u32 s%d, s%d, s%d" % (sT+2, sT+1, sT+2, sT+2, sT))
    for nt in range(2):
        A("s_xor_b32 s%d, s%d, %d" % (sT+3, sT+2, nt))
        A("v_xor_b32 v27, s%d, v24\nv_lshl_add_u32 v%d, v27, 6, v25\nv_add_u32 v%d, 0x10000, v%d" % (sT+3, WA+2*nt, WA+2*nt+1, WA+2*nt))
    A("v_and_b32 v27, 1, v%d\nv_cmp_eq_u32 vcc, v27, v%d\nv_mov_b32 v28, 0x3f803f80" % (vG, vTT))
    for i in range(4): A("v_cndmask_b32 v%d, 0, v28, vcc" % (SEL+i))
    for i in range(68): A("v_mov_b32 v%d, 0" % (ACC+i))
    def reads(n):
        ci, k = divmod(n, 4)
        slot = (ci % 4) * 32768; hi = slot >> 16; so = slot & 0xffff
        b = FB + 16*(n % 3)
        for mt in range(2): A("ds_read_b128 %s, v%d offset:%d" % (V4(b+4*mt), XA+2*k+hi, so + mt*4096))
        for nt in range(2):
            for hh in range(2):
                A("ds_read_b64_tr_b16 %s, v%d offset:%d" % (V2(b+8+4*nt+2*hh), WA+2*nt+hi, so + (16*k + 4*hh)*256))
    def step(n):
        b = FB + 16*(n % 3)
        for nt in range(2):
            for mt in range(2):
                a = ACC + 32*nt + 16*mt
                A("v_mfma_f32_32x32x16_bf16 v[%d:%d], %s, %s, v[%d:%d]" % (a, a+15, V4(b+8+4*nt), V4(b+4*mt), a, a+15))
        A(mfma16(CSA, b+8, SEL))
    A("s_waitcnt lgkmcnt(0)")
    stamp("s1_rdy")
    A("s_barrier")
    stamp("s1_b0")
    reads(0); reads(1)
    for n in range(40):
        ci, k = divmod(n, 4)
        if n + 2 < 40:
            if k == 2:
                A("s_waitcnt lgkmcnt(0)\ns_barrier"); reads(n+2)
            elif k == 3:
                reads(n+2)
            else:
                A("s_waitcnt lgkmcnt(6)"); reads(n+2)
        else:
            A("s_waitcnt lgkmcnt(%d)" % (6 if n == 38 else 0))
        step(n)
        if n == 16: dbg_issue(30, 32)
        if n == 30:
            dbg_check(30, 32, 33)
            A("s_lshl_b32 s%d, s%d, 7\ns_lshl_b32 s%d, s%d, 6\ns_add_u32 s%d, s%d, s%d" % (sT+2, sRT, sT+3, sT, sT+2, sT+2, sT+3))
            A("s_lshl_b32 s%d, s%d, 3\ns_add_u32 s%d, s%d, 0x%x" % (sT+3, sT+2, sT+3, sT+3, XS))
            A("v_lshlrev_b32 v30, 3, v20")
            A("buffer_load_dwordx2 v[32:33], v30, %s, s%d offen sc1" % (R(sWS), sT+3))
            A("buffer_load_dwordx2 v[34:35], v30, %s, s%d offen offset:256 sc1" % (R(sWS), sT+3))
            A("s_lshl_b32 s%d, s%d, 8\ns_add_u32 s%d, s%d, %d\ns_lshl_b32 s%d, s%d, 7" % (sT+4, sT+1, sT+4, sT+4, CS0, sT+5, sT))
            A("s_add_u32 s%d, s%d, s%d" % (sT+6, sT+4, sT+5))
            A("v_lshlrev_b32 v31, 6, v%d\nv_lshl_add_u32 v31, v%d, 4, v31\nv_add_u32 v31, s%d, v31" % (vTT, vG, sT+6))
            A("v_lshlrev_b32 v37, 4, v21\nv_add_u32 v38, s%d, v37" % (sT+6))
            A("s_xor_b32 s%d, s%d, 128\ns_add_u32 s%d, s%d, s%d" % (sT+5, sT+5, sT+6, sT+4, sT+5))
            A("v_add_u32 v39, s%d, v37" % (sT+6))
            A("v_lshrrev_b32 v40, 4, v20\nv_mul_u32_u24 v40, 61440, v40\nv_lshl_add_u32 v40, v21, 8, v40\nv_lshl_add_u32 v40, v%d, 4, v40" % vTT)
            A("s_lshr_b32 s%d, s%d, 4\ns_mul_i32 s%d, s%d, 61440\ns_add_u32 s%d, s%d, 0x%x" % (sT+2, sT+2, sT+2, sT+2, sT+2, sT+2, QKV))
            A("s_lshl_b32 s%d, s%d, 12\ns_lshl_b32 s%d, s%d, 11\ns_add_u32 s%d, s%d, s%d\ns_add_u32 s%d, s%d, s%d" % (sT+3, sCT, sT+4, sT+1, sT+2, sT+2, sT+3, sT+2, sT+2, sT+4))
            A("s_lshl_b32 s%d, s%d, 10\ns_add_u32 s%d, s%d, s%d" % (sT+3, sT, sT+4, sT+2, sT+3))
            A("s_xor_b32 s%d, s%d, 1024\ns_add_u32 s%d, s%d, s%d" % (sT+3, sT+3, sT+6, sT+2, sT+3))
            A("s_add_u32 s%d, s%d, %d\ns_add_u32 s%d, s%d, %d" % (sT+5, sT+4, 2*61440, sT+7, sT+6, 2*61440))
            A("s_lshl_b32 s%d, s%d, 1\ns_add_u32 s%d, s%d, s%d\ns_lshl_b32 s%d, s%d, 5" % (sT+8, sRT, sT+8, sT+8, sT, sT+8, sT+8))
            A("s_lshl_b32 s%d, s%d, 1\ns_add_u32 s%d, s%d, s%d\ns_add_u32 s%d, s%d, s%d\ns_lshl_b32 s%d, s%d, 2\ns_add_u32 s%d, s%d, 0x%x" % (sT+9, sCT, sT+8, sT+8, sT+9, sT+8, sT+8, sT+1, sT+8, sT+8, sT+8, sT+8, FQKV))
            A("v_mov_b32 v41, 0")
    stamp("s1_mm")
    A("s_mov_b32 exec_lo, 0x00030003\ns_mov_b32 exec_hi, 0x00030003")
    A("ds_write_b128 v31, %s" % V4(CSA))
    A("s_mov_b64 exec, -1")
    A("s_waitcnt vmcnt(0) lgkmcnt(0)\ns_barrier")
    CSR = 136
    for nt in range(2):
        for q in range(4): A("ds_read_b128 %s, v%d offset:%d" % (V4(CSR+16*nt+4*q), 38+nt, 32*q))
    for nt in range(2):
        for mt in range(2):
            a = ACC + 32*nt + 16*mt; st = 32 + 2*mt
            for i in range(0, 16, 2):
                A("v_pk_mul_f32 %s, %s, %s op_sel:[0,1] op_sel_hi:[1,1]" % (V2(a+i), V2(a+i), V2(st)))
    A("s_waitcnt lgkmcnt(0)")
    OUTR = 184
    def st(p):
        for nt in range(2):
            for mt in range(2):
                a = ACC + 32*nt + 16*mt; st = 32 + 2*mt
                for i in range(0, 16, 2):
                    A("v_pk_fma_f32 %s, %s, %s, %s op_sel_hi:[1,0,1] neg_lo:[0,1,0] neg_hi:[0,1,0]" % (V2(a+i), V2(CSR+16*nt+i), V2(st), V2(a+i)))
                o = OUTR + 8*(2*nt+mt)
                for i in range(8): A("v_cvt_pk_bf16_f32 v%d, v%d, v%d" % (o+i, a+2*i, a+2*i+1))
                for qq in range(2):
                    A("buffer_store_dwordx4 %s, v40, %s, s%d offen offset:%d%s" % (V4(o+4*qq), R(sWS), sT+4+2*nt+mt, 512*qq, p))
        setflag(41, sT+8, p)
    dual(st)

LOG2E = 1.4426950408889634
AFW, BQ, BV, P, E, PH = 64, 124, 136, 148, 168, 208
def phi_softmax(isq, mid=None):
    A("s_lshr_b32 s%d, s%d, 1\ns_mul_i32 s%d, s%d, 5\ns_lshl_b32 s%d, s%d, 1\ns_add_u32 s%d, s%d, s%d" % (sC0, sIDX, sC0, sC0, sT, sPAR, sC0, sC0, sT))
    A("v_bfe_u32 v6, v%d, 2, 2\nv_and_b32 v7, 3, v%d" % (vL, vL))
    A("s_mul_i32 s%d, s%d, 160\ns_sub_u32 s%d, %d, s%d" % (sT, sPAR, sT, WPHI + 160, sT))
    A("v_mul_u32_u24 v8, 40, v6\nv_add_u32 v8, s%d, v8\nv_mov_b32 v9, 0x%x" % (sT, MZ))
    A("v_cmp_eq_u32 vcc, v7, v%d\nv_cndmask_b32 v8, v9, v8, vcc" % vG)
    for u in range(3):
        if u: A("s_waitcnt lgkmcnt(0)")
        for tp in range(5):
            for hh in range(2):
                A("ds_read_b64_tr_b16 %s, v8 offset:%d" % (V2(AFW + 4*(5*u + tp) + 2*hh), (8*u+4*hh)*40 + 8*tp))
    A("s_lshl_b32 s%d, s%d, 2\ns_add_u32 s%d, s%d, s%d" % (sRB, sXCD, sRB, sRB, sWL))
    A("v_and_b32 v10, 1, v%d\nv_lshlrev_b32 v10, 1, v10" % vL)
    if not isq:
        A("v_bfe_u32 v11, v%d, 1, 1\nv_mul_u32_u24 v11, 80, v11\nv_add3_u32 v10, v10, v11, s%d\nv_add_u32 v10, 80, v10" % (vL, sC0))
    else:
        A("v_add_u32 v10, s%d, v10" % sC0)
    A("v_lshrrev_b32 v10, 3, v10\nv_lshlrev_b32 v10, 2, v10")
    A("s_lshl_b32 s%d, s%d, 7\ns_add_u32 s%d, s%d, 0x%x" % (sT, sRB, sT, sT, FQKV))
    A("v_mul_u32_u24 v12, 61440, v%d\nv_lshl_add_u32 v12, v%d, 4, v12" % (vG, vTT))
    A("s_mul_i32 s%d, s%d, %d\ns_lshl_b32 s%d, s%d, 8\ns_add_u32 s%d, s%d, s%d" % (sT+1, sRB, 4*61440, sT+2, sC0, sT+1, sT+1, sT+2))
    A("s_add_u32 s%d, s%d, %d\ns_add_u32 s%d, s%d, %d" % (sT+2, sT+1, QKV + 160*256, sT+1, sT+1, QKV + (0 if isq else 80*256)))
    if not isq:
        A("s_lshl_b32 s%d, s%d, 6" % (sT+3, sWL))
        A("v_add_u32 v13, s%d, v%d\nv_mul_u32_u24 v14, 48, v13\nv_add_u32 v14, 0x%x, v14" % (sT+3, vL, VV))
        A("v_mul_u32_u24 v13, 80, v13\nv_add_u32 v13, 0x%x, v13" % PK)
    poll(10, 11, sT, sleep=(1 if isq else 0))
    stamp("s1b_fl")
    for u in range(3): A("buffer_load_dwordx4 %s, v12, %s, s%d offen offset:%d sc1" % (V4(BQ+4*u), R(sWS), sT+1, 256*u))
    if not isq:
        for u in range(3): A("buffer_load_dwordx4 %s, v12, %s, s%d offen offset:%d sc1" % (V4(BV+4*u), R(sWS), sT+2, 256*u))
        lds_signal(0, 15)
    A("s_waitcnt lgkmcnt(0)")
    for u in range(3):
        A("s_waitcnt vmcnt(%d)" % ((0 if isq else 3) + 2 - u))
        for tp in range(5): A(mfma16(P+4*tp, AFW + 4*(5*u + tp), BQ+4*u, 0 if u == 0 else None))
    if not isq:
        A("s_waitcnt vmcnt(0)")
        od, dn = A.newlabel("OD"), A.newlabel("DN")
        A("s_cmp_eq_u32 s%d, 1\ns_cbranch_scc1 %s" % (sPAR, od))
        A("v_mov_b32 v%d, 0x3f80\nv_mov_b32 v%d, 0\ns_branch %s" % (BV+10, BV+11, dn))
        A.label(od)
        A("v_mov_b32 v%d, 0x3f80\nv_mov_b32 v%d, 0" % (BV, BV+1))
        A.label(dn)
        for u in range(3): A("ds_write_b128 v14, %s offset:%d" % (V4(BV+4*u), 16*u))
    if mid: mid()
    M, N = 16, 18
    A("s_mov_b32 s%d, 0x%x\ns_mov_b32 s%d, 0x%x" % (sT+2, f2u(LOG2E), sT+3, f2u(LOG2E)))
    A("v_max3_f32 v%d, v%d, v%d, v%d\nv_min3_f32 v%d, v%d, v%d, v%d" % (M, P, P+1, P+2, N, P, P+1, P+2))
    for i in range(3, 19, 2):
        A("v_max3_f32 v%d, v%d, v%d, v%d\nv_min3_f32 v%d, v%d, v%d, v%d" % (M, M, P+i, P+i+1, N, N, P+i, P+i+1))
    A("v_max_f32 v%d, v%d, v%d\nv_min_f32 v%d, v%d, v%d" % (M, M, P+19, N, N, P+19))
    A("v_mul_f32 v%d, s%d, v%d\nv_mul_f32 v%d, s%d, v%d" % (M, sT+2, M, N, sT+2, N))
    for i in range(0, 20, 2):
        A("v_pk_fma_f32 %s, %s, s[%d:%d], %s op_sel_hi:[1,1,0] neg_lo:[0,0,1] neg_hi:[0,0,1]" % (V2(E+i), V2(P+i), sT+2, sT+3, V2(M)))
        A("v_pk_fma_f32 %s, %s, s[%d:%d], %s op_sel_hi:[1,1,0] neg_lo:[1,0,0] neg_hi:[1,0,0]" % (V2(E+20+i), V2(P+i), sT+2, sT+3, V2(N)))
    for i in range(40): A("v_exp_f32 v%d, v%d" % (E+i, E+i))
    for hlf, S in ((0, M), (20, N)): A("v_pk_add_f32 %s, %s, %s" % (V2(S), V2(E+hlf), V2(E+hlf+2)))
    for i in range(4, 20, 2):
        for hlf, S in ((0, M), (20, N)): A("v_pk_add_f32 %s, %s, %s" % (V2(S), V2(S), V2(E+hlf+i)))
    A("v_add_f32 v%d, v%d, v%d\nv_add_f32 v%d, v%d, v%d" % (M, M, M+1, N, N, N+1))
    A("v_rcp_f32 v%d, v%d\nv_rcp_f32 v%d, v%d" % (M, M, N, N))
    for i in range(0, 40, 2):
        A("v_pk_mul_f32 %s, %s, %s op_sel_hi:[1,0]" % (V2(E+i), V2(E+i), V2(M if i < 20 else N)))
    for i in range(20): A("v_cvt_pk_bf16_f32 v%d, v%d, v%d" % (PH+i, E+2*i, E+2*i+1))

def s1b_k():
    A("s_setprio 1")
    phi_softmax(False)
    stamp("phi_k")
    for i in range(5): A("ds_write_b128 v13, %s offset:%d" % (V4(PH+4*i), 16*i))
    A("s_waitcnt lgkmcnt(0)")
    lds_signal(1, 15)
    skip = A.newlabel("KVS")
    A("s_cmp_eq_u32 s%d, 3\ns_cbranch_scc1 %s" % (sW, skip))
    A("v_lshl_add_u32 v8, v%d, 3, v6" % vG)
    A("s_lshl_b32 s%d, s%d, 5\ns_add_u32 s%d, s%d, %d" % (sT, sW, sT, sT, PK))
    A("v_mul_u32_u24 v9, 80, v8\nv_lshl_add_u32 v9, v7, 3, v9\nv_add_u32 v9, s%d, v9" % sT)
    A("s_lshl_b32 s%d, s%d, 3\ns_add_u32 s%d, s%d, %d" % (sT, sPAR, sT, sT, VV))
    A("v_mul_u32_u24 v10, 48, v8\nv_add_u32 v10, s%d, v10\nv_lshl_add_u32 v20, v7, 3, v10" % sT)
    A("s_mul_i32 s%d, s%d, 48\ns_sub_u32 s%d, 40, s%d" % (sT+1, sPAR, sT+1, sT+1))
    A("v_mov_b32 v12, s%d\nv_mov_b32 v21, 32\nv_cmp_eq_u32 vcc, 0, v7\nv_cndmask_b32 v12, v12, v21, vcc\nv_add_u32 v21, v12, v10" % (sT+1))
    F = 64; D0, D1 = 160, 164
    lds_wait(1, 4, 15, 16)
    stamp("s1b_B1")
    for s in range(8):
        r = F + 12*s
        for hh in range(2): A("ds_read_b64_tr_b16 %s, v9 offset:%d" % (V2(r+2*hh), (32*s+4*hh)*80))
        for k in range(2):
            for hh in range(2): A("ds_read_b64_tr_b16 %s, v%d offset:%d" % (V2(r+4+4*k+2*hh), 20+k, (32*s+4*hh)*48))
        if s >= 1:
            A("s_waitcnt lgkmcnt(6)")
            r = F + 12*(s-1)
            for k, D in ((1, D0), (2, D1)): A(mfma16(D, r+4*k, r, 0 if s == 1 else None))
    A("s_waitcnt lgkmcnt(0)")
    r = F + 84
    for k, D in ((1, D0), (2, D1)): A(mfma16(D, r+4*k, r))
    A("v_lshlrev_b32 v8, 4, v%d" % vL)
    A("s_mul_i32 s%d, s%d, 49152\ns_lshl_b32 s%d, s%d, 11\ns_add_u32 s%d, s%d, s%d\ns_add_u32 s%d, s%d, 0x%x" % (sT, sIDX, sT+1, sW, sT, sT, sT+1, sT, sT, KVP))
    A("s_mul_i32 s%d, s%d, 6144\ns_add_u32 s%d, s%d, s%d" % (sT+1, sXCD, sT+1, sT+1, sT))
    A("s_lshl_b32 s%d, s%d, 2\ns_add_u32 s%d, s%d, s%d\ns_lshl_b32 s%d, s%d, 5\ns_add_u32 s%d, s%d, 0x%x" % (sT+2, sIDX, sT+2, sT+2, sW, sT+2, sT+2, sT+2, sT+2, FKV))
    A("s_lshl_b32 s%d, s%d, 2\nv_mov_b32 v9, s%d" % (sT+3, sXCD, sT+3))
    A("buffer_store_dwordx4 %s, v8, %s, s%d offen sc1" % (V4(D0), R(sWS), sT+1))
    A("s_mov_b32 exec_hi, 0")
    A("buffer_store_dwordx4 %s, v8, %s, s%d offen offset:1024 sc1" % (V4(D1), R(sWS), sT+1))
    A("s_mov_b64 exec, -1")
    stamp("kv_st")
    setflag(9, sT+2, " sc1")
    stamp("kv_pub")
    A("v_and_b32 v9, 7, v%d\nv_lshlrev_b32 v9, 2, v9" % vL)
    A("v_and_b32 v11, 31, v%d\nv_lshlrev_b32 v11, 4, v11" % vL)
    poll(9, 10, sT+2, sleep=OPT.get("kvslp", 2))
    stamp("kv_fl")
    for x in range(8):
        for dt in range(2):
            A("buffer_load_dwordx4 %s, v%d, %s, s%d offen offset:%d sc1" % (V4(F + 8*x + 4*dt), 11 if dt else 8, R(sWS), sT, 1024*dt))
        if x < 7: A("s_add_u32 s%d, s%d, 6144" % (sT, sT))
    A("s_mul_i32 s%d, s%d, %d\ns_add_u32 s%d, s%d, %d" % (sT, sW, 16*48, sT, sT, KVT))
    A("v_mul_u32_u24 v9, 48, v%d\nv_lshl_add_u32 v9, v%d, 3, v9\nv_add_u32 v9, s%d, v9" % (vTT, vG, sT))
    for x in range(1, 8):
        A("s_waitcnt vmcnt(%d)" % (14 - 2*x))
        for i in range(0, 8, 2): A("v_pk_add_f32 %s, %s, %s" % (V2(F+i), V2(F+i), V2(F+8*x+i)))
    for i in range(4): A("v_cvt_pk_bf16_f32 v%d, v%d, v%d" % (10+i, F+2*i, F+2*i+1))
    A("ds_write_b64 v9, v[10:11]")
    A("s_mov_b32 exec_hi, 0\nds_write_b64 v9, v[12:13] offset:32\ns_mov_b64 exec, -1")
    A.label(skip)
    A("s_waitcnt lgkmcnt(0)\ns_barrier")
    stamp("s1b_B2")
    A("s_setprio 0")
    rl_batch2()
    stamp("rl2")

def pretouch():
    A("s_lshl_b32 s94, s%d, 5\ns_add_u32 s94, s94, s%d\ns_lshl_b32 s94, s94, 2\ns_add_u32 s94, s94, s%d" % (sXCD, sIDX, sWL))
    A("v_min_u32 v30, 19, v%d\nv_lshlrev_b32 v30, 7, v30\ns_mul_i32 s95, s94, 2560" % vL)
    A("buffer_load_dword v31, v30, %s, s95 offen sc1" % R(sWS))
    A("buffer_load_dword v31, v30, %s, s95 offen sc1" % R(sOUT))
    A("s_lshl_b32 s95, s94, 7\ns_add_u32 s95, s95, 0x%x\nv_mov_b32 v32, 0" % ST)
    A("buffer_load_dword v31, v32, %s, s95 offen sc1" % R(sWS))

def wtouch(mats, level):
    for p, nbytes in mats:
        srd(sT+12, p, nbytes)
        nl = nbytes // 128
        per = nl // (1024 if level == 0 else 128) + (1 if nl % (1024 if level == 0 else 128) else 0)
        if level == 0: A("s_lshl_b32 s94, s2, 2\ns_add_u32 s94, s94, s%d" % sWL)
        else: A("s_lshl_b32 s94, s%d, 2\ns_add_u32 s94, s94, s%d" % (sIDX, sWL))
        A("s_mul_i32 s94, s94, %d" % (per*128))
        for b in range(0, per, 64):
            A("v_add_u32 v30, %d, v%d\nv_min_u32 v30, %d, v30\nv_lshlrev_b32 v30, 7, v30" % (b, vL, per-1))
            A("buffer_load_dword v31, v30, %s, s94 offen" % R(sT+12))
W1_, W2_, W3_, W4_ = (pW1, 819200), (pW2, 819200), (pW3, 1966080), (pW4, 1966080)

def s1b_q():
    ld_setup()
    dbg_check(36, 34, 35)
    def mid():
        wflags(1)
        lds_wait(0, 4, 30, 31)
        stamp("wfl")
        if OPT.get("pt", 1): pretouch()
        for sg in range(5): ld_seg(sg)
        if OPT.get("wt", 1): wtouch([W3_, W4_], 0)
        stamp("w_iss")
    phi_softmax(True, mid)
    stamp("phi_q")
    A("v_mul_u32_u24 v8, 48, v6\nv_add_u32 v8, 0x%x, v8\nv_mov_b32 v9, 0x%x" % (KVT, MZ))
    A("v_cmp_eq_u32 vcc, v7, v%d\nv_cndmask_b32 v8, v9, v8, vcc" % vG)
    A("v_mul_u32_u24 v12, 20480, v%d\nv_lshl_add_u32 v12, v%d, 4, v12" % (vG, vTT))
    A("v_mov_b32 v13, 0")
    A("s_mul_i32 s%d, s%d, %d\ns_lshl_b32 s%d, s%d, 8\ns_add_u32 s%d, s%d, s%d\ns_add_u32 s%d, s%d, 0x%x" % (sT+1, sRB, 4*20480, sT+2, sC0, sT+1, sT+1, sT+2, sT+1, sT+1, OH))
    A("s_lshl_b32 s%d, s%d, 5\ns_add_u32 s%d, s%d, s%d\ns_lshl_b32 s%d, s%d, 2\ns_add_u32 s%d, s%d, 0x%x" % (sT+2, sRB, sT+2, sT+2, sIDX, sT+2, sT+2, sT+2, sT+2, FO))
    stamp("q_rdy")
    A("s_barrier")
    A("s_setprio 1")
    F = 64; D = 184
    order = [(u, tp) for u in range(5) for tp in range(6)]
    def rd(n):
        u, tp = order[n]
        for hh in range(2): A("ds_read_b64_tr_b16 %s, v8 offset:%d" % (V2(F+4*n+2*hh), (8*u+4*hh)*48 + 8*tp))
    for n in range(6): rd(n)
    for n in range(30):
        if n + 6 < 30: rd(n + 6)
        A("s_waitcnt lgkmcnt(%d)" % (2*min(6, 29 - n)))
        u, tp = order[n]
        A(mfma16(D+4*tp, F+4*n, PH+4*u, 0 if u == 0 else None))
    A("v_add_f32 v16, 0x%x, v%d\nv_rcp_f32 v16, v16" % (f2u(1e-6), D+20))
    for i in range(0, 20, 2): A("v_pk_mul_f32 %s, %s, v[16:17] op_sel_hi:[1,0]" % (V2(D+i), V2(D+i)))
    for i in range(10): A("v_cvt_pk_bf16_f32 v%d, v%d, v%d" % (20+i, D+2*i, D+2*i+1))
    def st(p):
        od, dn = A.newlabel("OD"), A.newlabel("DN")
        A("s_cmp_eq_u32 s%d, 1\ns_cbranch_scc1 %s" % (sPAR, od))
        A("buffer_store_dwordx4 v[20:23], v12, %s, s%d offen%s" % (R(sWS), sT+1, p))
        A("buffer_store_dwordx4 v[24:27], v12, %s, s%d offen offset:256%s" % (R(sWS), sT+1, p))
        A("buffer_store_dwordx2 v[28:29], v12, %s, s%d offen offset:512%s" % (R(sWS), sT+1, p))
        A("s_branch %s" % dn)
        A.label(od)
        A("buffer_store_dwordx2 v[20:21], v12, %s, s%d offen offset:8%s" % (R(sWS), sT+1, p))
        A("buffer_store_dwordx4 v[22:25], v12, %s, s%d offen offset:256%s" % (R(sWS), sT+1, p))
        A("buffer_store_dwordx4 v[26:29], v12, %s, s%d offen offset:512%s" % (R(sWS), sT+1, p))
        A.label(dn)
        setflag(13, sT+2, p)
    dual(st)
    A("s_setprio 0")
    stamp("o_end")

vLD = 5
def ld_setup():
    A("s_mul_i32 s%d, s%d, %d\ns_add_u32 s%d, s%d, 0x%x" % (sWB, sJ, WSL, sWB, sWB, WP))
    A("s_mul_i32 s%d, s%d, 5120" % (sLW, sWL))
    A("v_lshlrev_b32 v%d, 4, v%d\nv_add_u32 v%d, s%d, v%d" % (vLD, vL, vLD, sLW, vLD))
def ld_seg(sg):
    l = (sg % 7) * SEG
    A("s_add_u32 s94, s%d, %d\ns_add_u32 m0, s%d, %d" % (sWB, sg*SEG, sLW, l))
    for q in range(4): A("buffer_load_dwordx4 v%d, %s, s94 offen offset:%d sc1 lds" % (vLD, R(sWS), 1024*q))
    A("s_add_u32 s94, s94, 4096\ns_add_u32 m0, s%d, %d" % (sLW, l + 4096))
    A("buffer_load_dwordx4 v%d, %s, s94 offen sc1 lds" % (vLD, R(sWS)))
def wflags(batch):
    t = sT+4
    A("s_mul_i32 s%d, s%d, 5\ns_lshr_b32 s%d, s%d, 2" % (t, sJ, t, t))
    if batch == 1:
        A("s_mul_i32 s%d, s%d, 80\ns_add_u32 s%d, s%d, 0x%x" % (t+1, t, t+1, t+1, FW))
        A("v_min_u32 v30, 39, v%d\nv_lshlrev_b32 v30, 2, v30" % vL)
        def ld():
            for i in range(3): A("buffer_load_dword v%d, v30, %s, s%d offen offset:%d sc1" % (32+i, R(sWS), t+1, 800*i))
    else:
        A("s_mul_i32 s%d, s%d, 240\ns_add_u32 s%d, s%d, 0x%x" % (t+2, sJ, t+2, t+2, FW + UB["w3"]*4))
        A("s_mul_i32 s%d, s%d, 192\ns_add_u32 s%d, s%d, 0x%x" % (t+3, t, t+3, t+3, FW + UB["w4"]*4))
        A("v_min_u32 v31, 59, v%d\nv_lshlrev_b32 v31, 2, v31\nv_min_u32 v30, 47, v%d\nv_lshlrev_b32 v30, 3, v30" % (vL, vL))
        def ld():
            A("buffer_load_dword v34, v31, %s, s%d offen sc1" % (R(sWS), t+2))
            A("buffer_load_dwordx2 v[32:33], v30, %s, s%d offen sc1" % (R(sWS), t+3))
    spin(ld, lambda: A("v_min3_u32 v32, v32, v33, v34\nv_cmp_eq_u32 vcc, 0, v32"), sleep=4)
def cs_reduce(base, ncol, rowb, dst):
    va, vd = 30, 32
    A("s_lshl_b32 s%d, s%d, 6" % (sT, sWL))
    A("v_add_u32 v%d, s%d, v%d\nv_min_u32 v%d, %d, v%d\nv_lshlrev_b32 v%d, 2, v%d" % (va, sT, vL, va, ncol-1, va, va, va))
    A("s_mul_i32 s%d, s%d, %d\ns_add_u32 s%d, s%d, 0x%x" % (sT, sJ, ncol*4, sT, sT, base))
    for s in range(20):
        A("buffer_load_dword v%d, v%d, %s, s%d offen sc1" % (vd+s, va, R(sWS), sT))
        if s < 19: A("s_add_u32 s%d, s%d, %d" % (sT, sT, rowb))
    def fin(n):
        A("s_waitcnt vmcnt(%d)" % n)
        for s in range(1, 20): A("v_add_f32 v%d, v%d, v%d" % (vd, vd, vd+s))
        A("v_add_u32 v%d, 0x%x, v%d\nds_write_b32 v%d, v%d\ns_waitcnt lgkmcnt(0)" % (va, dst, va, va, vd))
    return fin

SCHED = [(0, 5, 5), (3, 5, 10), (5, 10, 10), (8, 10, 15), (10, 15, 15), (13, 15, 20),
         (15, 18, 20), (17, 20, 24), (19, 22, 26), (21, 24, 28), (23, 26, 30), (25, 28, 32),
         (27, 30, 34), (29, 32, 36), (31, 34, 38), (33, 36, 39), (35, 39, 39)]
def loader_main():
    issued = 5
    for (free, full, upto) in SCHED:
        assert full <= issued and upto <= free + 7
        A("s_waitcnt vmcnt(%d)" % min(63, (issued - full) * 5))
        if free < 19 or free in (25, 27, 31, 35): stamp("H_%d" % free)
        A("s_barrier")
        fin = None
        if free == 3: fin = cs_reduce(CSP1, 80, 2560, CS1)
        if free == 8:
            wflags(2); fin = cs_reduce(CSP3, 192, 6144, CS3)
        while issued < upto:
            ld_seg(issued); issued += 1
        if fin: fin(25)

vAF, vAS, vST, vSH, vRM, vRMH, vZ = 5, 6, 7, 8, 9, 10, 11
vWB = 12
vHP = 17
vMEAN, vRSTD, vSC = 18, 19, 20
vGC0 = 22
ACC = 24
WBUF = 44
HRES = 100
AFR = 120
vS4 = 200
TMP = 204
PKR = TMP + 16
LA = 13
EVEN = "s_mov_b32 exec_lo, 0xffff\ns_mov_b32 exec_hi, 0xffff"

def c_setup():
    A("s_and_b32 s%d, s%d, 3\ns_lshl_b32 s%d, s%d, 2\ns_add_u32 s%d, s%d, s%d" % (sRB, sIDX, sT, sXCD, sRB, sRB, sT))
    A("s_lshl_b32 s%d, s%d, 2\ns_add_u32 s%d, s%d, s%d" % (sTT, sRB, sTT, sTT, sW))
    A("s_lshr_b32 s%d, s%d, 1\ns_mul_i32 s%d, s%d, 5\ns_and_b32 s%d, s%d, 1" % (sT, sJ, sT, sT, sPAR, sJ))
    A("s_mul_i32 s%d, s%d, 3\ns_add_u32 s%d, s%d, s%d" % (sS0, sPAR, sS0, sS0, sT))
    A("s_lshl_b32 s%d, s%d, 10" % (sAOFF, sS0))
    A("s_add_u32 s%d, s%d, 2\ns_lshl_b32 s%d, s%d, 10\ns_lshl_b32 s%d, s%d, 9\ns_add_u32 s%d, s%d, s%d" % (sT+2, sT, sHOFF, sT+2, sT+3, sPAR, sHOFF, sHOFF, sT+3))
    A("v_lshlrev_b32 v%d, 4, v%d" % (vAF, vL))
    t = TMP
    A("v_and_b32 v%d, 1, v%d\nv_lshrrev_b32 v%d, 1, v%d\nv_lshl_add_u32 v%d, v%d, 1, v%d" % (t+4, vG, t+5, vG, t+4, t+4, t+5))
    A("v_lshlrev_b32 v%d, 4, v%d\nv_lshl_add_u32 v%d, v%d, 8, v%d\nv_lshl_add_u32 v%d, v%d, 8, v%d" % (t+6, vTT, vAS, t+4, t+6, vSH, t+5, t+6))
    A("v_lshlrev_b32 v%d, 6, v%d\nv_lshl_add_u32 v%d, v%d, 2, v%d" % (vST, t+5, vST, vTT, vST))
    A("s_lshl_b32 s%d, s%d, 4" % (sT+1, sTT))
    A("v_add_u32 v%d, s%d, v%d\nv_mul_u32_u24 v%d, 1280, v%d" % (t, sT+1, vTT, t+1, t))
    A("s_lshl_b32 s%d, s%d, 6" % (sT+3, sS0))
    A("v_lshl_add_u32 v%d, v%d, 4, v%d\nv_add_u32 v%d, s%d, v%d" % (vRM, t+4, t+1, vRM, sT+3, vRM))
    A("s_lshl_b32 s%d, s%d, 6\ns_lshl_b32 s%d, s%d, 5\ns_add_u32 s%d, s%d, s%d" % (sT+2, sT+2, sT+3, sPAR, sT+2, sT+2, sT+3))
    A("v_lshl_add_u32 v%d, v%d, 3, v%d\nv_add_u32 v%d, s%d, v%d" % (vRMH, vG, t+1, vRMH, sT+2, vRMH))
    A("v_mov_b32 v%d, 0" % vZ)
    A("s_lshr_b32 s%d, s%d, 4" % (sT+4, sTT))
    for q, dl in enumerate((-1, 1, -2, 2)):
        r = vS4 + q
        A("v_add_u32 v%d, %d, v%d\nv_lshrrev_b32 v%d, 4, v%d" % (t+2, dl, t, r, t+2))
        A("v_lshrrev_b32 v%d, 4, v%d\nv_and_b32 v%d, 1, v%d\nv_lshl_add_u32 v%d, v%d, 1, v%d" % (t+3, r, t+7, r, t+7, t+3, t+7))
        A("v_add_u32 v%d, %d, v%d\nv_cmp_eq_u32 vcc, s%d, v%d\nv_cndmask_b32 v%d, v%d, v%d, vcc" % (t+7, (HALO - OH)//20480, t+7, sT+4, t+3, r, t+7, r))
        A("v_mul_u32_u24 v%d, 20480, v%d" % (r, r))
        A("v_and_b32 v%d, 15, v%d\nv_lshl_add_u32 v%d, v%d, 4, v%d\nv_lshl_add_u32 v%d, v%d, 8, v%d" % (t+3, t+2, r, t+3, r, r, vG, r))
        A("v_bfrev_b32 v%d, 1\nv_cmp_gt_u32 vcc, 0x800, v%d\nv_cndmask_b32 v%d, v%d, v%d, vcc" % (t+3, t+2, r, t+3, r))
    A("s_and_b32 s%d, s%d, 15\ns_mov_b32 s%d, 0" % (sT+5, sTT, sEDGE))
    A("s_cmp_eq_u32 s%d, 0\ns_cselect_b32 s%d, 1, s%d\ns_cmp_eq_u32 s%d, 15\ns_cselect_b32 s%d, 2, s%d" % (sT+5, sEDGE, sEDGE, sT+5, sEDGE, sEDGE))
    A("s_cmp_eq_u32 s%d, 0\ns_cselect_b32 s%d, 0, s%d\ns_cmp_eq_u32 s%d, 127\ns_cselect_b32 s%d, 0, s%d" % (sTT, sEDGE, sEDGE, sTT, sEDGE, sEDGE))
    A("v_min_u32 v%d, 59, v%d\nv_mul_u32_u24 v%d, 205, v%d\nv_lshrrev_b32 v%d, 12, v%d" % (t+2, vL, t+3, t+2, t+3, t+3))
    A("v_mul_u32_u24 v%d, 20, v%d\nv_sub_u32 v%d, v%d, v%d" % (t+7, t+3, t+2, t+2, t+7))
    A("v_min_u32 v%d, 1, v%d\nv_mul_u32_u24 v%d, 40, v%d\nv_add_u32 v%d, v%d, v%d\nv_lshlrev_b32 v%d, 8, v%d" % (t+7, t+3, t+7, t+7, t+2, t+2, t+7, t+2, t+2))
    A("v_lshrrev_b32 v%d, 1, v%d\nv_lshlrev_b32 v%d, 4, v%d" % (t+3, t+3, t+3, t+3))
    A("s_cmp_eq_u32 s%d, 1\ns_cselect_b32 s%d, 240, 0" % (sEDGE, sT+5))
    A("v_xor_b32 v%d, s%d, v%d\nv_add_u32 v%d, v%d, v%d" % (t+3, sT+5, t+3, vHP, t+2, t+3))
    A("s_mul_i32 s%d, s%d, 40960\ns_add_u32 s%d, s%d, 0x%x" % (sT+5, sT+4, sT+5, sT+5, HALO - 20480))
    A("s_cmp_eq_u32 s%d, 2\ns_cselect_b32 s%d, %d, 0\ns_add_u32 s%d, s%d, s%d" % (sEDGE, sT+6, 3*20480 + 20*256, sT+5, sT+5, sT+6))
    A("s_cmp_eq_u32 s%d, 0\ns_cselect_b32 s%d, 0x80000000, s%d" % (sEDGE, sT+5, sT+5))
    A("v_add_u32 v%d, s%d, v%d" % (vHP, sT+5, vHP))
    A("v_mov_b32 v%d, v%d\nv_add_u32 v%d, 0x10000, v%d\nv_add_u32 v%d, 0x20000, v%d" % (vWB, vAF, vWB+1, vAF, vWB+2, vAF))
assert (HALO - OH) % 20480 == 0

def wread(dst, off):
    a = off % RING
    return ["ds_read_b128 %s, v%d offset:%d" % (V4(dst), vWB + (a >> 16), a & 0xffff)]
NB = 14
def stream_pre(fr):
    for n in range(LA):
        for l in wread(WBUF + 4*(n % NB), *fr[n][0]): A(l)
FILLRATE = 2
def stream(fr, G, aload, apre, bars, fill, gates=()):
    N = len(fr); na = max(f[3] for f in fr) + 1
    gates = list(gates)
    st = dict(ai=0)
    def issue_to(x):
        lim = gates[0][0] if gates else na
        while st["ai"] < min(lim, x):
            for l in aload(st["ai"]): A(l)
            st["ai"] += 1
    issue_to(apre)
    pend = []; waited = -1
    for n in range(N):
        if n in bars: A("s_barrier")
        if gates and n == gates[0][1]:
            assert st["ai"] == gates[0][0]
            gates[0][3]()
        if gates and n == gates[0][2]:
            gates[0][4](); waited = st["ai"] - 1; gates.pop(0); issue_to(fr[n][3] + apre)
        if n % G == 0:
            hi = min(N, n + G)
            needa = max(f[3] for f in fr[n:hi])
            w = "lgkmcnt(%d)" % (min(N, n + LA) - hi)
            assert st["ai"] > needa
            if needa > waited:
                w = "vmcnt(%d) " % (st["ai"] - 1 - needa) + w; waited = needa
            A("s_waitcnt " + w)
        ws, acc, ar, aidx, z = fr[n]
        A(mfma16(acc, WBUF + 4*(n % NB), ar, 0 if z else None))
        if n + LA < N:
            for l in wread(WBUF + 4*((n + LA) % NB), *fr[n+LA][0]): A(l)
        if n + 1 < N and fr[n+1][3] > aidx: issue_to(aidx + 1 + apre)
        if n in fill: pend += fill[n]
        k = FILLRATE if n + 1 < N else len(pend)
        for l in pend[:k]: A(l)
        pend = pend[k:]

def mk_aload(afr, nring, srdb, voff=None, kmap=None):
    def f(s):
        v = vAF if voff is None else voff + s // 5
        r = afr + 4*(s % nring)
        if kmap is None:
            o = ["buffer_load_dwordx4 %s, v%d, %s, s%d offen offset:%d sc1" % (V4(r), v, R(srdb), sAB, (s & 3)*1024)]
            if s & 3 == 3: o.append("s_add_u32 s%d, s%d, 4096" % (sAB, sAB))
        else:
            o = []
            if s & 1 == 0: o.append("s_add_u32 s93, s%d, %d" % (sAB, kmap(s)*1024))
            o.append("buffer_load_dwordx4 %s, v%d, %s, s93 offen offset:%d sc1" % (V4(r), v, R(srdb), (s & 1)*1024))
        return o
    return f
def abase(base, tstride):
    if tstride: A("s_mul_i32 s%d, s%d, %d\ns_add_u32 s%d, s%d, 0x%x" % (sAB, sTT, tstride, sAB, sAB, base))
    else: A("s_mov_b32 s%d, 0x%x" % (sAB, base))
def frags5(stage, nks, afr, nring, zero=False):
    return [((SB[stage] + s*5120 + t*1024,), ACC + 4*t, afr + 4*(s % nring), s, zero and s == 0) for s in range(nks) for t in range(5)]
def pre_bar(fr):
    A("s_waitcnt lgkmcnt(0)\ns_barrier"); stream_pre(fr)
def flag8(fbase, dst):
    A("s_lshl_b32 s%d, s%d, 5\ns_add_u32 s%d, s%d, 0x%x" % (dst, sTT, dst, dst, fbase))
def poll8(fbase):
    flag8(fbase, sT+1)
    A("v_and_b32 v%d, 7, v%d\nv_lshlrev_b32 v%d, 2, v%d" % (TMP, vL, TMP, TMP))
    poll(TMP, TMP+1, sT+1)
def swaps(pk, npair):
    for p in range(npair):
        A("v_permlane16_swap_b32 v%d, v%d\nv_permlane16_swap_b32 v%d, v%d" % (pk+4*p, pk+4*p+2, pk+4*p+1, pk+4*p+3))
def pack10(src, dst):
    for i in (8, 9): A("v_cvt_pk_bf16_f32 v%d, v%d, v%d\nv_cvt_pk_bf16_f32 v%d, v%d, v%d" % (dst+i, src+2*i, src+2*i+1, dst+i+2, src+2*i, src+2*i+1))
    for i in range(8): A("v_cvt_pk_bf16_f32 v%d, v%d, v%d" % (dst+i, src+2*i, src+2*i+1))
    A("v_permlane16_swap_b32 v%d, v%d\nv_permlane16_swap_b32 v%d, v%d" % (dst+8, dst+10, dst+9, dst+11))
    swaps(dst, 2)
def af_stores(pk, srdb, s0, s1, p, mask=None):
    if mask: A(mask[0])
    A("buffer_store_dwordx4 %s, v%d, %s, s%d offen%s" % (V4(pk), vAS, R(srdb), s0, p))
    A("buffer_store_dwordx4 %s, v%d, %s, s%d offen offset:1024%s" % (V4(pk+4), vAS, R(srdb), s0, p))
    A(mask[1] if mask else EVEN)
    A("buffer_store_dwordx4 %s, v%d, %s, s%d offen%s" % (V4(pk+8), vSH, R(srdb), s1, p))
    A("s_mov_b64 exec, -1")
def store_pre(base, fbase, stats):
    A("s_mul_i32 s%d, s%d, 20480\ns_add_u32 s%d, s%d, 0x%x" % (sT+8, sTT, sT+8, sT+8, base))
    A("s_add_u32 s%d, s%d, s%d\ns_add_u32 s%d, s%d, s%d" % (sT+9, sT+8, sHOFF, sT+8, sT+8, sAOFF))
    A("s_lshl_b32 s%d, s%d, 3\ns_add_u32 s%d, s%d, s%d" % (sT+10, sTT, sT+10, sT+10, sJ))
    if stats: A("s_lshl_b32 s%d, s%d, 7\ns_add_u32 s%d, s%d, 0x%x" % (sT+11, sT+10, sT+11, sT+11, ST))
    A("s_lshl_b32 s%d, s%d, 2\ns_add_u32 s%d, s%d, 0x%x" % (sT+10, sT+10, sT+10, sT+10, fbase))
def store_af(pk, srdb, stats):
    def st(p):
        af_stores(pk, srdb, sT+8, sT+9, p)
        if stats:
            stats_partial(ACC, TMP+12)
            A("buffer_store_dword v%d, v%d, %s, s%d offen%s" % (TMP+12, vST, R(sWS), sT+11, p))
        setflag(vZ, sT+10, p)
    dual(st)
def stats_partial(src, t):
    a, b = t, t+2
    A("v_pk_add_f32 %s, %s, %s" % (V2(a), V2(src), V2(src+2)))
    A("v_pk_mul_f32 %s, %s, %s" % (V2(b), V2(src), V2(src)))
    for i in range(2, 20, 2):
        if i > 2: A("v_pk_add_f32 %s, %s, %s" % (V2(a), V2(a), V2(src+i)))
        A("v_pk_fma_f32 %s, %s, %s, %s" % (V2(b), V2(src+i), V2(src+i), V2(b)))
    A("v_add_f32 v%d, v%d, v%d\nv_add_f32 v%d, v%d, v%d" % (a, a, a+1, b, b, b+1))
    A("v_permlane32_swap_b32 v%d, v%d\nv_add_f32 v%d, v%d, v%d\nv_mov_b32 v%d, v%d" % (a, b, a, a, b, b, a))
    A("v_permlane16_swap_b32 v%d, v%d\nv_add_f32 v%d, v%d, v%d" % (a, b, a, a, b))
def stats_load():
    A("s_lshl_b32 s%d, s%d, 10\ns_add_u32 s%d, s%d, 0x%x" % (sT+1, sTT, sT+1, sT+1, ST))
    for i in range(4):
        A("buffer_load_dword v%d, v%d, %s, s%d offen offset:%d sc1" % (TMP+4+i, TMP+2, R(sWS), sT+1, 64*i))
def stats_addr():
    A("v_lshlrev_b32 v%d, 8, v%d\nv_lshl_add_u32 v%d, v%d, 2, v%d" % (TMP+2, vG, TMP+2, vTT, TMP+2))
def stats_finish():
    a, b = TMP+4, TMP+5
    A("v_add_f32 v%d, v%d, v%d\nv_add_f32 v%d, v%d, v%d" % (a, a, TMP+6, b, b, TMP+7))
    A("v_permlane32_swap_b32 v%d, v%d\nv_add_f32 v%d, v%d, v%d\nv_mov_b32 v%d, v%d" % (a, b, a, a, b, b, a))
    A("v_permlane16_swap_b32 v%d, v%d\nv_add_f32 v%d, v%d, v%d\nv_mov_b32 v%d, v%d" % (a, b, a, a, b, b, a))
    A("v_permlane32_swap_b32 v%d, v%d" % (a, b))
    lnstats(a, b, vRSTD)
    A("v_mov_b32 v%d, v%d" % (vMEAN, a))
GC0 = -2*0.7978845608028654*LOG2E
GC1 = GC0*0.044715
def gelu(src, n, t, sc, cs):
    for i in range(0, n, 2): A("v_pk_fma_f32 %s, %s, %s, %s op_sel_hi:[1,0,1]" % (V2(src+i), V2(src+i), V2(sc), V2(cs+i)))
    for i in range(0, n, 2): A("v_pk_mul_f32 %s, %s, %s" % (V2(t+i), V2(src+i), V2(src+i)))
    for i in range(0, n, 2): A("v_pk_fma_f32 %s, %s, s[%d:%d], %s op_sel_hi:[1,1,0]" % (V2(t+i), V2(t+i), sK, sK+1, V2(vGC0)))
    for i in range(0, n, 2): A("v_pk_mul_f32 %s, %s, %s" % (V2(t+i), V2(t+i), V2(src+i)))
    for i in range(n): A("v_exp_f32 v%d, v%d" % (t+i, t+i))
    for i in range(0, n, 2): A("v_pk_add_f32 %s, %s, 1.0 op_sel_hi:[1,0]" % (V2(t+i), V2(t+i)))
    for i in range(n): A("v_rcp_f32 v%d, v%d" % (t+i, t+i))
    for i in range(0, n, 2): A("v_pk_mul_f32 %s, %s, %s" % (V2(src+i), V2(src+i), V2(t+i)))
def scale_cs(cs, n):
    for i in range(0, n, 2):
        A("v_pk_mul_f32 %s, %s, %s op_sel:[0,1] op_sel_hi:[1,1] neg_lo:[0,1] neg_hi:[0,1]" % (V2(cs+i), V2(cs+i), V2(vSC)))

APRE = OPT.get("apre", 14)
GW = OPT.get("gw", 5)
def c_main():
    c_setup()
    A("s_mov_b32 s%d, 0x%x\ns_mov_b32 s%d, 0x%x\nv_mov_b32 v%d, 0x%x" % (sK, f2u(GC1), sK+1, f2u(GC1), vGC0, f2u(GC0)))
    A("s_mov_b32 s%d, 0xffff0000" % (sK+2))
    CSV = TMP + 28
    A("buffer_load_dwordx4 %s, v%d, %s, 0 offen" % (V4(PKR), vRM, R(sX)))
    A("buffer_load_dwordx4 %s, v%d, %s, 0 offen offset:64" % (V4(PKR+4), vRM, R(sX)))
    A("buffer_load_dwordx2 %s, v%d, %s, 0 offen" % (V2(PKR+8), vRMH, R(sX)))
    stats_addr()
    A("s_lshl_b32 s%d, s%d, 7\ns_add_u32 s%d, s%d, 0x%x" % (sT+1, sRB, sT+1, sT+1, FO))
    A("v_and_b32 v%d, 31, v%d\nv_lshlrev_b32 v%d, 2, v%d" % (TMP, vL, TMP, TMP))
    abase(OH, 20480)
    store_pre(0, FH, True)
    A("s_waitcnt vmcnt(0)")
    rl_batch2_flag()
    swaps(PKR, 2)
    for i in range(10):
        A("v_lshlrev_b32 v%d, 16, v%d\nv_and_b32 v%d, s%d, v%d" % (ACC+2*i, PKR+i, ACC+2*i+1, sK+2, PKR+i))
    fr = frags5(2, 20, AFR, 20)
    pre_bar(fr)
    poll(TMP, TMP+1, sT+1)
    stamp("s2_fl")
    stream(fr, GW, mk_aload(AFR, 20, sWS), APRE, {60}, {})
    stamp("s2_mm")
    pack10(ACC, PKR)
    store_af(PKR, sOUT, True)
    stamp("s2_end")
    for i in range(20): A("v_mov_b32 v%d, v%d" % (HRES+i, ACC+i))
    A("v_lshlrev_b32 v%d, 4, v%d\nv_add_u32 v%d, 0x%x, v%d" % (TMP+3, vG, TMP+3, CS1, TMP+3))
    abase(0, 20480)
    store_pre(OH, FHH, False)
    e = sT+12
    A("s_lshr_b32 s%d, s%d, 4\ns_lshl_b32 s%d, s%d, 1\ns_add_u32 s%d, s%d, s%d\ns_mul_i32 s%d, s%d, 20480" % (e, sTT, e, e, e, e, sEDGE, e, e))
    A("s_add_u32 s%d, s%d, 0x%x\ns_add_u32 s%d, s%d, s%d\ns_add_u32 s%d, s%d, s%d" % (e, e, HALO - 20480, e+1, e, sHOFF, e, e, sAOFF))
    A("s_cmp_eq_u32 s%d, 1\ns_mov_b32 s%d, 0xc000c000\ns_cmov_b32 s%d, 0x00030003\ns_and_b32 s%d, s%d, 0xffff" % (sEDGE, e+2, e+2, e+3, e+2))
    fr = frags5(3, 20, AFR, 20, zero=True)
    pre_bar(fr)
    poll8(FH)
    stamp("s3_fl")
    stats_load()
    with Capture() as cp:
        stats_finish()
        A("v_mul_f32 v%d, v%d, v%d\nv_mul_f32 v%d, v%d, v%d" % (TMP+6, vRSTD, vRSTD, TMP+6, TMP+6, TMP+5))
        A("v_add_f32 v%d, 0x%x, v%d\nv_rsq_f32 v%d, v%d\nv_mul_f32 v%d, v%d, v%d" % (TMP+6, f2u(1e-5), TMP+6, TMP+6, TMP+6, vSC, TMP+6, vRSTD))
        A("v_mul_f32 v%d, v%d, v%d" % (vSC+1, vSC, vMEAN))
    fill = {5: cp.out}
    for t in range(5): fill[20 + 5*t] = ["ds_read_b128 %s, v%d offset:%d" % (V4(CSV+4*t), TMP+3, 64*t)]
    with Capture() as cp: scale_cs(CSV, 20)
    fill[62] = cp.out
    stream(fr, GW, mk_aload(AFR, 20, sOUT), APRE, {60}, fill)
    stamp("s3_mm")
    gelu(ACC, 20, WBUF, vSC, CSV)
    pack10(ACC, PKR)
    stamp("s3_ge")
    def st3(p):
        af_stores(PKR, sWS, sT+8, sT+9, p)
        ne, dn = A.newlabel("NE"), A.newlabel("DN")
        A("s_cmp_eq_u32 s%d, 0\ns_cbranch_scc1 %s" % (sEDGE, ne))
        af_stores(PKR, sWS, sT+12, sT+13, " sc1", mask=("s_mov_b32 exec_lo, s%d\ns_mov_b32 exec_hi, s%d" % (sT+14, sT+14), "s_mov_b32 exec_lo, s%d\ns_mov_b32 exec_hi, s%d" % (sT+15, sT+15)))
        A("s_waitcnt vmcnt(3)\ns_branch %s" % dn)
        A.label(ne)
        A("s_waitcnt vmcnt(0)")
        A.label(dn)
        setflag(vZ, sT+10, p, wait=False)
    dual(st3)
    stamp("s3_end")
    A("v_mul_f32 v%d, v%d, v%d" % (vMEAN, vMEAN, vRSTD))
    for i in range(0, 20, 2):
        A("v_pk_fma_f32 %s, %s, %s, %s op_sel:[0,1,0] op_sel_hi:[1,1,0] neg_lo:[0,0,1] neg_hi:[0,0,1]" % (V2(ACC+i), V2(HRES+i), V2(vMEAN), V2(vMEAN)))
    A("s_lshl_b32 s%d, s%d, 3\ns_sub_u32 s%d, s%d, 8\ns_and_b32 s%d, s%d, 0x380\ns_add_u32 s%d, s%d, 127" % (sT+2, sTT, sT+1, sT+2, sT+2, sT+2, sT+3, sT+2))
    A("v_min_u32 v%d, 23, v%d\nv_add_u32 v%d, s%d, v%d\nv_max_i32 v%d, s%d, v%d\nv_min_i32 v%d, s%d, v%d\nv_lshlrev_b32 v%d, 2, v%d" % (TMP, vL, TMP, sT+1, TMP, TMP, sT+2, TMP, TMP, sT+3, TMP, TMP, TMP))
    A("s_mov_b32 s%d, 0x%x" % (sT+1, FHH))
    abase(OH, 0)
    store_pre(0, FX1, True)
    fr = frags5(4, 20, AFR, 20)
    pre_bar(fr)
    def lds_():
        A("buffer_load_dword v%d, v%d, %s, s%d offen sc1" % (TMP+1, TMP, R(sWS), sT+1))
        A("buffer_load_dword v%d, v%d, %s, 0 offen sc1" % (TMP+4, vHP, R(sWS)))
    def cond_():
        A("v_not_b32 v%d, v%d\nv_min_u32 v%d, v%d, v%d\nv_cmp_eq_u32 vcc, 0, v%d" % (TMP+4, TMP+4, TMP+1, TMP+1, TMP+4, TMP+1))
    spin(lds_, cond_)
    stamp("s4_fl")
    stream(fr, GW, mk_aload(AFR, 20, sWS, voff=vS4), APRE, {60}, {})
    stamp("s4_mm")
    pack10(ACC, PKR)
    store_af(PKR, sOUT, True)
    stamp("s4_end")
    for i in range(0, 20, 2): A("v_pk_add_f32 %s, %s, %s" % (V2(HRES+i), V2(HRES+i), V2(ACC+i)))
    A("v_lshlrev_b32 v%d, 4, v%d\nv_add_u32 v%d, 0x%x, v%d" % (TMP+3, vG, TMP+3, CS3, TMP+3))
    abase(0, 20480)
    A("s_mul_i32 s%d, s%d, 61440\ns_mul_i32 s%d, s%d, 6144\ns_add_u32 s%d, s%d, s%d\ns_add_u32 s%d, s%d, 0x%x" % (sT+8, sTT, sT+9, sJ, sT+8, sT+8, sT+9, sT+8, sT+8, G_))
    A("s_add_u32 s%d, s%d, 4096" % (sT+9, sT+8))
    A("s_lshl_b32 s%d, s%d, 3\ns_add_u32 s%d, s%d, s%d\ns_lshl_b32 s%d, s%d, 2\ns_add_u32 s%d, s%d, 0x%x\ns_add_u32 s%d, s%d, 4096" % (sT+10, sTT, sT+10, sT+10, sJ, sT+10, sT+10, sT+10, sT+10, FG, sT+11, sT+10))
    A("s_add_u32 s%d, s%d, 4096" % (sT+12, sT+11))
    CS5, GT, GP = TMP + 8, TMP + 16, TMP + 24
    fr = [((SB[5] + p*40960 + s*2048 + t*1024,), ACC + 8*(p & 1) + 4*t, AFR + 4*s, s, s == 0) for p in range(6) for s in range(20) for t in range(2)]
    pre_bar(fr)
    poll8(FX1)
    stamp("s5_fl")
    stats_load()
    fill = {}
    with Capture() as cp:
        stats_finish()
        A("v_mov_b32 v%d, v%d\nv_mul_f32 v%d, v%d, v%d" % (vSC, vRSTD, vSC+1, vRSTD, vMEAN))
    fill[8] = cp.out
    def epi(p):
        a = ACC + 8*(p & 1); g = GP + 4*(p & 1)
        scale_cs(CS5, 8)
        gelu(a, 8, GT, vSC, CS5)
        for i in range(4): A("v_cvt_pk_bf16_f32 v%d, v%d, v%d" % (g+i, a+2*i, a+2*i+1))
        swaps(g, 1)
    def gst(p):
        dual(lambda pp: A("buffer_store_dwordx4 %s, v%d, %s, s%d offen offset:%d%s" % (V4(GP + 4*(p & 1)), vAS, R(sWS), sT+8 + (p >> 2), (p & 3)*1024, pp)))
    for p in range(6):
        fill.setdefault(40*p + 24, []).extend(["ds_read_b128 %s, v%d offset:%d" % (V4(CS5+4*t), TMP+3, 128*p + 64*t) for t in range(2)])
    for p in range(5):
        with Capture() as cp: epi(p)
        with Capture() as c2:
            if p in (2, 4): dual(lambda pp: setflag(vZ, sT+10 + (p >> 2), pp))
            gst(p)
        fill[40*(p+1) + 3] = cp.out + ["\n".join(c2.out)]
    stream(fr, 4, mk_aload(AFR, 20, sOUT), 20, set(range(40, 240, 40)), fill)
    stamp("s5_mm")
    epi(5); gst(5)
    for i in range(20): A("v_mov_b32 v%d, v%d" % (ACC+i, HRES+i))
    abase(G_, GST)
    fr = frags5(6, 48, HRES, 24)
    pre_bar(fr)
    stamp("s5_end")
    poll8(FG)
    dual(lambda pp: setflag(vZ, sT+12, pp, wait=False))
    stamp("s6_fl")
    gl = lambda: A("buffer_load_dword v%d, v%d, %s, s%d offen sc1" % (TMP+1, TMP, R(sWS), sT+1))
    def gi():
        A("s_add_u32 s%d, s%d, 4096" % (sT+1, sT+1)); gl()
    def gc():
        spin(gl, lambda: A("v_cmp_eq_u32 vcc, 0, v%d" % (TMP+1)), issued=True)
    kmap = lambda i: 6*((i >> 1) & 7) + 2*(i >> 4) + (i & 1)
    stream(fr, GW, mk_aload(HRES, 24, sWS, kmap=kmap), OPT.get("apre6", 16), {40, 80, 120, 160}, {},
           gates=[(16, 0, 35, gi, gc), (32, 85, 115, gi, gc)])
    stamp("s6_mm")
    pack10(ACC, PKR)
    A("buffer_store_dwordx4 %s, v%d, %s, 0 offen" % (V4(PKR), vRM, R(sOUT)))
    A("buffer_store_dwordx4 %s, v%d, %s, 0 offen offset:64" % (V4(PKR+4), vRM, R(sOUT)))
    A(EVEN)
    A("buffer_store_dwordx4 %s, v%d, %s, 0 offen" % (V4(PKR+8), vRMH, R(sOUT)))
    A("s_mov_b64 exec, -1")
    stamp("s6_end")

def ts_dump():
    if not OPT["ts"]: return
    A("s_waitcnt vmcnt(0)")
    stamp("fin")
    A("s_lshl_b32 s%d, s2, 3\ns_add_u32 s%d, s%d, s%d\ns_lshl_b32 s%d, s%d, 8\ns_add_u32 s%d, s%d, 0x%x" % (sT, sT, sT, sW, sT, sT, sT, sT, TS))
    A("v_lshlrev_b32 v63, 2, v%d" % vL)
    A("buffer_store_dword v253, v63, %s, s%d offen" % (R(sWS), sT))

def main():
    prologue()
    A("s_cmp_lt_u32 s%d, 4\ns_cbranch_scc1 L_C" % sW)
    A("s_cmp_ge_u32 s%d, 30\ns_cbranch_scc1 L_hsp" % sIDX)
    s1a_loader()
    A.label("L_h3")
    s1b_q()
    loader_main()
    A("s_branch L_fin")
    A.label("L_hsp")
    more_srds()
    A.label("L_spare")
    spare_main()
    stamp("sp_end")
    A("s_waitcnt lgkmcnt(0)\ns_barrier")
    A("s_cmp_lt_u32 s%d, 4\ns_cbranch_scc1 L_c3" % sW)
    dbg_issue(36, 34)
    A("s_branch L_h3")
    A.label("L_C")
    init_c()
    A("s_cmp_ge_u32 s%d, 30\ns_cbranch_scc1 L_spare" % sIDX)
    s1a_compute()
    stamp("s1_end")
    A.label("L_c3")
    s1b_k()
    c_main()
    A.label("L_fin")
    ts_dump()
    A.label("L_end")
    A("s_endpgm")
    body, nn = finalize(A.lines)
    hdr = open("sequential_preLN__linear_kernel_hedgehog__mixer_s_mlp__prompt.s.ref").read().split("; Override launch")[0]
    out = hdr + "; @launch grid=(256,1,1) block=(512,1,1) lds=%d\n" % LDS_BYTES
    out += '.amdgcn_target "amdgcn-amd-amdhsa--gfx950"\n.text\n.globl %s\n.p2align 8\n.type %s,@function\n%s:\n' % (KN, KN, KN)
    out += "\n".join(("" if l.endswith(":") else "  ") + l for l in body) + "\n"
    out += '.section .rodata,"a"\n.p2align 6\n.amdhsa_kernel %s\n' % KN
    out += "  .amdhsa_next_free_vgpr 256\n  .amdhsa_next_free_sgpr 102\n  .amdhsa_accum_offset 256\n  .amdhsa_group_segment_fixed_size 0\n  .amdhsa_kernarg_size 96\n  .amdhsa_user_sgpr_count 2\n  .amdhsa_user_sgpr_kernarg_segment_ptr 1\n  .amdhsa_system_sgpr_workgroup_id_x 1\n.end_amdhsa_kernel\n"
    open(sys.argv[1], "w").write(out)
    open(sys.argv[1] + ".names", "w").write(" ".join(STN))
    print("written", sys.argv[1], "lines", len(body), "nops", nn, "barriers", sum(l == "s_barrier" for l in body))
main()
```

```python
import sys, struct
from asmlib import *

KN = "sequential_preLN__linear_kernel_hedgehog__mixer_s_mlp__prompt_kernel"
OPT = dict(ts=0, rot=1, forceslow=0)
for a in sys.argv[2:]:
    k, v = a.split("="); OPT[k] = int(v)
def f2u(f): return struct.unpack("<I", struct.pack("<f", f))[0]

OH = 0x000000
QKV = 0x300000
G_ = QKV; GST = 61440
WP = 0xC00000; WSL = 798720
CSP1 = 0x1300000; CSP3 = 0x1310000
KVP = 0x1400000
ST = 0xB00000
XS = 0xB20000
HALO = 0xB40000
ZR = 0xB90000
FKV = ZR; FO = ZR + 4096; FH = ZR + 8192; FHH = ZR + 12288; FX1 = ZR + 16384; FG = ZR + 20480
FQKV = ZR + 32768; FW = ZR + 36864
TS = 0x2500000
SB = {2: 0, 3: 102400, 4: 204800, 5: 307200, 6: 552960}
UB = {"wo": 0, "w1": 200, "w2": 400, "w3": 600, "w4": 1080}
RING = 143360; SEG = 20480
PK = 102400; VV = 122880
MZ = 143360
WPHI = MZ + 2048 - 160
CNT = MZ + 3040
KVT = MZ + 3072
CS0 = MZ + 5632
CS1 = MZ + 6144
CS3 = MZ + 6656
LDS_BYTES = 163840
sW, sXCD, sIDX, sFAST, sCNT = 3, 4, 5, 6, 7
sX, sWQ, sWS, sOUT, sDBG, sSRC = 8, 12, 16, 20, 24, 28
sT = 32
sPAR, sRB, sJ, sTT, sS0, sAOFF, sHOFF, sAB, sLW, sWL, sC0, sEDGE, sWB, sRT, sCT = range(48, 63)
pWPHI, pWO, pW1, pW2, pW3, pW4 = 68, 70, 74, 76, 78, 80
sK = 88
vL, vG, vTT, vONE = 1, 2, 3, 4

A = Asm()
STN = []
KEEP = "entry s1_b0 s1_mm s1b_fl phi_k kv_pub s1b_B2 s2_fl s2_end s3_fl s3_end s4_end s5_fl s5_end s6_mm fin".split()
def stamp(name):
    if OPT.get("dbgts"):
        if name not in KEEP: return
        STN[:] = KEEP
    if OPT["ts"]:
        if name not in STN: STN.append(name)
        assert len(STN) <= 64
        A("%s s[100:101]\ns_waitcnt lgkmcnt(0)\nv_writelane_b32 v253, s100, %d" % ("s_memtime" if OPT["ts"] == 2 else "s_memrealtime", STN.index(name)))
class Capture:
    def __enter__(self):
        self.save = A.lines; A.lines = []; return self
    def __exit__(self, *a):
        self.out = A.lines; A.lines = self.save
def R(b): return "s[%d:%d]" % (b, b + 3)
def V4(b): return "v[%d:%d]" % (b, b + 3)
def V2(b): return "v[%d:%d]" % (b, b + 1)
def srd(dst, p, nbytes):
    A("s_mov_b32 s%d, s%d\ns_and_b32 s%d, s%d, 0xffff\ns_mov_b32 s%d, 0x%x\ns_mov_b32 s%d, 0x20000" % (dst, p, dst+1, p+1, dst+2, nbytes, dst+3))
def mfma16(d, a, b, c=None):
    return "v_mfma_f32_16x16x32_bf16 %s, %s, %s, %s" % (V4(d), V4(a), V4(b), "0" if c == 0 else V4(d))

POLL_LIMIT = 40000
def spin(loads, cond, sleep=0, issued=False):
    L, D, E = A.newlabel("P"), A.newlabel("PD"), A.newlabel("PE")
    A("s_mov_b32 s%d, %d" % (sCNT, POLL_LIMIT))
    if issued: A("s_branch %s" % E)
    A.label(L)
    loads()
    A.label(E)
    A("s_waitcnt vmcnt(0)")
    cond()
    A("s_cbranch_vccz %s" % D)
    if sleep: A("s_sleep %d" % sleep)
    A("s_sub_u32 s%d, s%d, 1\ns_cbranch_scc0 %s" % (sCNT, sCNT, L))
    A.label(D)
def poll(vaddr, vtmp, soff, sleep=0):
    spin(lambda: A("buffer_load_dword v%d, v%d, %s, s%d offen sc1" % (vtmp, vaddr, R(sWS), soff)),
         lambda: A("v_cmp_eq_u32 vcc, 0, v%d" % vtmp), sleep)
def dual(fn, sreg=sFAST):
    S, E = A.newlabel("SL"), A.newlabel("SE")
    A("s_cmp_eq_u32 s%d, 0\ns_cbranch_scc1 %s" % (sreg, S))
    fn("")
    A("s_branch %s" % E)
    A.label(S)
    A("s_nop 1")
    fn(" sc1")
    A.label(E)
def setflag(vz, soff, p, wait=True):
    if wait: A("s_waitcnt vmcnt(0)")
    A("s_mov_b64 exec, 1")
    A("buffer_store_dword v%d, v%d, %s, s%d offen%s" % (vONE, vz, R(sWS), soff, p))
    A("s_mov_b64 exec, -1")
def dbg_issue(va, vt):
    A("v_lshlrev_b32 v%d, 2, v%d" % (va, vL))
    A("buffer_load_dword v%d, v%d, %s, 0 offen sc1" % (vt, va, R(sDBG)))
def dbg_check(va, vt, vt2):
    A("s_mov_b32 s98, 0x01010101")
    def cond():
        A("v_subrev_u32 v%d, s98, v%d\nv_not_b32 v%d, v%d" % (vt2, vt, va+1, vt))
        A("v_and_b32 v%d, v%d, v%d\nv_and_b32 v%d, 0x80808080, v%d" % (vt2, vt2, va+1, vt2, vt2))
        A("v_cmp_ne_u32 vcc, 0, v%d" % vt2)
    spin(lambda: A("buffer_load_dword v%d, v%d, %s, 0 offen sc1" % (vt, va, R(sDBG))), cond, sleep=2, issued=True)
    A("s_getreg_b32 s94, hwreg(HW_REG_XCC_ID, 0, 4)")
    A("s_add_u32 s94, s94, 1\ns_mul_i32 s94, s94, s98")
    A("v_cmp_ne_u32 vcc, s94, v%d" % vt)
    A("s_lshl_b32 s95, s%d, 3\ns_nop 1" % sXCD)
    A("s_lshr_b64 s[96:97], vcc, s95\ns_and_b32 s96, s96, 0xff")
    A("s_cmp_eq_u32 s96, 0\ns_cselect_b32 s%d, 1, 0" % sFAST)
    if OPT["forceslow"]: A("s_mov_b32 s%d, 0" % sFAST)
def lds_signal(k, va):
    A("v_mov_b32 v%d, 0x%x" % (va, CNT + 4*k))
    A("s_mov_b64 exec, 1\nds_add_u32 v%d, v%d\ns_mov_b64 exec, -1" % (va, vONE))
def lds_wait(k, n, va, vt, sreg=None):
    L, D = A.newlabel("W"), A.newlabel("WD")
    if sreg is None: A("v_mov_b32 v%d, 0x%x" % (va, CNT + 4*k))
    else: A("v_mov_b32 v%d, s%d" % (va, sreg))
    A("s_mov_b32 s%d, %d" % (sCNT, 4000000))
    A.label(L)
    A("ds_read_b32 v%d, v%d\ns_waitcnt lgkmcnt(0)" % (vt, va))
    A("v_cmp_gt_u32 vcc, %d, v%d\ns_cbranch_vccz %s" % (n, vt, D))
    A("s_sub_u32 s%d, s%d, 1\ns_cbranch_scc0 %s" % (sCNT, sCNT, L))
    A.label(D)
def lnstats(s1, s2, rs):
    A("v_mul_f32 v%d, 0x%x, v%d\nv_mul_f32 v%d, 0x%x, v%d" % (s1, f2u(1/640), s1, s2, f2u(1/640), s2))
    A("v_fma_f32 v%d, -v%d, v%d, v%d\nv_max_f32 v%d, 0, v%d" % (s2, s1, s1, s2, s2, s2))
    A("v_add_f32 v%d, 0x%x, v%d\nv_rsq_f32 v%d, v%d" % (rs, f2u(1e-5), s2, rs, rs))

def prologue():
    A("s_cmp_ge_u32 s2, 256\ns_cbranch_scc1 L_end")
    if OPT["ts"]: A("v_mov_b32 v253, 0")
    stamp("entry")
    A("s_load_dwordx16 s[64:79], s[0:1], 0\ns_load_dwordx8 s[80:87], s[0:1], 64")
    A("v_and_b32 v%d, 63, v0\nv_lshrrev_b32 v5, 6, v0" % vL)
    A("v_lshrrev_b32 v%d, 4, v%d\nv_and_b32 v%d, 15, v%d\nv_mov_b32 v%d, 1" % (vG, vL, vTT, vL, vONE))
    A("v_readfirstlane_b32 s%d, v5" % sW)
    A("s_and_b32 s%d, s2, 7\ns_lshr_b32 s%d, s2, 3" % (sXCD, sIDX))
    A("s_mov_b32 s%d, 0\ns_and_b32 s%d, s%d, 3\ns_and_b32 s%d, s%d, 1" % (sFAST, sWL, sW, sPAR, sIDX))
    A("s_lshr_b32 s%d, s%d, 2" % (sJ, sIDX))
    A("s_lshl_b32 s%d, s%d, 1\ns_add_u32 s%d, s%d, s%d\ns_lshr_b32 s%d, s%d, 1" % (sRT, sXCD, sRT, sRT, sPAR, sCT, sIDX))
    A("s_waitcnt lgkmcnt(0)")
    srd(sX, 64, 2621440); srd(sWQ, 66, 2457600)

def more_srds():
    srd(sWS, 86, 0x10000000); srd(sOUT, 82, 2621440); srd(sDBG, 84, 256)

def init_c():
    l1, l2, l3 = A.newlabel("I"), A.newlabel("I"), A.newlabel("I")
    A("s_cmp_lg_u32 s%d, 0\ns_cbranch_scc1 %s" % (sW, l1))
    A("s_lshl_b32 s%d, s%d, 8\ns_lshl_b32 s%d, s%d, 3\ns_add_u32 s%d, s%d, s%d" % (sT, sXCD, sT+1, sIDX, sT, sT, sT+1))
    A("v_lshrrev_b32 v6, 3, v%d\nv_add_u32 v7, s%d, v6\nv_mul_u32_u24 v8, 1280, v7" % (vL, sT))
    A("v_and_b32 v9, 7, v%d\nv_lshl_add_u32 v8, v9, 4, v8" % vL)
    D = 64
    for i in range(10):
        A("buffer_load_dwordx4 %s, v8, %s, 0 offen offset:%d" % (V4(D+4*i), R(sX), 128*i))
    more_srds()
    A("v_lshlrev_b32 v10, 2, v%d\nv_mov_b32 v11, 0" % vL)
    A("s_lshl_b32 s%d, s2, 8\ns_add_u32 s%d, s%d, 0x%x" % (sT+1, sT+1, sT+1, ZR))
    A("buffer_store_dword v11, v10, %s, s%d offen sc1" % (R(sWS), sT+1))
    for r in (24, 25, 26, 27): A("v_mov_b32 v%d, -1" % r)
    A("v_lshlrev_b32 v10, 4, v%d\ns_mul_i32 s%d, s2, 1280\ns_add_u32 s%d, s%d, 0x%x" % (vL, sT+1, sT+1, sT+1, HALO))
    A("buffer_store_dwordx4 v[24:27], v10, %s, s%d offen sc1" % (R(sWS), sT+1))
    A("s_mov_b64 exec, 0xffff\nbuffer_store_dwordx4 v[24:27], v10, %s, s%d offen offset:1024 sc1\ns_mov_b64 exec, -1" % (R(sWS), sT+1))
    A("s_mov_b32 s%d, 0xffff0000" % (sT+2))
    s1, s2 = 12, 14
    for r in (12, 13, 14, 15): A("v_mov_b32 v%d, 0" % r)
    for i in range(10):
        A("s_waitcnt vmcnt(%d)" % (12 - i))
        for q in range(4):
            r = D + 4*i + q; t = 20 + 2*(q & 1)
            A("v_lshlrev_b32 v%d, 16, v%d\nv_and_b32 v%d, s%d, v%d" % (t, r, t+1, sT+2, r))
            A("v_pk_add_f32 %s, %s, %s" % (V2(s1), V2(s1), V2(t)))
            A("v_pk_fma_f32 %s, %s, %s, %s" % (V2(s2), V2(t), V2(t), V2(s2)))
    A("v_add_f32 v12, v12, v13\nv_add_f32 v14, v14, v15")
    for m in ("quad_perm:[1,0,3,2]", "quad_perm:[2,3,0,1]", "row_half_mirror"):
        for r in (s1, s2): A("v_add_f32_dpp v%d, v%d, v%d %s row_mask:0xf bank_mask:0xf" % (r, r, r, m))
    lnstats(s1, s2, s1+1)
    A("v_mul_f32 v12, v12, v13\nv_lshlrev_b32 v7, 3, v7\ns_mov_b32 s%d, 0x%x" % (sT+1, XS))
    A("s_mov_b32 exec_lo, 0x01010101\ns_mov_b32 exec_hi, 0x01010101")
    A("buffer_store_dwordx2 v[12:13], v7, %s, s%d offen sc1" % (R(sWS), sT+1))
    A("s_mov_b64 exec, -1")
    A("s_getreg_b32 s94, hwreg(HW_REG_XCC_ID, 0, 4)\ns_add_u32 s94, s94, 1")
    A("s_lshl_b32 s95, s%d, 5\ns_add_u32 s95, s95, s%d" % (sXCD, sIDX))
    A("v_mov_b32 v8, s95\nv_mov_b32 v9, s94")
    A("s_waitcnt vmcnt(0)")
    A("s_mov_b64 exec, 1\nbuffer_store_byte v9, v8, %s, 0 offen sc1\ns_mov_b64 exec, -1" % R(sDBG))
    stamp("pub")
    A("s_branch %s" % l3)
    A.label(l1)
    more_srds()
    A("s_cmp_lg_u32 s%d, 1\ns_cbranch_scc1 %s" % (sW, l3))
    srd(sSRC, pWPHI, 25600)
    A("v_lshlrev_b32 v6, 4, v%d\nv_add_u32 v7, 0x%x, v6\ns_mul_i32 s%d, s%d, 800" % (vL, MZ, sT, sIDX))
    A("buffer_load_dwordx4 v[12:15], v6, %s, s%d offen" % (R(sSRC), sT))
    for r in (8, 9, 10, 11): A("v_mov_b32 v%d, 0" % r)
    for i in range(3): A("ds_write_b128 v7, v[8:11] offset:%d" % (1024*i))
    A("s_waitcnt vmcnt(0)")
    A("v_cmp_gt_u32 vcc, 50, v%d\ns_and_saveexec_b64 s[96:97], vcc" % vL)
    A("ds_write_b128 v7, v[12:15] offset:2048")
    A("s_mov_b64 exec, -1")
    A.label(l3)

def stouch(pbase, soff, nbytes, off0=0):
    A("s_add_u32 s90, s%d, s%d\ns_addc_u32 s91, s%d, 0" % (pbase, soff, pbase+1))
    for o in range(off0, off0 + nbytes, 64): A("s_load_dword s99, s[90:91], 0x%x" % o)

def s1a_loader():
    A("v_lshrrev_b32 v6, 3, v%d" % vL)
    A("s_lshl_b32 s%d, s%d, 7\ns_lshl_b32 s%d, s%d, 5\ns_add_u32 s%d, s%d, s%d" % (sT+1, sRT, sT+2, sWL, sT+1, sT+1, sT+2))
    A("v_add_u32 v6, s%d, v6\nv_mul_u32_u24 v6, 1280, v6" % (sT+1))
    A("v_and_b32 v7, 7, v%d\nv_xor_b32 v7, v7, v%d" % (vL, vG))
    for i in range(4):
        A("v_xor_b32 v16, %d, v7\nv_lshl_add_u32 v%d, v16, 4, v6" % ((i & 1) << 2, 8+i))
        if i: A("v_add_u32 v%d, %d, v%d" % (8+i, i*10240 - i*1024, 8+i))
    A("s_lshl_b32 s%d, s%d, 4" % (sT+1, sWL))
    A("v_add_u32 v6, s%d, v%d\nv_mul_u32_u24 v6, 3840, v6" % (sT+1, vG))
    A("v_lshlrev_b32 v7, 2, v%d\nv_xor_b32 v7, v7, v%d\nv_lshlrev_b32 v7, 4, v7" % (vG, vTT))
    A("s_lshl_b32 s%d, s%d, 8" % (sT+1, sCT))
    A("v_add3_u32 v12, v6, v7, s%d" % (sT+1))
    for i in range(1, 4): A("v_add_u32 v%d, %d, v12" % (12+i, i*4*3840 - i*1024))
    C = sT+4
    if OPT["rot"]:
        A("s_mul_i32 s%d, s%d, 5\ns_add_u32 s%d, s%d, s%d" % (C, sPAR, C, C, sCT))
        A("s_cmp_ge_u32 s%d, 10\ns_cselect_b32 s%d, 10, 0\ns_sub_u32 s%d, s%d, s%d" % (C, sT+6, C, C, sT+6))
    else:
        A("s_mov_b32 s%d, 0" % C)
    A("s_lshl_b32 s%d, s%d, 12" % (sT+5, sWL))
    def issue(i):
        slot = (i % 4) * 32768
        A("s_lshl_b32 s%d, s%d, 7\ns_mul_i32 s%d, s%d, %d" % (sT+6, C, sT+7, C, 64*3840))
        A("s_add_u32 m0, s%d, %d" % (sT+5, slot))
        for q in range(4): A("buffer_load_dwordx4 v%d, %s, s%d offen offset:%d lds" % (8+q, R(sX), sT+6, q*1024))
        A("s_add_u32 m0, s%d, %d" % (sT+5, slot + 16384))
        for q in range(4): A("buffer_load_dwordx4 v%d, %s, s%d offen offset:%d lds" % (12+q, R(sWQ), sT+7, q*1024))
        A("s_add_u32 s%d, s%d, 1\ns_cmp_eq_u32 s%d, 10\ns_cselect_b32 s%d, 0, s%d" % (C, C, C, C, C))
    NI = OPT.get("ni", 2)
    for i in range(NI): issue(i)
    more_srds()
    stamp("H_iss")
    A("s_lshr_b32 s%d, s%d, 1\ns_lshl_b32 s%d, s%d, 1\ns_add_u32 s%d, s%d, s%d\ns_mul_i32 s%d, s%d, %d" % (sT+8, sWL, sT+9, sRT, sT+8, sT+8, sT+9, sT+8, sT+8, 4*61440))
    A("s_lshl_b32 s%d, s%d, 12\ns_add_u32 s%d, s%d, s%d\ns_and_b32 s%d, s%d, 1\ns_lshl_b32 s%d, s%d, 11" % (sT+9, sCT, sT+8, sT+8, sT+9, sT+9, sWL, sT+9, sT+9))
    A("s_add_u32 s%d, s%d, s%d\ns_add_u32 s%d, s%d, 0x%x" % (sT+8, sT+8, sT+9, sT+8, sT+8, QKV))
    issued = NI
    for i in range(10):
        A("s_waitcnt vmcnt(%d)" % ((issued - i - 1) * 8 + (1 if i == 9 else 0)))
        if i in (0, 1, 3, 6, 9): stamp("H_c%d" % i)
        A("s_barrier")
        tgt = min(10, i + 4, issued + OPT.get("nstep", 2))
        while issued < tgt:
            issue(issued); issued += 1
        if OPT.get("spt", 1) and i < 8:
            stouch(86, sT+8, 1024, off0=(i >> 1)*61440 + (i & 1)*1024)
        if i == 8: dbg_issue(36, 34)
    A("s_barrier")

U, CU, KS, RS, MT = sT+8, sT+9, sT+10, sT+11, sT+12
def rl_decode(mats):
    T1, T2 = sT+13, sT+1
    P = {"wo": pWO, "w1": pW1, "w2": pW2, "w3": pW3, "w4": pW4}; ID = {"wo": 0, "w1": 1, "w2": 2, "w3": 3, "w4": 4}
    m0 = mats[0]
    A("s_mov_b32 s%d, %d\ns_mov_b32 s%d, %d" % (MT, ID[m0], T2, UB[m0]))
    A("s_mov_b32 s%d, s%d\ns_mov_b32 s%d, s%d" % (sSRC, P[m0], sSRC+1, P[m0]+1))
    for nm in mats[1:]:
        A("s_cmp_ge_u32 s%d, %d" % (U, UB[nm]))
        A("s_cmov_b32 s%d, %d\ns_cmov_b32 s%d, %d\ns_cmov_b32 s%d, s%d\ns_cmov_b32 s%d, s%d" % (MT, ID[nm], T2, UB[nm], sSRC, P[nm], sSRC+1, P[nm]+1))
    A("s_sub_u32 s%d, s%d, s%d\ns_and_b32 s%d, s%d, 0xffff" % (T1, U, T2, sSRC+1, sSRC+1))
    A("s_mov_b32 s%d, %d\ns_mov_b32 s%d, 0x20000" % (sSRC+2, 819200 if m0 == "wo" else 1966080, sSRC+3))
    A("s_cmp_eq_u32 s%d, 3\ns_cselect_b32 s%d, 3072, 1280" % (MT, RS))
    A("s_cmp_eq_u32 s%d, 4\ns_cselect_b32 s%d, %d, %d" % (MT, T2, (1<<20)//48 + 1, (1<<20)//20 + 1))
    A("s_mul_i32 s%d, s%d, s%d\ns_lshr_b32 s%d, s%d, 20" % (CU, T1, T2, CU, CU))
    A("s_cmp_eq_u32 s%d, 4\ns_cselect_b32 s%d, 48, 20" % (MT, T2))
    A("s_mul_i32 s%d, s%d, s%d\ns_sub_u32 s%d, s%d, s%d" % (T2, CU, T2, KS, T1, T2))
def rl_issue(sst):
    A("v_lshrrev_b32 v20, 3, v%d\nv_mul_lo_u32 v20, v20, s%d" % (vL, RS))
    A("v_and_b32 v21, 7, v%d\nv_lshl_add_u32 v20, v21, 4, v20" % vL)
    A("s_mul_i32 s%d, s%d, s%d\ns_lshl_b32 s%d, s%d, 5" % (sT+13, KS, RS, sT+13, sT+13))
    A("s_lshl_b32 s%d, s%d, 7\ns_add_u32 s%d, s%d, s%d\ns_lshl_b32 s%d, s%d, 3" % (sT+1, CU, sT+13, sT+13, sT+1, sT+2, RS))
    for q in range(4):
        A("s_add_u32 m0, s%d, %d" % (sst, q*1024))
        A("buffer_load_dwordx4 v20, %s, s%d offen lds" % (R(sSRC), sT+13))
        if q < 3: A("s_add_u32 s%d, s%d, s%d" % (sT+13, sT+13, sT+2))
def rl_consts():
    for i in range(4): A("v_mov_b32 v%d, 0x3f803f80" % (24+i))
    A("v_lshlrev_b32 v28, 4, v%d\nv_lshlrev_b32 v29, 4, v%d" % (vL, vG))
    A("v_bfe_u32 v30, v%d, 2, 2\nv_lshl_add_u32 v30, v%d, 3, v30\nv_lshlrev_b32 v30, 7, v30" % (vL, vG))
    A("v_and_b32 v31, 3, v%d\nv_lshl_add_u32 v30, v31, 3, v30" % vL)
def rl_finish(sst, batch):
    A("v_add_u32 v31, s%d, v30" % sst)
    for i in range(4):
        for hh in range(2): A("ds_read_b64_tr_b16 %s, v31 offset:%d" % (V2(36+4*i+2*hh), 32*i + 512*hh))
    D, CA, T1, T2, BASE, CB = sT+2, sT+3, sT+13, sT+1, sT+4, sT+5
    w3, dn = A.newlabel("W3"), A.newlabel("DN")
    dst = [sT+14, sT+15, 92, 93]; cdst = [sT+6, sT+7, 88, 89]
    if batch == 2:
        A("s_cmp_eq_u32 s%d, 3\ns_cbranch_scc1 %s" % (MT, w3))
        A("s_mul_i32 s%d, s%d, 43\ns_lshr_b32 s%d, s%d, 8\ns_mul_i32 s%d, s%d, 6\ns_sub_u32 s%d, s%d, s%d" % (T1, KS, T1, T1, T2, T1, T2, KS, T2))
        A("s_lshl_b32 s%d, s%d, 1\ns_and_b32 s%d, s%d, 1\ns_add_u32 s%d, s%d, s%d\ns_lshr_b32 s%d, s%d, 1\ns_lshl_b32 s%d, s%d, 4\ns_add_u32 s%d, s%d, s%d" % (T1, T1, BASE, T2, T1, T1, BASE, T2, T2, T2, T2, T1, T1, T2))
        A("s_mul_i32 s%d, s%d, 5120\ns_add_u32 s%d, s%d, 0x%x" % (BASE, T1, BASE, BASE, WP + SB[6]))
    else:
        A("s_mul_i32 s%d, s%d, 5120\ns_mul_i32 s%d, s%d, 102400\ns_add_u32 s%d, s%d, s%d\ns_add_u32 s%d, s%d, 0x%x" % (BASE, KS, T1, MT, BASE, BASE, T1, BASE, BASE, WP))
        A("s_mul_i32 s%d, s%d, 2560\ns_add_u32 s%d, s%d, 0x%x" % (CB, KS, CB, CB, CSP1))
    for i in range(4):
        A("s_lshl_b32 s%d, s%d, 2\ns_add_u32 s%d, s%d, %d" % (D, CU, D, D, i))
        A("s_mul_i32 s%d, s%d, 52\ns_lshr_b32 s%d, s%d, 8\ns_mul_i32 s%d, s%d, 5\ns_sub_u32 s%d, s%d, s%d" % (T1, D, T1, T1, T2, T1, T2, D, T2))
        A("s_and_b32 s%d, s%d, 1\ns_sub_u32 s%d, s%d, s%d\ns_cmp_lt_i32 s%d, 0\ns_cselect_b32 s%d, 4, s%d" % (D, T1, T2, T2, D, T2, T2, T2))
        A("s_mul_i32 s%d, s%d, %d\ns_lshl_b32 s%d, s%d, 10\ns_add_u32 s%d, s%d, s%d\ns_add_u32 s%d, s%d, s%d" % (D, T1, WSL, CA, T2, D, D, CA, dst[i], D, BASE))
        if batch == 1:
            A("s_mul_i32 s%d, s%d, 320\ns_lshl_b32 s%d, s%d, 6\ns_add_u32 s%d, s%d, s%d\ns_add_u32 s%d, s%d, s%d" % (D, T1, CA, T2, D, D, CA, cdst[i], D, CB))
    if batch == 2:
        A("s_branch %s" % dn)
        A.label(w3)
        A("s_mul_i32 s%d, s%d, 43\ns_lshr_b32 s%d, s%d, 7\ns_mul_i32 s%d, s%d, 3\ns_sub_u32 s%d, s%d, s%d" % (T1, CU, T1, T1, T2, T1, T2, CU, T2))
        A("s_mul_i32 s%d, s%d, %d\ns_mul_i32 s%d, s%d, 81920\ns_add_u32 s%d, s%d, s%d" % (D, T1, WSL, T2, T2, D, D, T2))
        A("s_lshl_b32 s%d, s%d, 11\ns_add_u32 s%d, s%d, s%d\ns_add_u32 s%d, s%d, 0x%x" % (T2, KS, D, D, T2, dst[0], D, WP + SB[5]))
        A("s_add_u32 s%d, s%d, 1024\ns_add_u32 s%d, s%d, 40960\ns_add_u32 s%d, s%d, 41984" % (dst[1], dst[0], dst[2], dst[0], dst[3], dst[0]))
        A("s_mul_i32 s%d, s%d, 6144\ns_lshl_b32 s%d, s%d, 8\ns_add_u32 s%d, s%d, s%d\ns_add_u32 s%d, s%d, 0x%x" % (D, KS, T2, CU, D, D, T2, cdst[0], D, CSP3))
        for i in range(1, 4): A("s_add_u32 s%d, s%d, %d" % (cdst[i], cdst[0], 64*i))
        A.label(dn)
    A("s_waitcnt lgkmcnt(0)")
    for i in range(4): A("buffer_store_dwordx4 %s, v28, %s, s%d offen sc1" % (V4(36+4*i), R(sWS), dst[i]))
    nc = A.newlabel("NC")
    A("s_bitcmp1_b32 s%d, 0\ns_cbranch_scc0 %s" % (MT, nc))
    for i in range(4): A(mfma16(52+4*i, 36+4*i, 24, 0))
    A("s_mov_b32 exec_lo, 0x00010001\ns_mov_b32 exec_hi, 0x00010001")
    for i in range(4): A("buffer_store_dwordx4 %s, v29, %s, s%d offen sc1" % (V4(52+4*i), R(sWS), cdst[i]))
    A("s_mov_b64 exec, -1")
    A.label(nc)
    A("s_nop 1")

def spare_main():
    SW, STG = 63, 62
    A("s_lshl_b32 s%d, s%d, 4\ns_lshl_b32 s%d, s%d, 3\ns_add_u32 s%d, s%d, s%d\ns_add_u32 s%d, s%d, s%d" % (SW, sXCD, sT, sPAR, SW, SW, sT, SW, SW, sW))
    rl_consts()
    mats = ["wo", "w1", "w2"]
    def unit(i): A("s_add_u32 s%d, s%d, %d\ns_min_u32 s%d, s%d, 599" % (U, SW, 128*i, U, U))
    def stg(k): A("s_lshl_b32 s%d, s%d, 14\ns_add_u32 s%d, s%d, %d" % (STG, sW, STG, STG, 4096*k))
    for i in range(4):
        unit(i); rl_decode(mats); stg(i); rl_issue(STG)
    for i in range(5):
        unit(i); rl_decode(mats); stg(i % 4)
        if i == 0: A("s_waitcnt vmcnt(12)")
        else: A("s_waitcnt vmcnt(0)" if i in (1, 4) else "s_nop 0")
        rl_finish(STG, 1)
        if i == 1:
            unit(4); rl_decode(mats); stg(0); rl_issue(STG)
    dbg_issue(32, 34)
    dbg_check(32, 34, 35)
    A("v_lshlrev_b32 v20, 7, v%d\nv_add_u32 v20, s%d, v20\nv_min_u32 v20, 599, v20\nv_lshlrev_b32 v20, 2, v20\ns_mov_b32 s94, 0x%x" % (vL, SW, FW))
    A("s_mov_b64 exec, 31\nbuffer_store_dword v%d, v20, %s, s94 offen sc1\ns_mov_b64 exec, -1" % (vONE, R(sWS)))

def rl_batch2():
    sk = A.newlabel("RB")
    A("s_lshl_b32 s%d, s2, 2\ns_add_u32 s%d, s%d, s%d\ns_add_u32 s%d, s%d, 600" % (U, U, U, sW, U, U))
    A("s_cmp_ge_u32 s%d, 1560\ns_cbranch_scc1 %s" % (U, sk))
    rl_decode(["w3", "w4"])
    A("s_lshl_b32 s62, s%d, 12\ns_add_u32 s62, s62, %d" % (sW, PK))
    rl_issue(62)
    rl_consts()
    A("s_waitcnt vmcnt(0)")
    rl_finish(62, 2)
    A.label(sk)
def rl_batch2_flag():
    sk = A.newlabel("RB")
    A("s_lshl_b32 s94, s2, 2\ns_add_u32 s94, s94, s%d\ns_cmp_ge_u32 s94, 960\ns_cbranch_scc1 %s" % (sW, sk))
    A("s_lshl_b32 s94, s94, 2\ns_add_u32 s94, s94, 0x%x" % (FW + 2400))
    setflag(vZ, 94, " sc1", wait=False)
    A.label(sk)

def s1a_compute():
    ACC, CSA, SEL = 64, 128, 132
    XA, WA = 8, 16
    FB = 136
    A("s_lshr_b32 s%d, s%d, 1\ns_and_b32 s%d, s%d, 1" % (sT, sW, sT+1, sW))
    A("v_and_b32 v20, 31, v%d\nv_lshrrev_b32 v21, 5, v%d" % (vL, vL))
    A("s_lshl_b32 s%d, s%d, 13" % (sT+2, sT))
    A("v_lshlrev_b32 v22, 7, v20\nv_add_u32 v22, s%d, v22" % (sT+2))
    A("v_bfe_u32 v23, v20, 1, 3\nv_xor_b32 v23, v23, v21")
    for k in range(4):
        A("v_xor_b32 v24, %d, v23\nv_lshl_add_u32 v%d, v24, 4, v22\nv_add_u32 v%d, 0x10000, v%d" % (2*k, XA+2*k, XA+2*k+1, XA+2*k))
    A("v_bfe_u32 v24, v%d, 2, 2" % vL)
    A("v_lshl_add_u32 v25, v21, 3, v24\nv_lshlrev_b32 v25, 8, v25")
    A("v_and_b32 v26, 1, v%d\nv_lshlrev_b32 v26, 5, v26" % vG)
    A("v_and_b32 v27, 1, v%d\nv_lshl_add_u32 v26, v27, 4, v26" % vL)
    A("v_bfe_u32 v27, v%d, 1, 1\nv_lshl_add_u32 v26, v27, 3, v26" % vL)
    A("v_add_u32 v25, v25, v26\nv_add_u32 v25, 0x4000, v25")
    A("s_lshl_b32 s%d, s%d, 1\ns_add_u32 s%d, s%d, s%d" % (sT+2, sT+1, sT+2, sT+2, sT))
    for nt in range(2):
        A("s_xor_b32 s%d, s%d, %d" % (sT+3, sT+2, nt))
        A("v_xor_b32 v27, s%d, v24\nv_lshl_add_u32 v%d, v27, 6, v25\nv_add_u32 v%d, 0x10000, v%d" % (sT+3, WA+2*nt, WA+2*nt+1, WA+2*nt))
    A("v_and_b32 v27, 1, v%d\nv_cmp_eq_u32 vcc, v27, v%d\nv_mov_b32 v28, 0x3f803f80" % (vG, vTT))
    for i in range(4): A("v_cndmask_b32 v%d, 0, v28, vcc" % (SEL+i))
    for i in range(68): A("v_mov_b32 v%d, 0" % (ACC+i))
    def reads(n):
        ci, k = divmod(n, 4)
        slot = (ci % 4) * 32768; hi = slot >> 16; so = slot & 0xffff
        b = FB + 16*(n % 3)
        for mt in range(2): A("ds_read_b128 %s, v%d offset:%d" % (V4(b+4*mt), XA+2*k+hi, so + mt*4096))
        for nt in range(2):
            for hh in range(2):
                A("ds_read_b64_tr_b16 %s, v%d offset:%d" % (V2(b+8+4*nt+2*hh), WA+2*nt+hi, so + (16*k + 4*hh)*256))
    def step(n):
        b = FB + 16*(n % 3)
        for nt in range(2):
            for mt in range(2):
                a = ACC + 32*nt + 16*mt
                A("v_mfma_f32_32x32x16_bf16 v[%d:%d], %s, %s, v[%d:%d]" % (a, a+15, V4(b+8+4*nt), V4(b+4*mt), a, a+15))
        A(mfma16(CSA, b+8, SEL))
    A("s_waitcnt lgkmcnt(0)")
    stamp("s1_rdy")
    A("s_barrier")
    stamp("s1_b0")
    reads(0); reads(1)
    for n in range(40):
        ci, k = divmod(n, 4)
        if n + 2 < 40:
            if k == 2:
                A("s_waitcnt lgkmcnt(0)\ns_barrier"); reads(n+2)
            elif k == 3:
                reads(n+2)
            else:
                A("s_waitcnt lgkmcnt(6)"); reads(n+2)
        else:
            A("s_waitcnt lgkmcnt(%d)" % (6 if n == 38 else 0))
        step(n)
        if n == 16: dbg_issue(30, 32)
        if n == 30:
            dbg_check(30, 32, 33)
            A("s_lshl_b32 s%d, s%d, 7\ns_lshl_b32 s%d, s%d, 6\ns_add_u32 s%d, s%d, s%d" % (sT+2, sRT, sT+3, sT, sT+2, sT+2, sT+3))
            A("s_lshl_b32 s%d, s%d, 3\ns_add_u32 s%d, s%d, 0x%x" % (sT+3, sT+2, sT+3, sT+3, XS))
            A("v_lshlrev_b32 v30, 3, v20")
            A("buffer_load_dwordx2 v[32:33], v30, %s, s%d offen sc1" % (R(sWS), sT+3))
            A("buffer_load_dwordx2 v[34:35], v30, %s, s%d offen offset:256 sc1" % (R(sWS), sT+3))
            A("s_lshl_b32 s%d, s%d, 8\ns_add_u32 s%d, s%d, %d\ns_lshl_b32 s%d, s%d, 7" % (sT+4, sT+1, sT+4, sT+4, CS0, sT+5, sT))
            A("s_add_u32 s%d, s%d, s%d" % (sT+6, sT+4, sT+5))
            A("v_lshlrev_b32 v31, 6, v%d\nv_lshl_add_u32 v31, v%d, 4, v31\nv_add_u32 v31, s%d, v31" % (vTT, vG, sT+6))
            A("v_lshlrev_b32 v37, 4, v21\nv_add_u32 v38, s%d, v37" % (sT+6))
            A("s_xor_b32 s%d, s%d, 128\ns_add_u32 s%d, s%d, s%d" % (sT+5, sT+5, sT+6, sT+4, sT+5))
            A("v_add_u32 v39, s%d, v37" % (sT+6))
            A("v_lshrrev_b32 v40, 4, v20\nv_mul_u32_u24 v40, 61440, v40\nv_lshl_add_u32 v40, v21, 8, v40\nv_lshl_add_u32 v40, v%d, 4, v40" % vTT)
            A("s_lshr_b32 s%d, s%d, 4\ns_mul_i32 s%d, s%d, 61440\ns_add_u32 s%d, s%d, 0x%x" % (sT+2, sT+2, sT+2, sT+2, sT+2, sT+2, QKV))
            A("s_lshl_b32 s%d, s%d, 12\ns_lshl_b32 s%d, s%d, 11\ns_add_u32 s%d, s%d, s%d\ns_add_u32 s%d, s%d, s%d" % (sT+3, sCT, sT+4, sT+1, sT+2, sT+2, sT+3, sT+2, sT+2, sT+4))
            A("s_lshl_b32 s%d, s%d, 10\ns_add_u32 s%d, s%d, s%d" % (sT+3, sT, sT+4, sT+2, sT+3))
            A("s_xor_b32 s%d, s%d, 1024\ns_add_u32 s%d, s%d, s%d" % (sT+3, sT+3, sT+6, sT+2, sT+3))
            A("s_add_u32 s%d, s%d, %d\ns_add_u32 s%d, s%d, %d" % (sT+5, sT+4, 2*61440, sT+7, sT+6, 2*61440))
            A("s_lshl_b32 s%d, s%d, 1\ns_add_u32 s%d, s%d, s%d\ns_lshl_b32 s%d, s%d, 5" % (sT+8, sRT, sT+8, sT+8, sT, sT+8, sT+8))
            A("s_lshl_b32 s%d, s%d, 1\ns_add_u32 s%d, s%d, s%d\ns_add_u32 s%d, s%d, s%d\ns_lshl_b32 s%d, s%d, 2\ns_add_u32 s%d, s%d, 0x%x" % (sT+9, sCT, sT+8, sT+8, sT+9, sT+8, sT+8, sT+1, sT+8, sT+8, sT+8, sT+8, FQKV))
            A("v_mov_b32 v41, 0")
    stamp("s1_mm")
    A("s_mov_b32 exec_lo, 0x00030003\ns_mov_b32 exec_hi, 0x00030003")
    A("ds_write_b128 v31, %s" % V4(CSA))
    A("s_mov_b64 exec, -1")
    A("s_waitcnt vmcnt(0) lgkmcnt(0)\ns_barrier")
    CSR = 136
    for nt in range(2):
        for q in range(4): A("ds_read_b128 %s, v%d offset:%d" % (V4(CSR+16*nt+4*q), 38+nt, 32*q))
    for nt in range(2):
        for mt in range(2):
            a = ACC + 32*nt + 16*mt; st = 32 + 2*mt
            for i in range(0, 16, 2):
                A("v_pk_mul_f32 %s, %s, %s op_sel:[0,1] op_sel_hi:[1,1]" % (V2(a+i), V2(a+i), V2(st)))
    A("s_waitcnt lgkmcnt(0)")
    OUTR = 184
    def st(p):
        for nt in range(2):
            for mt in range(2):
                a = ACC + 32*nt + 16*mt; st = 32 + 2*mt
                for i in range(0, 16, 2):
                    A("v_pk_fma_f32 %s, %s, %s, %s op_sel_hi:[1,0,1] neg_lo:[0,1,0] neg_hi:[0,1,0]" % (V2(a+i), V2(CSR+16*nt+i), V2(st), V2(a+i)))
                o = OUTR + 8*(2*nt+mt)
                for i in range(8): A("v_cvt_pk_bf16_f32 v%d, v%d, v%d" % (o+i, a+2*i, a+2*i+1))
                for qq in range(2):
                    A("buffer_store_dwordx4 %s, v40, %s, s%d offen offset:%d%s" % (V4(o+4*qq), R(sWS), sT+4+2*nt+mt, 512*qq, p))
        setflag(41, sT+8, p)
    dual(st)

LOG2E = 1.4426950408889634
AFW, BQ, BV, P, E, PH = 64, 124, 136, 148, 168, 208
def phi_softmax(isq, mid=None):
    A("s_lshr_b32 s%d, s%d, 1\ns_mul_i32 s%d, s%d, 5\ns_lshl_b32 s%d, s%d, 1\ns_add_u32 s%d, s%d, s%d" % (sC0, sIDX, sC0, sC0, sT, sPAR, sC0, sC0, sT))
    A("v_bfe_u32 v6, v%d, 2, 2\nv_and_b32 v7, 3, v%d" % (vL, vL))
    A("s_mul_i32 s%d, s%d, 160\ns_sub_u32 s%d, %d, s%d" % (sT, sPAR, sT, WPHI + 160, sT))
    A("v_mul_u32_u24 v8, 40, v6\nv_add_u32 v8, s%d, v8\nv_mov_b32 v9, 0x%x" % (sT, MZ))
    A("v_cmp_eq_u32 vcc, v7, v%d\nv_cndmask_b32 v8, v9, v8, vcc" % vG)
    for u in range(3):
        if u: A("s_waitcnt lgkmcnt(0)")
        for tp in range(5):
            for hh in range(2):
                A("ds_read_b64_tr_b16 %s, v8 offset:%d" % (V2(AFW + 4*(5*u + tp) + 2*hh), (8*u+4*hh)*40 + 8*tp))
    A("s_lshl_b32 s%d, s%d, 2\ns_add_u32 s%d, s%d, s%d" % (sRB, sXCD, sRB, sRB, sWL))
    A("v_and_b32 v10, 1, v%d\nv_lshlrev_b32 v10, 1, v10" % vL)
    if not isq:
        A("v_bfe_u32 v11, v%d, 1, 1\nv_mul_u32_u24 v11, 80, v11\nv_add3_u32 v10, v10, v11, s%d\nv_add_u32 v10, 80, v10" % (vL, sC0))
    else:
        A("v_add_u32 v10, s%d, v10" % sC0)
    A("v_lshrrev_b32 v10, 3, v10\nv_lshlrev_b32 v10, 2, v10")
    A("s_lshl_b32 s%d, s%d, 7\ns_add_u32 s%d, s%d, 0x%x" % (sT, sRB, sT, sT, FQKV))
    A("v_mul_u32_u24 v12, 61440, v%d\nv_lshl_add_u32 v12, v%d, 4, v12" % (vG, vTT))
    A("s_mul_i32 s%d, s%d, %d\ns_lshl_b32 s%d, s%d, 8\ns_add_u32 s%d, s%d, s%d" % (sT+1, sRB, 4*61440, sT+2, sC0, sT+1, sT+1, sT+2))
    A("s_add_u32 s%d, s%d, %d\ns_add_u32 s%d, s%d, %d" % (sT+2, sT+1, QKV + 160*256, sT+1, sT+1, QKV + (0 if isq else 80*256)))
    if not isq:
        A("s_lshl_b32 s%d, s%d, 6" % (sT+3, sWL))
        A("v_add_u32 v13, s%d, v%d\nv_mul_u32_u24 v14, 48, v13\nv_add_u32 v14, 0x%x, v14" % (sT+3, vL, VV))
        A("v_mul_u32_u24 v13, 80, v13\nv_add_u32 v13, 0x%x, v13" % PK)
    poll(10, 11, sT, sleep=(1 if isq else 0))
    stamp("s1b_fl")
    for u in range(3): A("buffer_load_dwordx4 %s, v12, %s, s%d offen offset:%d sc1" % (V4(BQ+4*u), R(sWS), sT+1, 256*u))
    if not isq:
        for u in range(3): A("buffer_load_dwordx4 %s, v12, %s, s%d offen offset:%d sc1" % (V4(BV+4*u), R(sWS), sT+2, 256*u))
        lds_signal(0, 15)
    A("s_waitcnt lgkmcnt(0)")
    for u in range(3):
        A("s_waitcnt vmcnt(%d)" % ((0 if isq else 3) + 2 - u))
        for tp in range(5): A(mfma16(P+4*tp, AFW + 4*(5*u + tp), BQ+4*u, 0 if u == 0 else None))
    if not isq:
        A("s_waitcnt vmcnt(0)")
        od, dn = A.newlabel("OD"), A.newlabel("DN")
        A("s_cmp_eq_u32 s%d, 1\ns_cbranch_scc1 %s" % (sPAR, od))
        A("v_mov_b32 v%d, 0x3f80\nv_mov_b32 v%d, 0\ns_branch %s" % (BV+10, BV+11, dn))
        A.label(od)
        A("v_mov_b32 v%d, 0x3f80\nv_mov_b32 v%d, 0" % (BV, BV+1))
        A.label(dn)
        for u in range(3): A("ds_write_b128 v14, %s offset:%d" % (V4(BV+4*u), 16*u))
    if mid: mid()
    M, N = 16, 18
    A("s_mov_b32 s%d, 0x%x\ns_mov_b32 s%d, 0x%x" % (sT+2, f2u(LOG2E), sT+3, f2u(LOG2E)))
    A("v_max3_f32 v%d, v%d, v%d, v%d\nv_min3_f32 v%d, v%d, v%d, v%d" % (M, P, P+1, P+2, N, P, P+1, P+2))
    for i in range(3, 19, 2):
        A("v_max3_f32 v%d, v%d, v%d, v%d\nv_min3_f32 v%d, v%d, v%d, v%d" % (M, M, P+i, P+i+1, N, N, P+i, P+i+1))
    A("v_max_f32 v%d, v%d, v%d\nv_min_f32 v%d, v%d, v%d" % (M, M, P+19, N, N, P+19))
    A("v_mul_f32 v%d, s%d, v%d\nv_mul_f32 v%d, s%d, v%d" % (M, sT+2, M, N, sT+2, N))
    for i in range(0, 20, 2):
        A("v_pk_fma_f32 %s, %s, s[%d:%d], %s op_sel_hi:[1,1,0] neg_lo:[0,0,1] neg_hi:[0,0,1]" % (V2(E+i), V2(P+i), sT+2, sT+3, V2(M)))
        A("v_pk_fma_f32 %s, %s, s[%d:%d], %s op_sel_hi:[1,1,0] neg_lo:[1,0,0] neg_hi:[1,0,0]" % (V2(E+20+i), V2(P+i), sT+2, sT+3, V2(N)))
    for i in range(40): A("v_exp_f32 v%d, v%d" % (E+i, E+i))
    for hlf, S in ((0, M), (20, N)): A("v_pk_add_f32 %s, %s, %s" % (V2(S), V2(E+hlf), V2(E+hlf+2)))
    for i in range(4, 20, 2):
        for hlf, S in ((0, M), (20, N)): A("v_pk_add_f32 %s, %s, %s" % (V2(S), V2(S), V2(E+hlf+i)))
    A("v_add_f32 v%d, v%d, v%d\nv_add_f32 v%d, v%d, v%d" % (M, M, M+1, N, N, N+1))
    A("v_rcp_f32 v%d, v%d\nv_rcp_f32 v%d, v%d" % (M, M, N, N))
    for i in range(0, 40, 2):
        A("v_pk_mul_f32 %s, %s, %s op_sel_hi:[1,0]" % (V2(E+i), V2(E+i), V2(M if i < 20 else N)))
    for i in range(20): A("v_cvt_pk_bf16_f32 v%d, v%d, v%d" % (PH+i, E+2*i, E+2*i+1))

def s1b_k():
    A("s_setprio 1")
    phi_softmax(False)
    stamp("phi_k")
    for i in range(5): A("ds_write_b128 v13, %s offset:%d" % (V4(PH+4*i), 16*i))
    A("s_waitcnt lgkmcnt(0)")
    lds_signal(1, 15)
    skip = A.newlabel("KVS")
    A("s_cmp_eq_u32 s%d, 3\ns_cbranch_scc1 %s" % (sW, skip))
    A("v_lshl_add_u32 v8, v%d, 3, v6" % vG)
    A("s_lshl_b32 s%d, s%d, 5\ns_add_u32 s%d, s%d, %d" % (sT, sW, sT, sT, PK))
    A("v_mul_u32_u24 v9, 80, v8\nv_lshl_add_u32 v9, v7, 3, v9\nv_add_u32 v9, s%d, v9" % sT)
    A("s_lshl_b32 s%d, s%d, 3\ns_add_u32 s%d, s%d, %d" % (sT, sPAR, sT, sT, VV))
    A("v_mul_u32_u24 v10, 48, v8\nv_add_u32 v10, s%d, v10\nv_lshl_add_u32 v20, v7, 3, v10" % sT)
    A("s_mul_i32 s%d, s%d, 48\ns_sub_u32 s%d, 40, s%d" % (sT+1, sPAR, sT+1, sT+1))
    A("v_mov_b32 v12, s%d\nv_mov_b32 v21, 32\nv_cmp_eq_u32 vcc, 0, v7\nv_cndmask_b32 v12, v12, v21, vcc\nv_add_u32 v21, v12, v10" % (sT+1))
    F = 64; D0, D1 = 160, 164
    lds_wait(1, 4, 15, 16)
    stamp("s1b_B1")
    for s in range(8):
        r = F + 12*s
        for hh in range(2): A("ds_read_b64_tr_b16 %s, v9 offset:%d" % (V2(r+2*hh), (32*s+4*hh)*80))
        for k in range(2):
            for hh in range(2): A("ds_read_b64_tr_b16 %s, v%d offset:%d" % (V2(r+4+4*k+2*hh), 20+k, (32*s+4*hh)*48))
        if s >= 1:
            A("s_waitcnt lgkmcnt(6)")
            r = F + 12*(s-1)
            for k, D in ((1, D0), (2, D1)): A(mfma16(D, r+4*k, r, 0 if s == 1 else None))
    A("s_waitcnt lgkmcnt(0)")
    r = F + 84
    for k, D in ((1, D0), (2, D1)): A(mfma16(D, r+4*k, r))
    A("v_lshlrev_b32 v8, 4, v%d" % vL)
    A("s_mul_i32 s%d, s%d, 49152\ns_lshl_b32 s%d, s%d, 11\ns_add_u32 s%d, s%d, s%d\ns_add_u32 s%d, s%d, 0x%x" % (sT, sIDX, sT+1, sW, sT, sT, sT+1, sT, sT, KVP))
    A("s_mul_i32 s%d, s%d, 6144\ns_add_u32 s%d, s%d, s%d" % (sT+1, sXCD, sT+1, sT+1, sT))
    A("s_lshl_b32 s%d, s%d, 2\ns_add_u32 s%d, s%d, s%d\ns_lshl_b32 s%d, s%d, 5\ns_add_u32 s%d, s%d, 0x%x" % (sT+2, sIDX, sT+2, sT+2, sW, sT+2, sT+2, sT+2, sT+2, FKV))
    A("s_lshl_b32 s%d, s%d, 2\nv_mov_b32 v9, s%d" % (sT+3, sXCD, sT+3))
    A("buffer_store_dwordx4 %s, v8, %s, s%d offen sc1" % (V4(D0), R(sWS), sT+1))
    A("s_mov_b32 exec_hi, 0")
    A("buffer_store_dwordx4 %s, v8, %s, s%d offen offset:1024 sc1" % (V4(D1), R(sWS), sT+1))
    A("s_mov_b64 exec, -1")
    stamp("kv_st")
    setflag(9, sT+2, " sc1")
    stamp("kv_pub")
    A("v_and_b32 v9, 7, v%d\nv_lshlrev_b32 v9, 2, v9" % vL)
    A("v_and_b32 v11, 31, v%d\nv_lshlrev_b32 v11, 4, v11" % vL)
    poll(9, 10, sT+2, sleep=OPT.get("kvslp", 2))
    stamp("kv_fl")
    for x in range(8):
        for dt in range(2):
            A("buffer_load_dwordx4 %s, v%d, %s, s%d offen offset:%d sc1" % (V4(F + 8*x + 4*dt), 11 if dt else 8, R(sWS), sT, 1024*dt))
        if x < 7: A("s_add_u32 s%d, s%d, 6144" % (sT, sT))
    A("s_mul_i32 s%d, s%d, %d\ns_add_u32 s%d, s%d, %d" % (sT, sW, 16*48, sT, sT, KVT))
    A("v_mul_u32_u24 v9, 48, v%d\nv_lshl_add_u32 v9, v%d, 3, v9\nv_add_u32 v9, s%d, v9" % (vTT, vG, sT))
    for x in range(1, 8):
        A("s_waitcnt vmcnt(%d)" % (14 - 2*x))
        for i in range(0, 8, 2): A("v_pk_add_f32 %s, %s, %s" % (V2(F+i), V2(F+i), V2(F+8*x+i)))
    for i in range(4): A("v_cvt_pk_bf16_f32 v%d, v%d, v%d" % (10+i, F+2*i, F+2*i+1))
    A("ds_write_b64 v9, v[10:11]")
    A("s_mov_b32 exec_hi, 0\nds_write_b64 v9, v[12:13] offset:32\ns_mov_b64 exec, -1")
    A.label(skip)
    A("s_waitcnt lgkmcnt(0)\ns_barrier")
    stamp("s1b_B2")
    A("s_setprio 0")
    rl_batch2()
    stamp("rl2")

def pretouch():
    A("s_lshl_b32 s94, s%d, 5\ns_add_u32 s94, s94, s%d\ns_lshl_b32 s94, s94, 2\ns_add_u32 s94, s94, s%d" % (sXCD, sIDX, sWL))
    A("v_min_u32 v30, 19, v%d\nv_lshlrev_b32 v30, 7, v30\ns_mul_i32 s95, s94, 2560" % vL)
    A("buffer_load_dword v31, v30, %s, s95 offen sc1" % R(sWS))
    A("buffer_load_dword v31, v30, %s, s95 offen sc1" % R(sOUT))
    A("s_lshl_b32 s95, s94, 7\ns_add_u32 s95, s95, 0x%x\nv_mov_b32 v32, 0" % ST)
    A("buffer_load_dword v31, v32, %s, s95 offen sc1" % R(sWS))

def wtouch(mats, level):
    for p, nbytes in mats:
        srd(sT+12, p, nbytes)
        nl = nbytes // 128
        per = nl // (1024 if level == 0 else 128) + (1 if nl % (1024 if level == 0 else 128) else 0)
        if level == 0: A("s_lshl_b32 s94, s2, 2\ns_add_u32 s94, s94, s%d" % sWL)
        else: A("s_lshl_b32 s94, s%d, 2\ns_add_u32 s94, s94, s%d" % (sIDX, sWL))
        A("s_mul_i32 s94, s94, %d" % (per*128))
        for b in range(0, per, 64):
            A("v_add_u32 v30, %d, v%d\nv_min_u32 v30, %d, v30\nv_lshlrev_b32 v30, 7, v30" % (b, vL, per-1))
            A("buffer_load_dword v31, v30, %s, s94 offen" % R(sT+12))
W1_, W2_, W3_, W4_ = (pW1, 819200), (pW2, 819200), (pW3, 1966080), (pW4, 1966080)

def s1b_q():
    ld_setup()
    dbg_check(36, 34, 35)
    def mid():
        wflags(1)
        lds_wait(0, 4, 30, 31)
        stamp("wfl")
        if OPT.get("pt", 1): pretouch()
        for sg in range(5): ld_seg(sg)
        if OPT.get("wt", 1): wtouch([W3_, W4_], 0)
        stamp("w_iss")
    phi_softmax(True, mid)
    stamp("phi_q")
    A("v_mul_u32_u24 v8, 48, v6\nv_add_u32 v8, 0x%x, v8\nv_mov_b32 v9, 0x%x" % (KVT, MZ))
    A("v_cmp_eq_u32 vcc, v7, v%d\nv_cndmask_b32 v8, v9, v8, vcc" % vG)
    A("v_mul_u32_u24 v12, 20480, v%d\nv_lshl_add_u32 v12, v%d, 4, v12" % (vG, vTT))
    A("v_mov_b32 v13, 0")
    A("s_mul_i32 s%d, s%d, %d\ns_lshl_b32 s%d, s%d, 8\ns_add_u32 s%d, s%d, s%d\ns_add_u32 s%d, s%d, 0x%x" % (sT+1, sRB, 4*20480, sT+2, sC0, sT+1, sT+1, sT+2, sT+1, sT+1, OH))
    A("s_lshl_b32 s%d, s%d, 5\ns_add_u32 s%d, s%d, s%d\ns_lshl_b32 s%d, s%d, 2\ns_add_u32 s%d, s%d, 0x%x" % (sT+2, sRB, sT+2, sT+2, sIDX, sT+2, sT+2, sT+2, sT+2, FO))
    stamp("q_rdy")
    A("s_barrier")
    A("s_setprio 1")
    F = 64; D = 184
    order = [(u, tp) for u in range(5) for tp in range(6)]
    def rd(n):
        u, tp = order[n]
        for hh in range(2): A("ds_read_b64_tr_b16 %s, v8 offset:%d" % (V2(F+4*n+2*hh), (8*u+4*hh)*48 + 8*tp))
    for n in range(6): rd(n)
    for n in range(30):
        if n + 6 < 30: rd(n + 6)
        A("s_waitcnt lgkmcnt(%d)" % (2*min(6, 29 - n)))
        u, tp = order[n]
        A(mfma16(D+4*tp, F+4*n, PH+4*u, 0 if u == 0 else None))
    A("v_add_f32 v16, 0x%x, v%d\nv_rcp_f32 v16, v16" % (f2u(1e-6), D+20))
    for i in range(0, 20, 2): A("v_pk_mul_f32 %s, %s, v[16:17] op_sel_hi:[1,0]" % (V2(D+i), V2(D+i)))
    for i in range(10): A("v_cvt_pk_bf16_f32 v%d, v%d, v%d" % (20+i, D+2*i, D+2*i+1))
    def st(p):
        od, dn = A.newlabel("OD"), A.newlabel("DN")
        A("s_cmp_eq_u32 s%d, 1\ns_cbranch_scc1 %s" % (sPAR, od))
        A("buffer_store_dwordx4 v[20:23], v12, %s, s%d offen%s" % (R(sWS), sT+1, p))
        A("buffer_store_dwordx4 v[24:27], v12, %s, s%d offen offset:256%s" % (R(sWS), sT+1, p))
        A("buffer_store_dwordx2 v[28:29], v12, %s, s%d offen offset:512%s" % (R(sWS), sT+1, p))
        A("s_branch %s" % dn)
        A.label(od)
        A("buffer_store_dwordx2 v[20:21], v12, %s, s%d offen offset:8%s" % (R(sWS), sT+1, p))
        A("buffer_store_dwordx4 v[22:25], v12, %s, s%d offen offset:256%s" % (R(sWS), sT+1, p))
        A("buffer_store_dwordx4 v[26:29], v12, %s, s%d offen offset:512%s" % (R(sWS), sT+1, p))
        A.label(dn)
        setflag(13, sT+2, p)
    dual(st)
    A("s_setprio 0")
    stamp("o_end")

vLD = 5
def ld_setup():
    A("s_mul_i32 s%d, s%d, %d\ns_add_u32 s%d, s%d, 0x%x" % (sWB, sJ, WSL, sWB, sWB, WP))
    A("s_mul_i32 s%d, s%d, 5120" % (sLW, sWL))
    A("v_lshlrev_b32 v%d, 4, v%d\nv_add_u32 v%d, s%d, v%d" % (vLD, vL, vLD, sLW, vLD))
def ld_seg(sg):
    l = (sg % 7) * SEG
    A("s_add_u32 s94, s%d, %d\ns_add_u32 m0, s%d, %d" % (sWB, sg*SEG, sLW, l))
    for q in range(4): A("buffer_load_dwordx4 v%d, %s, s94 offen offset:%d sc1 lds" % (vLD, R(sWS), 1024*q))
    A("s_add_u32 s94, s94, 4096\ns_add_u32 m0, s%d, %d" % (sLW, l + 4096))
    A("buffer_load_dwordx4 v%d, %s, s94 offen sc1 lds" % (vLD, R(sWS)))
def wflags(batch):
    t = sT+4
    A("s_mul_i32 s%d, s%d, 5\ns_lshr_b32 s%d, s%d, 2" % (t, sJ, t, t))
    if batch == 1:
        A("s_mul_i32 s%d, s%d, 80\ns_add_u32 s%d, s%d, 0x%x" % (t+1, t, t+1, t+1, FW))
        A("v_min_u32 v30, 39, v%d\nv_lshlrev_b32 v30, 2, v30" % vL)
        def ld():
            for i in range(3): A("buffer_load_dword v%d, v30, %s, s%d offen offset:%d sc1" % (32+i, R(sWS), t+1, 800*i))
    else:
        A("s_mul_i32 s%d, s%d, 240\ns_add_u32 s%d, s%d, 0x%x" % (t+2, sJ, t+2, t+2, FW + UB["w3"]*4))
        A("s_mul_i32 s%d, s%d, 192\ns_add_u32 s%d, s%d, 0x%x" % (t+3, t, t+3, t+3, FW + UB["w4"]*4))
        A("v_min_u32 v31, 59, v%d\nv_lshlrev_b32 v31, 2, v31\nv_min_u32 v30, 47, v%d\nv_lshlrev_b32 v30, 3, v30" % (vL, vL))
        def ld():
            A("buffer_load_dword v34, v31, %s, s%d offen sc1" % (R(sWS), t+2))
            A("buffer_load_dwordx2 v[32:33], v30, %s, s%d offen sc1" % (R(sWS), t+3))
    spin(ld, lambda: A("v_min3_u32 v32, v32, v33, v34\nv_cmp_eq_u32 vcc, 0, v32"), sleep=4)
def cs_reduce(base, ncol, rowb, dst):
    va, vd = 30, 32
    A("s_lshl_b32 s%d, s%d, 6" % (sT, sWL))
    A("v_add_u32 v%d, s%d, v%d\nv_min_u32 v%d, %d, v%d\nv_lshlrev_b32 v%d, 2, v%d" % (va, sT, vL, va, ncol-1, va, va, va))
    A("s_mul_i32 s%d, s%d, %d\ns_add_u32 s%d, s%d, 0x%x" % (sT, sJ, ncol*4, sT, sT, base))
    for s in range(20):
        A("buffer_load_dword v%d, v%d, %s, s%d offen sc1" % (vd+s, va, R(sWS), sT))
        if s < 19: A("s_add_u32 s%d, s%d, %d" % (sT, sT, rowb))
    def fin(n):
        A("s_waitcnt vmcnt(%d)" % n)
        for s in range(1, 20): A("v_add_f32 v%d, v%d, v%d" % (vd, vd, vd+s))
        A("v_add_u32 v%d, 0x%x, v%d\nds_write_b32 v%d, v%d\ns_waitcnt lgkmcnt(0)" % (va, dst, va, va, vd))
    return fin

SCHED = [(0, 5, 5), (3, 5, 10), (5, 10, 10), (8, 10, 15), (10, 15, 15), (13, 15, 20),
         (15, 18, 20), (17, 20, 24), (19, 22, 26), (21, 24, 28), (23, 26, 30), (25, 28, 32),
         (27, 30, 34), (29, 32, 36), (31, 34, 38), (33, 36, 39), (35, 39, 39)]
def loader_main():
    issued = 5
    for (free, full, upto) in SCHED:
        assert full <= issued and upto <= free + 7
        A("s_waitcnt vmcnt(%d)" % min(63, (issued - full) * 5))
        if free < 19 or free in (25, 27, 31, 35): stamp("H_%d" % free)
        A("s_barrier")
        fin = None
        if free == 3: fin = cs_reduce(CSP1, 80, 2560, CS1)
        if free == 8:
            wflags(2); fin = cs_reduce(CSP3, 192, 6144, CS3)
        while issued < upto:
            ld_seg(issued); issued += 1
        if fin: fin(25)

vAF, vAS, vST, vSH, vRM, vRMH, vZ = 5, 6, 7, 8, 9, 10, 11
vWB = 12
vHP = 17
vMEAN, vRSTD, vSC = 18, 19, 20
vGC0 = 22
ACC = 24
WBUF = 44
HRES = 100
AFR = 120
vS4 = 200
TMP = 204
PKR = TMP + 16
LA = 13
EVEN = "s_mov_b32 exec_lo, 0xffff\ns_mov_b32 exec_hi, 0xffff"

def c_setup():
    A("s_and_b32 s%d, s%d, 3\ns_lshl_b32 s%d, s%d, 2\ns_add_u32 s%d, s%d, s%d" % (sRB, sIDX, sT, sXCD, sRB, sRB, sT))
    A("s_lshl_b32 s%d, s%d, 2\ns_add_u32 s%d, s%d, s%d" % (sTT, sRB, sTT, sTT, sW))
    A("s_lshr_b32 s%d, s%d, 1\ns_mul_i32 s%d, s%d, 5\ns_and_b32 s%d, s%d, 1" % (sT, sJ, sT, sT, sPAR, sJ))
    A("s_mul_i32 s%d, s%d, 3\ns_add_u32 s%d, s%d, s%d" % (sS0, sPAR, sS0, sS0, sT))
    A("s_lshl_b32 s%d, s%d, 10" % (sAOFF, sS0))
    A("s_add_u32 s%d, s%d, 2\ns_lshl_b32 s%d, s%d, 10\ns_lshl_b32 s%d, s%d, 9\ns_add_u32 s%d, s%d, s%d" % (sT+2, sT, sHOFF, sT+2, sT+3, sPAR, sHOFF, sHOFF, sT+3))
    A("v_lshlrev_b32 v%d, 4, v%d" % (vAF, vL))
    t = TMP
    A("v_and_b32 v%d, 1, v%d\nv_lshrrev_b32 v%d, 1, v%d\nv_lshl_add_u32 v%d, v%d, 1, v%d" % (t+4, vG, t+5, vG, t+4, t+4, t+5))
    A("v_lshlrev_b32 v%d, 4, v%d\nv_lshl_add_u32 v%d, v%d, 8, v%d\nv_lshl_add_u32 v%d, v%d, 8, v%d" % (t+6, vTT, vAS, t+4, t+6, vSH, t+5, t+6))
    A("v_lshlrev_b32 v%d, 6, v%d\nv_lshl_add_u32 v%d, v%d, 2, v%d" % (vST, t+5, vST, vTT, vST))
    A("s_lshl_b32 s%d, s%d, 4" % (sT+1, sTT))
    A("v_add_u32 v%d, s%d, v%d\nv_mul_u32_u24 v%d, 1280, v%d" % (t, sT+1, vTT, t+1, t))
    A("s_lshl_b32 s%d, s%d, 6" % (sT+3, sS0))
    A("v_lshl_add_u32 v%d, v%d, 4, v%d\nv_add_u32 v%d, s%d, v%d" % (vRM, t+4, t+1, vRM, sT+3, vRM))
    A("s_lshl_b32 s%d, s%d, 6\ns_lshl_b32 s%d, s%d, 5\ns_add_u32 s%d, s%d, s%d" % (sT+2, sT+2, sT+3, sPAR, sT+2, sT+2, sT+3))
    A("v_lshl_add_u32 v%d, v%d, 3, v%d\nv_add_u32 v%d, s%d, v%d" % (vRMH, vG, t+1, vRMH, sT+2, vRMH))
    A("v_mov_b32 v%d, 0" % vZ)
    A("s_lshr_b32 s%d, s%d, 4" % (sT+4, sTT))
    for q, dl in enumerate((-1, 1, -2, 2)):
        r = vS4 + q
        A("v_add_u32 v%d, %d, v%d\nv_lshrrev_b32 v%d, 4, v%d" % (t+2, dl, t, r, t+2))
        A("v_lshrrev_b32 v%d, 4, v%d\nv_and_b32 v%d, 1, v%d\nv_lshl_add_u32 v%d, v%d, 1, v%d" % (t+3, r, t+7, r, t+7, t+3, t+7))
        A("v_add_u32 v%d, %d, v%d\nv_cmp_eq_u32 vcc, s%d, v%d\nv_cndmask_b32 v%d, v%d, v%d, vcc" % (t+7, (HALO - OH)//20480, t+7, sT+4, t+3, r, t+7, r))
        A("v_mul_u32_u24 v%d, 20480, v%d" % (r, r))
        A("v_and_b32 v%d, 15, v%d\nv_lshl_add_u32 v%d, v%d, 4, v%d\nv_lshl_add_u32 v%d, v%d, 8, v%d" % (t+3, t+2, r, t+3, r, r, vG, r))
        A("v_bfrev_b32 v%d, 1\nv_cmp_gt_u32 vcc, 0x800, v%d\nv_cndmask_b32 v%d, v%d, v%d, vcc" % (t+3, t+2, r, t+3, r))
    A("s_and_b32 s%d, s%d, 15\ns_mov_b32 s%d, 0" % (sT+5, sTT, sEDGE))
    A("s_cmp_eq_u32 s%d, 0\ns_cselect_b32 s%d, 1, s%d\ns_cmp_eq_u32 s%d, 15\ns_cselect_b32 s%d, 2, s%d" % (sT+5, sEDGE, sEDGE, sT+5, sEDGE, sEDGE))
    A("s_cmp_eq_u32 s%d, 0\ns_cselect_b32 s%d, 0, s%d\ns_cmp_eq_u32 s%d, 127\ns_cselect_b32 s%d, 0, s%d" % (sTT, sEDGE, sEDGE, sTT, sEDGE, sEDGE))
    A("v_min_u32 v%d, 59, v%d\nv_mul_u32_u24 v%d, 205, v%d\nv_lshrrev_b32 v%d, 12, v%d" % (t+2, vL, t+3, t+2, t+3, t+3))
    A("v_mul_u32_u24 v%d, 20, v%d\nv_sub_u32 v%d, v%d, v%d" % (t+7, t+3, t+2, t+2, t+7))
    A("v_min_u32 v%d, 1, v%d\nv_mul_u32_u24 v%d, 40, v%d\nv_add_u32 v%d, v%d, v%d\nv_lshlrev_b32 v%d, 8, v%d" % (t+7, t+3, t+7, t+7, t+2, t+2, t+7, t+2, t+2))
    A("v_lshrrev_b32 v%d, 1, v%d\nv_lshlrev_b32 v%d, 4, v%d" % (t+3, t+3, t+3, t+3))
    A("s_cmp_eq_u32 s%d, 1\ns_cselect_b32 s%d, 240, 0" % (sEDGE, sT+5))
    A("v_xor_b32 v%d, s%d, v%d\nv_add_u32 v%d, v%d, v%d" % (t+3, sT+5, t+3, vHP, t+2, t+3))
    A("s_mul_i32 s%d, s%d, 40960\ns_add_u32 s%d, s%d, 0x%x" % (sT+5, sT+4, sT+5, sT+5, HALO - 20480))
    A("s_cmp_eq_u32 s%d, 2\ns_cselect_b32 s%d, %d, 0\ns_add_u32 s%d, s%d, s%d" % (sEDGE, sT+6, 3*20480 + 20*256, sT+5, sT+5, sT+6))
    A("s_cmp_eq_u32 s%d, 0\ns_cselect_b32 s%d, 0x80000000, s%d" % (sEDGE, sT+5, sT+5))
    A("v_add_u32 v%d, s%d, v%d" % (vHP, sT+5, vHP))
    A("v_mov_b32 v%d, v%d\nv_add_u32 v%d, 0x10000, v%d\nv_add_u32 v%d, 0x20000, v%d" % (vWB, vAF, vWB+1, vAF, vWB+2, vAF))
assert (HALO - OH) % 20480 == 0

def wread(dst, off):
    a = off % RING
    return ["ds_read_b128 %s, v%d offset:%d" % (V4(dst), vWB + (a >> 16), a & 0xffff)]
NB = 14
def stream_pre(fr):
    for n in range(LA):
        for l in wread(WBUF + 4*(n % NB), *fr[n][0]): A(l)
FILLRATE = 2
def stream(fr, G, aload, apre, bars, fill, gates=()):
    N = len(fr); na = max(f[3] for f in fr) + 1
    gates = list(gates)
    st = dict(ai=0)
    def issue_to(x):
        lim = gates[0][0] if gates else na
        while st["ai"] < min(lim, x):
            for l in aload(st["ai"]): A(l)
            st["ai"] += 1
    issue_to(apre)
    pend = []; waited = -1
    for n in range(N):
        if n in bars: A("s_barrier")
        if gates and n == gates[0][1]:
            assert st["ai"] == gates[0][0]
            gates[0][3]()
        if gates and n == gates[0][2]:
            gates[0][4](); waited = st["ai"] - 1; gates.pop(0); issue_to(fr[n][3] + apre)
        if n % G == 0:
            hi = min(N, n + G)
            needa = max(f[3] for f in fr[n:hi])
            w = "lgkmcnt(%d)" % (min(N, n + LA) - hi)
            assert st["ai"] > needa
            if needa > waited:
                w = "vmcnt(%d) " % (st["ai"] - 1 - needa) + w; waited = needa
            A("s_waitcnt " + w)
        ws, acc, ar, aidx, z = fr[n]
        A(mfma16(acc, WBUF + 4*(n % NB), ar, 0 if z else None))
        if n + LA < N:
            for l in wread(WBUF + 4*((n + LA) % NB), *fr[n+LA][0]): A(l)
        if n + 1 < N and fr[n+1][3] > aidx: issue_to(aidx + 1 + apre)
        if n in fill: pend += fill[n]
        k = FILLRATE if n + 1 < N else len(pend)
        for l in pend[:k]: A(l)
        pend = pend[k:]

def mk_aload(afr, nring, srdb, voff=None, kmap=None):
    def f(s):
        v = vAF if voff is None else voff + s // 5
        r = afr + 4*(s % nring)
        if kmap is None:
            o = ["buffer_load_dwordx4 %s, v%d, %s, s%d offen offset:%d sc1" % (V4(r), v, R(srdb), sAB, (s & 3)*1024)]
            if s & 3 == 3: o.append("s_add_u32 s%d, s%d, 4096" % (sAB, sAB))
        else:
            o = []
            if s & 1 == 0: o.append("s_add_u32 s93, s%d, %d" % (sAB, kmap(s)*1024))
            o.append("buffer_load_dwordx4 %s, v%d, %s, s93 offen offset:%d sc1" % (V4(r), v, R(srdb), (s & 1)*1024))
        return o
    return f
def abase(base, tstride):
    if tstride: A("s_mul_i32 s%d, s%d, %d\ns_add_u32 s%d, s%d, 0x%x" % (sAB, sTT, tstride, sAB, sAB, base))
    else: A("s_mov_b32 s%d, 0x%x" % (sAB, base))
def frags5(stage, nks, afr, nring, zero=False):
    return [((SB[stage] + s*5120 + t*1024,), ACC + 4*t, afr + 4*(s % nring), s, zero and s == 0) for s in range(nks) for t in range(5)]
def pre_bar(fr):
    A("s_waitcnt lgkmcnt(0)\ns_barrier"); stream_pre(fr)
def flag8(fbase, dst):
    A("s_lshl_b32 s%d, s%d, 5\ns_add_u32 s%d, s%d, 0x%x" % (dst, sTT, dst, dst, fbase))
def poll8(fbase):
    flag8(fbase, sT+1)
    A("v_and_b32 v%d, 7, v%d\nv_lshlrev_b32 v%d, 2, v%d" % (TMP, vL, TMP, TMP))
    poll(TMP, TMP+1, sT+1)
def swaps(pk, npair):
    for p in range(npair):
        A("v_permlane16_swap_b32 v%d, v%d\nv_permlane16_swap_b32 v%d, v%d" % (pk+4*p, pk+4*p+2, pk+4*p+1, pk+4*p+3))
def pack10(src, dst):
    for i in (8, 9): A("v_cvt_pk_bf16_f32 v%d, v%d, v%d\nv_cvt_pk_bf16_f32 v%d, v%d, v%d" % (dst+i, src+2*i, src+2*i+1, dst+i+2, src+2*i, src+2*i+1))
    for i in range(8): A("v_cvt_pk_bf16_f32 v%d, v%d, v%d" % (dst+i, src+2*i, src+2*i+1))
    A("v_permlane16_swap_b32 v%d, v%d\nv_permlane16_swap_b32 v%d, v%d" % (dst+8, dst+10, dst+9, dst+11))
    swaps(dst, 2)
def af_stores(pk, srdb, s0, s1, p, mask=None):
    if mask: A(mask[0])
    A("buffer_store_dwordx4 %s, v%d, %s, s%d offen%s" % (V4(pk), vAS, R(srdb), s0, p))
    A("buffer_store_dwordx4 %s, v%d, %s, s%d offen offset:1024%s" % (V4(pk+4), vAS, R(srdb), s0, p))
    A(mask[1] if mask else EVEN)
    A("buffer_store_dwordx4 %s, v%d, %s, s%d offen%s" % (V4(pk+8), vSH, R(srdb), s1, p))
    A("s_mov_b64 exec, -1")
def store_pre(base, fbase, stats):
    A("s_mul_i32 s%d, s%d, 20480\ns_add_u32 s%d, s%d, 0x%x" % (sT+8, sTT, sT+8, sT+8, base))
    A("s_add_u32 s%d, s%d, s%d\ns_add_u32 s%d, s%d, s%d" % (sT+9, sT+8, sHOFF, sT+8, sT+8, sAOFF))
    A("s_lshl_b32 s%d, s%d, 3\ns_add_u32 s%d, s%d, s%d" % (sT+10, sTT, sT+10, sT+10, sJ))
    if stats: A("s_lshl_b32 s%d, s%d, 7\ns_add_u32 s%d, s%d, 0x%x" % (sT+11, sT+10, sT+11, sT+11, ST))
    A("s_lshl_b32 s%d, s%d, 2\ns_add_u32 s%d, s%d, 0x%x" % (sT+10, sT+10, sT+10, sT+10, fbase))
def store_af(pk, srdb, stats):
    def st(p):
        af_stores(pk, srdb, sT+8, sT+9, p)
        if stats:
            stats_partial(ACC, TMP+12)
            A("buffer_store_dword v%d, v%d, %s, s%d offen%s" % (TMP+12, vST, R(sWS), sT+11, p))
        setflag(vZ, sT+10, p)
    dual(st)
def stats_partial(src, t):
    a, b = t, t+2
    A("v_pk_add_f32 %s, %s, %s" % (V2(a), V2(src), V2(src+2)))
    A("v_pk_mul_f32 %s, %s, %s" % (V2(b), V2(src), V2(src)))
    for i in range(2, 20, 2):
        if i > 2: A("v_pk_add_f32 %s, %s, %s" % (V2(a), V2(a), V2(src+i)))
        A("v_pk_fma_f32 %s, %s, %s, %s" % (V2(b), V2(src+i), V2(src+i), V2(b)))
    A("v_add_f32 v%d, v%d, v%d\nv_add_f32 v%d, v%d, v%d" % (a, a, a+1, b, b, b+1))
    A("v_permlane32_swap_b32 v%d, v%d\nv_add_f32 v%d, v%d, v%d\nv_mov_b32 v%d, v%d" % (a, b, a, a, b, b, a))
    A("v_permlane16_swap_b32 v%d, v%d\nv_add_f32 v%d, v%d, v%d" % (a, b, a, a, b))
def stats_load():
    A("s_lshl_b32 s%d, s%d, 10\ns_add_u32 s%d, s%d, 0x%x" % (sT+1, sTT, sT+1, sT+1, ST))
    for i in range(4):
        A("buffer_load_dword v%d, v%d, %s, s%d offen offset:%d sc1" % (TMP+4+i, TMP+2, R(sWS), sT+1, 64*i))
def stats_addr():
    A("v_lshlrev_b32 v%d, 8, v%d\nv_lshl_add_u32 v%d, v%d, 2, v%d" % (TMP+2, vG, TMP+2, vTT, TMP+2))
def stats_finish():
    a, b = TMP+4, TMP+5
    A("v_add_f32 v%d, v%d, v%d\nv_add_f32 v%d, v%d, v%d" % (a, a, TMP+6, b, b, TMP+7))
    A("v_permlane32_swap_b32 v%d, v%d\nv_add_f32 v%d, v%d, v%d\nv_mov_b32 v%d, v%d" % (a, b, a, a, b, b, a))
    A("v_permlane16_swap_b32 v%d, v%d\nv_add_f32 v%d, v%d, v%d\nv_mov_b32 v%d, v%d" % (a, b, a, a, b, b, a))
    A("v_permlane32_swap_b32 v%d, v%d" % (a, b))
    lnstats(a, b, vRSTD)
    A("v_mov_b32 v%d, v%d" % (vMEAN, a))
GC0 = -2*0.7978845608028654*LOG2E
GC1 = GC0*0.044715
def gelu(src, n, t, sc, cs):
    for i in range(0, n, 2): A("v_pk_fma_f32 %s, %s, %s, %s op_sel_hi:[1,0,1]" % (V2(src+i), V2(src+i), V2(sc), V2(cs+i)))
    for i in range(0, n, 2): A("v_pk_mul_f32 %s, %s, %s" % (V2(t+i), V2(src+i), V2(src+i)))
    for i in range(0, n, 2): A("v_pk_fma_f32 %s, %s, s[%d:%d], %s op_sel_hi:[1,1,0]" % (V2(t+i), V2(t+i), sK, sK+1, V2(vGC0)))
    for i in range(0, n, 2): A("v_pk_mul_f32 %s, %s, %s" % (V2(t+i), V2(t+i), V2(src+i)))
    for i in range(n): A("v_exp_f32 v%d, v%d" % (t+i, t+i))
    for i in range(0, n, 2): A("v_pk_add_f32 %s, %s, 1.0 op_sel_hi:[1,0]" % (V2(t+i), V2(t+i)))
    for i in range(n): A("v_rcp_f32 v%d, v%d" % (t+i, t+i))
    for i in range(0, n, 2): A("v_pk_mul_f32 %s, %s, %s" % (V2(src+i), V2(src+i), V2(t+i)))
def scale_cs(cs, n):
    for i in range(0, n, 2):
        A("v_pk_mul_f32 %s, %s, %s op_sel:[0,1] op_sel_hi:[1,1] neg_lo:[0,1] neg_hi:[0,1]" % (V2(cs+i), V2(cs+i), V2(vSC)))

APRE = OPT.get("apre", 14)
GW = OPT.get("gw", 5)
def c_main():
    c_setup()
    A("s_mov_b32 s%d, 0x%x\ns_mov_b32 s%d, 0x%x\nv_mov_b32 v%d, 0x%x" % (sK, f2u(GC1), sK+1, f2u(GC1), vGC0, f2u(GC0)))
    A("s_mov_b32 s%d, 0xffff0000" % (sK+2))
    CSV = TMP + 28
    A("buffer_load_dwordx4 %s, v%d, %s, 0 offen" % (V4(PKR), vRM, R(sX)))
    A("buffer_load_dwordx4 %s, v%d, %s, 0 offen offset:64" % (V4(PKR+4), vRM, R(sX)))
    A("buffer_load_dwordx2 %s, v%d, %s, 0 offen" % (V2(PKR+8), vRMH, R(sX)))
    stats_addr()
    A("s_lshl_b32 s%d, s%d, 7\ns_add_u32 s%d, s%d, 0x%x" % (sT+1, sRB, sT+1, sT+1, FO))
    A("v_and_b32 v%d, 31, v%d\nv_lshlrev_b32 v%d, 2, v%d" % (TMP, vL, TMP, TMP))
    abase(OH, 20480)
    store_pre(0, FH, True)
    A("s_waitcnt vmcnt(0)")
    rl_batch2_flag()
    swaps(PKR, 2)
    for i in range(10):
        A("v_lshlrev_b32 v%d, 16, v%d\nv_and_b32 v%d, s%d, v%d" % (ACC+2*i, PKR+i, ACC+2*i+1, sK+2, PKR+i))
    fr = frags5(2, 20, AFR, 20)
    pre_bar(fr)
    poll(TMP, TMP+1, sT+1)
    stamp("s2_fl")
    stream(fr, GW, mk_aload(AFR, 20, sWS), APRE, {60}, {})
    stamp("s2_mm")
    pack10(ACC, PKR)
    store_af(PKR, sOUT, True)
    stamp("s2_end")
    for i in range(20): A("v_mov_b32 v%d, v%d" % (HRES+i, ACC+i))
    A("v_lshlrev_b32 v%d, 4, v%d\nv_add_u32 v%d, 0x%x, v%d" % (TMP+3, vG, TMP+3, CS1, TMP+3))
    abase(0, 20480)
    store_pre(OH, FHH, False)
    e = sT+12
    A("s_lshr_b32 s%d, s%d, 4\ns_lshl_b32 s%d, s%d, 1\ns_add_u32 s%d, s%d, s%d\ns_mul_i32 s%d, s%d, 20480" % (e, sTT, e, e, e, e, sEDGE, e, e))
    A("s_add_u32 s%d, s%d, 0x%x\ns_add_u32 s%d, s%d, s%d\ns_add_u32 s%d, s%d, s%d" % (e, e, HALO - 20480, e+1, e, sHOFF, e, e, sAOFF))
    A("s_cmp_eq_u32 s%d, 1\ns_mov_b32 s%d, 0xc000c000\ns_cmov_b32 s%d, 0x00030003\ns_and_b32 s%d, s%d, 0xffff" % (sEDGE, e+2, e+2, e+3, e+2))
    fr = frags5(3, 20, AFR, 20, zero=True)
    pre_bar(fr)
    poll8(FH)
    stamp("s3_fl")
    stats_load()
    with Capture() as cp:
        stats_finish()
        A("v_mul_f32 v%d, v%d, v%d\nv_mul_f32 v%d, v%d, v%d" % (TMP+6, vRSTD, vRSTD, TMP+6, TMP+6, TMP+5))
        A("v_add_f32 v%d, 0x%x, v%d\nv_rsq_f32 v%d, v%d\nv_mul_f32 v%d, v%d, v%d" % (TMP+6, f2u(1e-5), TMP+6, TMP+6, TMP+6, vSC, TMP+6, vRSTD))
        A("v_mul_f32 v%d, v%d, v%d" % (vSC+1, vSC, vMEAN))
    fill = {5: cp.out}
    for t in range(5): fill[20 + 5*t] = ["ds_read_b128 %s, v%d offset:%d" % (V4(CSV+4*t), TMP+3, 64*t)]
    with Capture() as cp: scale_cs(CSV, 20)
    fill[62] = cp.out
    stream(fr, GW, mk_aload(AFR, 20, sOUT), APRE, {60}, fill)
    stamp("s3_mm")
    gelu(ACC, 20, WBUF, vSC, CSV)
    pack10(ACC, PKR)
    stamp("s3_ge")
    def st3(p):
        af_stores(PKR, sWS, sT+8, sT+9, p)
        ne, dn = A.newlabel("NE"), A.newlabel("DN")
        A("s_cmp_eq_u32 s%d, 0\ns_cbranch_scc1 %s" % (sEDGE, ne))
        af_stores(PKR, sWS, sT+12, sT+13, " sc1", mask=("s_mov_b32 exec_lo, s%d\ns_mov_b32 exec_hi, s%d" % (sT+14, sT+14), "s_mov_b32 exec_lo, s%d\ns_mov_b32 exec_hi, s%d" % (sT+15, sT+15)))
        A("s_waitcnt vmcnt(3)\ns_branch %s" % dn)
        A.label(ne)
        A("s_waitcnt vmcnt(0)")
        A.label(dn)
        setflag(vZ, sT+10, p, wait=False)
    dual(st3)
    stamp("s3_end")
    A("v_mul_f32 v%d, v%d, v%d" % (vMEAN, vMEAN, vRSTD))
    for i in range(0, 20, 2):
        A("v_pk_fma_f32 %s, %s, %s, %s op_sel:[0,1,0] op_sel_hi:[1,1,0] neg_lo:[0,0,1] neg_hi:[0,0,1]" % (V2(ACC+i), V2(HRES+i), V2(vMEAN), V2(vMEAN)))
    A("s_lshl_b32 s%d, s%d, 3\ns_sub_u32 s%d, s%d, 8\ns_and_b32 s%d, s%d, 0x380\ns_add_u32 s%d, s%d, 127" % (sT+2, sTT, sT+1, sT+2, sT+2, sT+2, sT+3, sT+2))
    A("v_min_u32 v%d, 23, v%d\nv_add_u32 v%d, s%d, v%d\nv_max_i32 v%d, s%d, v%d\nv_min_i32 v%d, s%d, v%d\nv_lshlrev_b32 v%d, 2, v%d" % (TMP, vL, TMP, sT+1, TMP, TMP, sT+2, TMP, TMP, sT+3, TMP, TMP, TMP))
    A("s_mov_b32 s%d, 0x%x" % (sT+1, FHH))
    abase(OH, 0)
    store_pre(0, FX1, True)
    fr = frags5(4, 20, AFR, 20)
    pre_bar(fr)
    def lds_():
        A("buffer_load_dword v%d, v%d, %s, s%d offen sc1" % (TMP+1, TMP, R(sWS), sT+1))
        A("buffer_load_dword v%d, v%d, %s, 0 offen sc1" % (TMP+4, vHP, R(sWS)))
    def cond_():
        A("v_not_b32 v%d, v%d\nv_min_u32 v%d, v%d, v%d\nv_cmp_eq_u32 vcc, 0, v%d" % (TMP+4, TMP+4, TMP+1, TMP+1, TMP+4, TMP+1))
    spin(lds_, cond_)
    stamp("s4_fl")
    stream(fr, GW, mk_aload(AFR, 20, sWS, voff=vS4), APRE, {60}, {})
    stamp("s4_mm")
    pack10(ACC, PKR)
    store_af(PKR, sOUT, True)
    stamp("s4_end")
    for i in range(0, 20, 2): A("v_pk_add_f32 %s, %s, %s" % (V2(HRES+i), V2(HRES+i), V2(ACC+i)))
    A("v_lshlrev_b32 v%d, 4, v%d\nv_add_u32 v%d, 0x%x, v%d" % (TMP+3, vG, TMP+3, CS3, TMP+3))
    abase(0, 20480)
    A("s_mul_i32 s%d, s%d, 61440\ns_mul_i32 s%d, s%d, 6144\ns_add_u32 s%d, s%d, s%d\ns_add_u32 s%d, s%d, 0x%x" % (sT+8, sTT, sT+9, sJ, sT+8, sT+8, sT+9, sT+8, sT+8, G_))
    A("s_add_u32 s%d, s%d, 4096" % (sT+9, sT+8))
    A("s_lshl_b32 s%d, s%d, 3\ns_add_u32 s%d, s%d, s%d\ns_lshl_b32 s%d, s%d, 2\ns_add_u32 s%d, s%d, 0x%x\ns_add_u32 s%d, s%d, 4096" % (sT+10, sTT, sT+10, sT+10, sJ, sT+10, sT+10, sT+10, sT+10, FG, sT+11, sT+10))
    A("s_add_u32 s%d, s%d, 4096" % (sT+12, sT+11))
    CS5, GT, GP = TMP + 8, TMP + 16, TMP + 24
    fr = [((SB[5] + p*40960 + s*2048 + t*1024,), ACC + 8*(p & 1) + 4*t, AFR + 4*s, s, s == 0) for p in range(6) for s in range(20) for t in range(2)]
    pre_bar(fr)
    poll8(FX1)
    stamp("s5_fl")
    stats_load()
    fill = {}
    with Capture() as cp:
        stats_finish()
        A("v_mov_b32 v%d, v%d\nv_mul_f32 v%d, v%d, v%d" % (vSC, vRSTD, vSC+1, vRSTD, vMEAN))
    fill[8] = cp.out
    def epi(p):
        a = ACC + 8*(p & 1); g = GP + 4*(p & 1)
        scale_cs(CS5, 8)
        gelu(a, 8, GT, vSC, CS5)
        for i in range(4): A("v_cvt_pk_bf16_f32 v%d, v%d, v%d" % (g+i, a+2*i, a+2*i+1))
        swaps(g, 1)
    def gst(p):
        dual(lambda pp: A("buffer_store_dwordx4 %s, v%d, %s, s%d offen offset:%d%s" % (V4(GP + 4*(p & 1)), vAS, R(sWS), sT+8 + (p >> 2), (p & 3)*1024, pp)))
    for p in range(6):
        fill.setdefault(40*p + 24, []).extend(["ds_read_b128 %s, v%d offset:%d" % (V4(CS5+4*t), TMP+3, 128*p + 64*t) for t in range(2)])
    for p in range(5):
        with Capture() as cp: epi(p)
        with Capture() as c2:
            if p in (2, 4): dual(lambda pp: setflag(vZ, sT+10 + (p >> 2), pp))
            gst(p)
        fill[40*(p+1) + 3] = cp.out + ["\n".join(c2.out)]
    stream(fr, 4, mk_aload(AFR, 20, sOUT), 20, set(range(40, 240, 40)), fill)
    stamp("s5_mm")
    epi(5); gst(5)
    for i in range(20): A("v_mov_b32 v%d, v%d" % (ACC+i, HRES+i))
    abase(G_, GST)
    fr = frags5(6, 48, HRES, 24)
    pre_bar(fr)
    stamp("s5_end")
    poll8(FG)
    dual(lambda pp: setflag(vZ, sT+12, pp, wait=False))
    stamp("s6_fl")
    gl = lambda: A("buffer_load_dword v%d, v%d, %s, s%d offen sc1" % (TMP+1, TMP, R(sWS), sT+1))
    def gi():
        A("s_add_u32 s%d, s%d, 4096" % (sT+1, sT+1)); gl()
    def gc():
        spin(gl, lambda: A("v_cmp_eq_u32 vcc, 0, v%d" % (TMP+1)), issued=True)
    kmap = lambda i: 6*((i >> 1) & 7) + 2*(i >> 4) + (i & 1)
    stream(fr, GW, mk_aload(HRES, 24, sWS, kmap=kmap), OPT.get("apre6", 16), {40, 80, 120, 160}, {},
           gates=[(16, 0, 35, gi, gc), (32, 85, 115, gi, gc)])
    stamp("s6_mm")
    pack10(ACC, PKR)
    A("buffer_store_dwordx4 %s, v%d, %s, 0 offen" % (V4(PKR), vRM, R(sOUT)))
    A("buffer_store_dwordx4 %s, v%d, %s, 0 offen offset:64" % (V4(PKR+4), vRM, R(sOUT)))
    A(EVEN)
    A("buffer_store_dwordx4 %s, v%d, %s, 0 offen" % (V4(PKR+8), vRMH, R(sOUT)))
    A("s_mov_b64 exec, -1")
    stamp("s6_end")

def ts_dump():
    if not OPT["ts"]: return
    A("s_waitcnt vmcnt(0)")
    stamp("fin")
    A("s_lshl_b32 s%d, s2, 3\ns_add_u32 s%d, s%d, s%d\ns_lshl_b32 s%d, s%d, 8\ns_add_u32 s%d, s%d, 0x%x" % (sT, sT, sT, sW, sT, sT, sT, sT, TS))
    A("v_lshlrev_b32 v63, 2, v%d" % vL)
    A("buffer_store_dword v253, v63, %s, s%d offen" % (R(sWS), sT))
    if OPT.get("dbgts"):
        A("s_cmp_lg_u32 s2, %d\ns_cbranch_scc1 L_end\ns_cmp_lg_u32 s%d, 0\ns_cbranch_scc1 L_end" % (OPT["dbgts"], sW))
        A("v_readlane_b32 s94, v253, 0\ns_nop 3\nv_subrev_u32 v253, s94, v253")
        A("s_mov_b64 exec, 0xffff\nbuffer_store_dword v253, v63, %s, 0 offen sc1" % R(sDBG))

def main():
    prologue()
    A("s_cmp_lt_u32 s%d, 4\ns_cbranch_scc1 L_C" % sW)
    A("s_cmp_ge_u32 s%d, 30\ns_cbranch_scc1 L_hsp" % sIDX)
    s1a_loader()
    A.label("L_h3")
    s1b_q()
    loader_main()
    A("s_branch L_fin")
    A.label("L_hsp")
    more_srds()
    A.label("L_spare")
    spare_main()
    stamp("sp_end")
    A("s_waitcnt lgkmcnt(0)\ns_barrier")
    A("s_cmp_lt_u32 s%d, 4\ns_cbranch_scc1 L_c3" % sW)
    dbg_issue(36, 34)
    A("s_branch L_h3")
    A.label("L_C")
    init_c()
    A("s_cmp_ge_u32 s%d, 30\ns_cbranch_scc1 L_spare" % sIDX)
    s1a_compute()
    stamp("s1_end")
    A.label("L_c3")
    s1b_k()
    c_main()
    A.label("L_fin")
    ts_dump()
    A.label("L_end")
    A("s_endpgm")
    body, nn = finalize(A.lines)
    hdr = open("sequential_preLN__linear_kernel_hedgehog__mixer_s_mlp__prompt.s.ref").read().split("; Override launch")[0]
    out = hdr + "; @launch grid=(256,1,1) block=(512,1,1) lds=%d\n" % LDS_BYTES
    out += '.amdgcn_target "amdgcn-amd-amdhsa--gfx950"\n.text\n.globl %s\n.p2align 8\n.type %s,@function\n%s:\n' % (KN, KN, KN)
    out += "\n".join(("" if l.endswith(":") else "  ") + l for l in body) + "\n"
    out += '.section .rodata,"a"\n.p2align 6\n.amdhsa_kernel %s\n' % KN
    out += "  .amdhsa_next_free_vgpr 256\n  .amdhsa_next_free_sgpr 102\n  .amdhsa_accum_offset 256\n  .amdhsa_group_segment_fixed_size 0\n  .amdhsa_kernarg_size 96\n  .amdhsa_user_sgpr_count 2\n  .amdhsa_user_sgpr_kernarg_segment_ptr 1\n  .amdhsa_system_sgpr_workgroup_id_x 1\n.end_amdhsa_kernel\n"
    open(sys.argv[1], "w").write(out)
    open(sys.argv[1] + ".names", "w").write(" ".join(STN))
    print("written", sys.argv[1], "lines", len(body), "nops", nn, "barriers", sum(l == "s_barrier" for l in body))
main()
```

```python
import sys, struct
from asmlib import *

KN = "sequential_preLN__linear_kernel_hedgehog__mixer_s_mlp__prompt_kernel"
OPT = dict(ts=0, rot=1, forceslow=0)
for a in sys.argv[2:]:
    k, v = a.split("="); OPT[k] = int(v)
def f2u(f): return struct.unpack("<I", struct.pack("<f", f))[0]

OH = 0x000000
QKV = 0x300000
G_ = QKV; GST = 61440
WP = 0xC00000; WSL = 798720
CSP1 = 0x1300000; CSP3 = 0x1310000
KVP = 0x1400000
ST = 0xB00000
XS = 0xB20000
HALO = 0xB40000
ZR = 0xB90000
FKV = ZR; FO = ZR + 4096; FH = ZR + 8192; FHH = ZR + 12288; FX1 = ZR + 16384; FG = ZR + 20480
FQKV = ZR + 32768; FW = ZR + 36864
TS = 0x2500000
SB = {2: 0, 3: 102400, 4: 204800, 5: 307200, 6: 552960}
UB = {"wo": 0, "w1": 200, "w2": 400, "w3": 600, "w4": 1080}
RING = 143360; SEG = 20480
PK = 102400; VV = 122880
MZ = 143360
WPHI = MZ + 2048 - 160
CNT = MZ + 3040
KVT = MZ + 3072
CS0 = MZ + 5632
CS1 = MZ + 6144
CS3 = MZ + 6656
LDS_BYTES = 163840
sW, sXCD, sIDX, sFAST, sCNT = 3, 4, 5, 6, 7
sX, sWQ, sWS, sOUT, sDBG, sSRC = 8, 12, 16, 20, 24, 28
sT = 32
sPAR, sRB, sJ, sTT, sS0, sAOFF, sHOFF, sAB, sLW, sWL, sC0, sEDGE, sWB, sRT, sCT = range(48, 63)
pWPHI, pWO, pW1, pW2, pW3, pW4 = 68, 70, 74, 76, 78, 80
sK = 88
vL, vG, vTT, vONE = 1, 2, 3, 4

A = Asm()
STN = []
KEEP = "entry s1_b0 s1_mm s1b_fl phi_k kv_pub s1b_B2 s2_fl s2_end s3_fl s3_end s4_end s5_fl s5_end s6_mm fin".split()
def stamp(name):
    if OPT.get("dbgts"):
        if name not in KEEP: return
        STN[:] = KEEP
    if OPT["ts"]:
        if name not in STN: STN.append(name)
        assert len(STN) <= 64
        A("%s s[100:101]\ns_waitcnt lgkmcnt(0)\nv_writelane_b32 v253, s100, %d" % ("s_memtime" if OPT["ts"] == 2 else "s_memrealtime", STN.index(name)))
class Capture:
    def __enter__(self):
        self.save = A.lines; A.lines = []; return self
    def __exit__(self, *a):
        self.out = A.lines; A.lines = self.save
def R(b): return "s[%d:%d]" % (b, b + 3)
def V4(b): return "v[%d:%d]" % (b, b + 3)
def V2(b): return "v[%d:%d]" % (b, b + 1)
def srd(dst, p, nbytes):
    A("s_mov_b32 s%d, s%d\ns_and_b32 s%d, s%d, 0xffff\ns_mov_b32 s%d, 0x%x\ns_mov_b32 s%d, 0x20000" % (dst, p, dst+1, p+1, dst+2, nbytes, dst+3))
def mfma16(d, a, b, c=None):
    return "v_mfma_f32_16x16x32_bf16 %s, %s, %s, %s" % (V4(d), V4(a), V4(b), "0" if c == 0 else V4(d))

POLL_LIMIT = 40000
def spin(loads, cond, sleep=0, issued=False):
    L, D, E = A.newlabel("P"), A.newlabel("PD"), A.newlabel("PE")
    A("s_mov_b32 s%d, %d" % (sCNT, POLL_LIMIT))
    if issued: A("s_branch %s" % E)
    A.label(L)
    loads()
    A.label(E)
    A("s_waitcnt vmcnt(0)")
    cond()
    A("s_cbranch_vccz %s" % D)
    if sleep: A("s_sleep %d" % sleep)
    A("s_sub_u32 s%d, s%d, 1\ns_cbranch_scc0 %s" % (sCNT, sCNT, L))
    A.label(D)
def poll(vaddr, vtmp, soff, sleep=0):
    spin(lambda: A("buffer_load_dword v%d, v%d, %s, s%d offen sc1" % (vtmp, vaddr, R(sWS), soff)),
         lambda: A("v_cmp_eq_u32 vcc, 0, v%d" % vtmp), sleep)
def dual(fn, sreg=sFAST):
    S, E = A.newlabel("SL"), A.newlabel("SE")
    A("s_cmp_eq_u32 s%d, 0\ns_cbranch_scc1 %s" % (sreg, S))
    fn("")
    A("s_branch %s" % E)
    A.label(S)
    A("s_nop 1")
    fn(" sc1")
    A.label(E)
def setflag(vz, soff, p, wait=True):
    if wait: A("s_waitcnt vmcnt(0)")
    A("s_mov_b64 exec, 1")
    A("buffer_store_dword v%d, v%d, %s, s%d offen%s" % (vONE, vz, R(sWS), soff, p))
    A("s_mov_b64 exec, -1")
def dbg_issue(va, vt):
    A("v_lshlrev_b32 v%d, 2, v%d" % (va, vL))
    A("buffer_load_dword v%d, v%d, %s, 0 offen sc1" % (vt, va, R(sDBG)))
def dbg_check(va, vt, vt2):
    A("s_mov_b32 s98, 0x01010101")
    def cond():
        A("v_subrev_u32 v%d, s98, v%d\nv_not_b32 v%d, v%d" % (vt2, vt, va+1, vt))
        A("v_and_b32 v%d, v%d, v%d\nv_and_b32 v%d, 0x80808080, v%d" % (vt2, vt2, va+1, vt2, vt2))
        A("v_cmp_ne_u32 vcc, 0, v%d" % vt2)
    spin(lambda: A("buffer_load_dword v%d, v%d, %s, 0 offen sc1" % (vt, va, R(sDBG))), cond, sleep=2, issued=True)
    A("s_getreg_b32 s94, hwreg(HW_REG_XCC_ID, 0, 4)")
    A("s_add_u32 s94, s94, 1\ns_mul_i32 s94, s94, s98")
    A("v_cmp_ne_u32 vcc, s94, v%d" % vt)
    A("s_lshl_b32 s95, s%d, 3\ns_nop 1" % sXCD)
    A("s_lshr_b64 s[96:97], vcc, s95\ns_and_b32 s96, s96, 0xff")
    A("s_cmp_eq_u32 s96, 0\ns_cselect_b32 s%d, 1, 0" % sFAST)
    if OPT["forceslow"]: A("s_mov_b32 s%d, 0" % sFAST)
def lds_signal(k, va):
    A("v_mov_b32 v%d, 0x%x" % (va, CNT + 4*k))
    A("s_mov_b64 exec, 1\nds_add_u32 v%d, v%d\ns_mov_b64 exec, -1" % (va, vONE))
def lds_wait(k, n, va, vt, sreg=None):
    L, D = A.newlabel("W"), A.newlabel("WD")
    if sreg is None: A("v_mov_b32 v%d, 0x%x" % (va, CNT + 4*k))
    else: A("v_mov_b32 v%d, s%d" % (va, sreg))
    A("s_mov_b32 s%d, %d" % (sCNT, 4000000))
    A.label(L)
    A("ds_read_b32 v%d, v%d\ns_waitcnt lgkmcnt(0)" % (vt, va))
    A("v_cmp_gt_u32 vcc, %d, v%d\ns_cbranch_vccz %s" % (n, vt, D))
    A("s_sub_u32 s%d, s%d, 1\ns_cbranch_scc0 %s" % (sCNT, sCNT, L))
    A.label(D)
def lnstats(s1, s2, rs):
    A("v_mul_f32 v%d, 0x%x, v%d\nv_mul_f32 v%d, 0x%x, v%d" % (s1, f2u(1/640), s1, s2, f2u(1/640), s2))
    A("v_fma_f32 v%d, -v%d, v%d, v%d\nv_max_f32 v%d, 0, v%d" % (s2, s1, s1, s2, s2, s2))
    A("v_add_f32 v%d, 0x%x, v%d\nv_rsq_f32 v%d, v%d" % (rs, f2u(1e-5), s2, rs, rs))

def prologue():
    A("s_cmp_ge_u32 s2, 256\ns_cbranch_scc1 L_end")
    if OPT["ts"]: A("v_mov_b32 v253, 0")
    stamp("entry")
    A("s_load_dwordx16 s[64:79], s[0:1], 0\ns_load_dwordx8 s[80:87], s[0:1], 64")
    A("v_and_b32 v%d, 63, v0\nv_lshrrev_b32 v5, 6, v0" % vL)
    A("v_lshrrev_b32 v%d, 4, v%d\nv_and_b32 v%d, 15, v%d\nv_mov_b32 v%d, 1" % (vG, vL, vTT, vL, vONE))
    A("v_readfirstlane_b32 s%d, v5" % sW)
    A("s_and_b32 s%d, s2, 7\ns_lshr_b32 s%d, s2, 3" % (sXCD, sIDX))
    A("s_mov_b32 s%d, 0\ns_and_b32 s%d, s%d, 3\ns_and_b32 s%d, s%d, 1" % (sFAST, sWL, sW, sPAR, sIDX))
    A("s_lshr_b32 s%d, s%d, 2" % (sJ, sIDX))
    A("s_lshl_b32 s%d, s%d, 1\ns_add_u32 s%d, s%d, s%d\ns_lshr_b32 s%d, s%d, 1" % (sRT, sXCD, sRT, sRT, sPAR, sCT, sIDX))
    A("s_waitcnt lgkmcnt(0)")
    srd(sX, 64, 2621440); srd(sWQ, 66, 2457600)

def more_srds():
    srd(sWS, 86, 0x10000000); srd(sOUT, 82, 2621440); srd(sDBG, 84, 256)

def init_c():
    l1, l2, l3 = A.newlabel("I"), A.newlabel("I"), A.newlabel("I")
    A("s_cmp_lg_u32 s%d, 0\ns_cbranch_scc1 %s" % (sW, l1))
    A("s_lshl_b32 s%d, s%d, 8\ns_lshl_b32 s%d, s%d, 3\ns_add_u32 s%d, s%d, s%d" % (sT, sXCD, sT+1, sIDX, sT, sT, sT+1))
    A("v_lshrrev_b32 v6, 3, v%d\nv_add_u32 v7, s%d, v6\nv_mul_u32_u24 v8, 1280, v7" % (vL, sT))
    A("v_and_b32 v9, 7, v%d\nv_lshl_add_u32 v8, v9, 4, v8" % vL)
    D = 64
    for i in range(10):
        A("buffer_load_dwordx4 %s, v8, %s, 0 offen offset:%d" % (V4(D+4*i), R(sX), 128*i))
    more_srds()
    A("v_lshlrev_b32 v10, 2, v%d\nv_mov_b32 v11, 0" % vL)
    A("s_lshl_b32 s%d, s2, 8\ns_add_u32 s%d, s%d, 0x%x" % (sT+1, sT+1, sT+1, ZR))
    A("buffer_store_dword v11, v10, %s, s%d offen sc1" % (R(sWS), sT+1))
    for r in (24, 25, 26, 27): A("v_mov_b32 v%d, -1" % r)
    A("v_lshlrev_b32 v10, 4, v%d\ns_mul_i32 s%d, s2, 1280\ns_add_u32 s%d, s%d, 0x%x" % (vL, sT+1, sT+1, sT+1, HALO))
    A("buffer_store_dwordx4 v[24:27], v10, %s, s%d offen sc1" % (R(sWS), sT+1))
    A("s_mov_b64 exec, 0xffff\nbuffer_store_dwordx4 v[24:27], v10, %s, s%d offen offset:1024 sc1\ns_mov_b64 exec, -1" % (R(sWS), sT+1))
    A("s_mov_b32 s%d, 0xffff0000" % (sT+2))
    s1, s2 = 12, 14
    for r in (12, 13, 14, 15): A("v_mov_b32 v%d, 0" % r)
    for i in range(10):
        A("s_waitcnt vmcnt(%d)" % (12 - i))
        for q in range(4):
            r = D + 4*i + q; t = 20 + 2*(q & 1)
            A("v_lshlrev_b32 v%d, 16, v%d\nv_and_b32 v%d, s%d, v%d" % (t, r, t+1, sT+2, r))
            A("v_pk_add_f32 %s, %s, %s" % (V2(s1), V2(s1), V2(t)))
            A("v_pk_fma_f32 %s, %s, %s, %s" % (V2(s2), V2(t), V2(t), V2(s2)))
    A("v_add_f32 v12, v12, v13\nv_add_f32 v14, v14, v15")
    for m in ("quad_perm:[1,0,3,2]", "quad_perm:[2,3,0,1]", "row_half_mirror"):
        for r in (s1, s2): A("v_add_f32_dpp v%d, v%d, v%d %s row_mask:0xf bank_mask:0xf" % (r, r, r, m))
    lnstats(s1, s2, s1+1)
    A("v_mul_f32 v12, v12, v13\nv_lshlrev_b32 v7, 3, v7\ns_mov_b32 s%d, 0x%x" % (sT+1, XS))
    A("s_mov_b32 exec_lo, 0x01010101\ns_mov_b32 exec_hi, 0x01010101")
    A("buffer_store_dwordx2 v[12:13], v7, %s, s%d offen sc1" % (R(sWS), sT+1))
    A("s_mov_b64 exec, -1")
    A("s_getreg_b32 s94, hwreg(HW_REG_XCC_ID, 0, 4)\ns_add_u32 s94, s94, 1")
    A("s_lshl_b32 s95, s%d, 5\ns_add_u32 s95, s95, s%d" % (sXCD, sIDX))
    A("v_mov_b32 v8, s95\nv_mov_b32 v9, s94")
    A("s_waitcnt vmcnt(0)")
    A("s_mov_b64 exec, 1\nbuffer_store_byte v9, v8, %s, 0 offen sc1\ns_mov_b64 exec, -1" % R(sDBG))
    stamp("pub")
    A("s_branch %s" % l3)
    A.label(l1)
    more_srds()
    if OPT.get("cpf"):
        A("s_cmp_lg_u32 s%d, 3\ns_cbranch_scc1 %s" % (sW, l2))
        A("s_getpc_b64 s[94:95]")
        A.label("L_pc")
        A("s_sub_u32 s94, s94, L_pc-%s\ns_subb_u32 s95, s95, 0" % KN)
        A("s_and_b32 s96, s%d, 15\ns_lshl_b32 s96, s96, 5" % sIDX)
        A("v_and_b32 v8, 31, v%d\nv_add_u32 v8, s96, v8\nv_min_u32 v8, (L_end-%s)/128, v8\nv_lshlrev_b32 v8, 7, v8" % (vL, KN))
        A("v_mov_b32 v9, s95\nv_add_co_u32 v8, vcc, s94, v8\nv_addc_co_u32 v9, vcc, 0, v9, vcc")
        A("global_load_dword v252, v[8:9], off")
        A.label(l2)
    A("s_cmp_lg_u32 s%d, 1\ns_cbranch_scc1 %s" % (sW, l3))
    srd(sSRC, pWPHI, 25600)
    A("v_lshlrev_b32 v6, 4, v%d\nv_add_u32 v7, 0x%x, v6\ns_mul_i32 s%d, s%d, 800" % (vL, MZ, sT, sIDX))
    A("buffer_load_dwordx4 v[12:15], v6, %s, s%d offen" % (R(sSRC), sT))
    for r in (8, 9, 10, 11): A("v_mov_b32 v%d, 0" % r)
    for i in range(3): A("ds_write_b128 v7, v[8:11] offset:%d" % (1024*i))
    A("s_waitcnt vmcnt(0)")
    A("v_cmp_gt_u32 vcc, 50, v%d\ns_and_saveexec_b64 s[96:97], vcc" % vL)
    A("ds_write_b128 v7, v[12:15] offset:2048")
    A("s_mov_b64 exec, -1")
    A.label(l3)

def stouch(pbase, soff, nbytes, off0=0):
    A("s_add_u32 s90, s%d, s%d\ns_addc_u32 s91, s%d, 0" % (pbase, soff, pbase+1))
    for o in range(off0, off0 + nbytes, 64): A("s_load_dword s99, s[90:91], 0x%x" % o)

def s1a_loader():
    A("v_lshrrev_b32 v6, 3, v%d" % vL)
    A("s_lshl_b32 s%d, s%d, 7\ns_lshl_b32 s%d, s%d, 5\ns_add_u32 s%d, s%d, s%d" % (sT+1, sRT, sT+2, sWL, sT+1, sT+1, sT+2))
    A("v_add_u32 v6, s%d, v6\nv_mul_u32_u24 v6, 1280, v6" % (sT+1))
    A("v_and_b32 v7, 7, v%d\nv_xor_b32 v7, v7, v%d" % (vL, vG))
    for i in range(4):
        A("v_xor_b32 v16, %d, v7\nv_lshl_add_u32 v%d, v16, 4, v6" % ((i & 1) << 2, 8+i))
        if i: A("v_add_u32 v%d, %d, v%d" % (8+i, i*10240 - i*1024, 8+i))
    A("s_lshl_b32 s%d, s%d, 4" % (sT+1, sWL))
    A("v_add_u32 v6, s%d, v%d\nv_mul_u32_u24 v6, 3840, v6" % (sT+1, vG))
    A("v_lshlrev_b32 v7, 2, v%d\nv_xor_b32 v7, v7, v%d\nv_lshlrev_b32 v7, 4, v7" % (vG, vTT))
    A("s_lshl_b32 s%d, s%d, 8" % (sT+1, sCT))
    A("v_add3_u32 v12, v6, v7, s%d" % (sT+1))
    for i in range(1, 4): A("v_add_u32 v%d, %d, v12" % (12+i, i*4*3840 - i*1024))
    C = sT+4
    if OPT["rot"]:
        A("s_mul_i32 s%d, s%d, 5\ns_add_u32 s%d, s%d, s%d" % (C, sPAR, C, C, sCT))
        A("s_cmp_ge_u32 s%d, 10\ns_cselect_b32 s%d, 10, 0\ns_sub_u32 s%d, s%d, s%d" % (C, sT+6, C, C, sT+6))
    else:
        A("s_mov_b32 s%d, 0" % C)
    A("s_lshl_b32 s%d, s%d, 12" % (sT+5, sWL))
    def issue(i):
        slot = (i % 4) * 32768
        A("s_lshl_b32 s%d, s%d, 7\ns_mul_i32 s%d, s%d, %d" % (sT+6, C, sT+7, C, 64*3840))
        A("s_add_u32 m0, s%d, %d" % (sT+5, slot))
        for q in range(4): A("buffer_load_dwordx4 v%d, %s, s%d offen offset:%d lds" % (8+q, R(sX), sT+6, q*1024))
        A("s_add_u32 m0, s%d, %d" % (sT+5, slot + 16384))
        for q in range(4): A("buffer_load_dwordx4 v%d, %s, s%d offen offset:%d lds" % (12+q, R(sWQ), sT+7, q*1024))
        A("s_add_u32 s%d, s%d, 1\ns_cmp_eq_u32 s%d, 10\ns_cselect_b32 s%d, 0, s%d" % (C, C, C, C, C))
    NI = OPT.get("ni", 2)
    for i in range(NI): issue(i)
    more_srds()
    stamp("H_iss")
    A("s_lshr_b32 s%d, s%d, 1\ns_lshl_b32 s%d, s%d, 1\ns_add_u32 s%d, s%d, s%d\ns_mul_i32 s%d, s%d, %d" % (sT+8, sWL, sT+9, sRT, sT+8, sT+8, sT+9, sT+8, sT+8, 4*61440))
    A("s_lshl_b32 s%d, s%d, 12\ns_add_u32 s%d, s%d, s%d\ns_and_b32 s%d, s%d, 1\ns_lshl_b32 s%d, s%d, 11" % (sT+9, sCT, sT+8, sT+8, sT+9, sT+9, sWL, sT+9, sT+9))
    A("s_add_u32 s%d, s%d, s%d\ns_add_u32 s%d, s%d, 0x%x" % (sT+8, sT+8, sT+9, sT+8, sT+8, QKV))
    issued = NI
    for i in range(10):
        A("s_waitcnt vmcnt(%d)" % ((issued - i - 1) * 8 + (1 if i == 9 else 0)))
        if i in (0, 1, 3, 6, 9): stamp("H_c%d" % i)
        A("s_barrier")
        tgt = min(10, i + 4, issued + OPT.get("nstep", 2))
        while issued < tgt:
            issue(issued); issued += 1
        if OPT.get("spt", 1) and i < 8:
            stouch(86, sT+8, 1024, off0=(i >> 1)*61440 + (i & 1)*1024)
        if i == 8: dbg_issue(36, 34)
    A("s_barrier")

U, CU, KS, RS, MT = sT+8, sT+9, sT+10, sT+11, sT+12
def rl_decode(mats):
    T1, T2 = sT+13, sT+1
    P = {"wo": pWO, "w1": pW1, "w2": pW2, "w3": pW3, "w4": pW4}; ID = {"wo": 0, "w1": 1, "w2": 2, "w3": 3, "w4": 4}
    m0 = mats[0]
    A("s_mov_b32 s%d, %d\ns_mov_b32 s%d, %d" % (MT, ID[m0], T2, UB[m0]))
    A("s_mov_b32 s%d, s%d\ns_mov_b32 s%d, s%d" % (sSRC, P[m0], sSRC+1, P[m0]+1))
    for nm in mats[1:]:
        A("s_cmp_ge_u32 s%d, %d" % (U, UB[nm]))
        A("s_cmov_b32 s%d, %d\ns_cmov_b32 s%d, %d\ns_cmov_b32 s%d, s%d\ns_cmov_b32 s%d, s%d" % (MT, ID[nm], T2, UB[nm], sSRC, P[nm], sSRC+1, P[nm]+1))
    A("s_sub_u32 s%d, s%d, s%d\ns_and_b32 s%d, s%d, 0xffff" % (T1, U, T2, sSRC+1, sSRC+1))
    A("s_mov_b32 s%d, %d\ns_mov_b32 s%d, 0x20000" % (sSRC+2, 819200 if m0 == "wo" else 1966080, sSRC+3))
    A("s_cmp_eq_u32 s%d, 3\ns_cselect_b32 s%d, 3072, 1280" % (MT, RS))
    A("s_cmp_eq_u32 s%d, 4\ns_cselect_b32 s%d, %d, %d" % (MT, T2, (1<<20)//48 + 1, (1<<20)//20 + 1))
    A("s_mul_i32 s%d, s%d, s%d\ns_lshr_b32 s%d, s%d, 20" % (CU, T1, T2, CU, CU))
    A("s_cmp_eq_u32 s%d, 4\ns_cselect_b32 s%d, 48, 20" % (MT, T2))
    A("s_mul_i32 s%d, s%d, s%d\ns_sub_u32 s%d, s%d, s%d" % (T2, CU, T2, KS, T1, T2))
def rl_issue(sst):
    A("v_lshrrev_b32 v20, 3, v%d\nv_mul_lo_u32 v20, v20, s%d" % (vL, RS))
    A("v_and_b32 v21, 7, v%d\nv_lshl_add_u32 v20, v21, 4, v20" % vL)
    A("s_mul_i32 s%d, s%d, s%d\ns_lshl_b32 s%d, s%d, 5" % (sT+13, KS, RS, sT+13, sT+13))
    A("s_lshl_b32 s%d, s%d, 7\ns_add_u32 s%d, s%d, s%d\ns_lshl_b32 s%d, s%d, 3" % (sT+1, CU, sT+13, sT+13, sT+1, sT+2, RS))
    for q in range(4):
        A("s_add_u32 m0, s%d, %d" % (sst, q*1024))
        A("buffer_load_dwordx4 v20, %s, s%d offen lds" % (R(sSRC), sT+13))
        if q < 3: A("s_add_u32 s%d, s%d, s%d" % (sT+13, sT+13, sT+2))
def rl_consts():
    for i in range(4): A("v_mov_b32 v%d, 0x3f803f80" % (24+i))
    A("v_lshlrev_b32 v28, 4, v%d\nv_lshlrev_b32 v29, 4, v%d" % (vL, vG))
    A("v_bfe_u32 v30, v%d, 2, 2\nv_lshl_add_u32 v30, v%d, 3, v30\nv_lshlrev_b32 v30, 7, v30" % (vL, vG))
    A("v_and_b32 v31, 3, v%d\nv_lshl_add_u32 v30, v31, 3, v30" % vL)
def rl_finish(sst, batch):
    A("v_add_u32 v31, s%d, v30" % sst)
    for i in range(4):
        for hh in range(2): A("ds_read_b64_tr_b16 %s, v31 offset:%d" % (V2(36+4*i+2*hh), 32*i + 512*hh))
    D, CA, T1, T2, BASE, CB = sT+2, sT+3, sT+13, sT+1, sT+4, sT+5
    w3, dn = A.newlabel("W3"), A.newlabel("DN")
    dst = [sT+14, sT+15, 92, 93]; cdst = [sT+6, sT+7, 88, 89]
    if batch == 2:
        A("s_cmp_eq_u32 s%d, 3\ns_cbranch_scc1 %s" % (MT, w3))
        A("s_mul_i32 s%d, s%d, 43\ns_lshr_b32 s%d, s%d, 8\ns_mul_i32 s%d, s%d, 6\ns_sub_u32 s%d, s%d, s%d" % (T1, KS, T1, T1, T2, T1, T2, KS, T2))
        A("s_lshl_b32 s%d, s%d, 1\ns_and_b32 s%d, s%d, 1\ns_add_u32 s%d, s%d, s%d\ns_lshr_b32 s%d, s%d, 1\ns_lshl_b32 s%d, s%d, 4\ns_add_u32 s%d, s%d, s%d" % (T1, T1, BASE, T2, T1, T1, BASE, T2, T2, T2, T2, T1, T1, T2))
        A("s_mul_i32 s%d, s%d, 5120\ns_add_u32 s%d, s%d, 0x%x" % (BASE, T1, BASE, BASE, WP + SB[6]))
    else:
        A("s_mul_i32 s%d, s%d, 5120\ns_mul_i32 s%d, s%d, 102400\ns_add_u32 s%d, s%d, s%d\ns_add_u32 s%d, s%d, 0x%x" % (BASE, KS, T1, MT, BASE, BASE, T1, BASE, BASE, WP))
        A("s_mul_i32 s%d, s%d, 2560\ns_add_u32 s%d, s%d, 0x%x" % (CB, KS, CB, CB, CSP1))
    for i in range(4):
        A("s_lshl_b32 s%d, s%d, 2\ns_add_u32 s%d, s%d, %d" % (D, CU, D, D, i))
        A("s_mul_i32 s%d, s%d, 52\ns_lshr_b32 s%d, s%d, 8\ns_mul_i32 s%d, s%d, 5\ns_sub_u32 s%d, s%d, s%d" % (T1, D, T1, T1, T2, T1, T2, D, T2))
        A("s_and_b32 s%d, s%d, 1\ns_sub_u32 s%d, s%d, s%d\ns_cmp_lt_i32 s%d, 0\ns_cselect_b32 s%d, 4, s%d" % (D, T1, T2, T2, D, T2, T2, T2))
        A("s_mul_i32 s%d, s%d, %d\ns_lshl_b32 s%d, s%d, 10\ns_add_u32 s%d, s%d, s%d\ns_add_u32 s%d, s%d, s%d" % (D, T1, WSL, CA, T2, D, D, CA, dst[i], D, BASE))
        if batch == 1:
            A("s_mul_i32 s%d, s%d, 320\ns_lshl_b32 s%d, s%d, 6\ns_add_u32 s%d, s%d, s%d\ns_add_u32 s%d, s%d, s%d" % (D, T1, CA, T2, D, D, CA, cdst[i], D, CB))
    if batch == 2:
        A("s_branch %s" % dn)
        A.label(w3)
        A("s_mul_i32 s%d, s%d, 43\ns_lshr_b32 s%d, s%d, 7\ns_mul_i32 s%d, s%d, 3\ns_sub_u32 s%d, s%d, s%d" % (T1, CU, T1, T1, T2, T1, T2, CU, T2))
        A("s_mul_i32 s%d, s%d, %d\ns_mul_i32 s%d, s%d, 81920\ns_add_u32 s%d, s%d, s%d" % (D, T1, WSL, T2, T2, D, D, T2))
        A("s_lshl_b32 s%d, s%d, 11\ns_add_u32 s%d, s%d, s%d\ns_add_u32 s%d, s%d, 0x%x" % (T2, KS, D, D, T2, dst[0], D, WP + SB[5]))
        A("s_add_u32 s%d, s%d, 1024\ns_add_u32 s%d, s%d, 40960\ns_add_u32 s%d, s%d, 41984" % (dst[1], dst[0], dst[2], dst[0], dst[3], dst[0]))
        A("s_mul_i32 s%d, s%d, 6144\ns_lshl_b32 s%d, s%d, 8\ns_add_u32 s%d, s%d, s%d\ns_add_u32 s%d, s%d, 0x%x" % (D, KS, T2, CU, D, D, T2, cdst[0], D, CSP3))
        for i in range(1, 4): A("s_add_u32 s%d, s%d, %d" % (cdst[i], cdst[0], 64*i))
        A.label(dn)
    A("s_waitcnt lgkmcnt(0)")
    for i in range(4): A("buffer_store_dwordx4 %s, v28, %s, s%d offen sc1" % (V4(36+4*i), R(sWS), dst[i]))
    nc = A.newlabel("NC")
    A("s_bitcmp1_b32 s%d, 0\ns_cbranch_scc0 %s" % (MT, nc))
    for i in range(4): A(mfma16(52+4*i, 36+4*i, 24, 0))
    A("s_mov_b32 exec_lo, 0x00010001\ns_mov_b32 exec_hi, 0x00010001")
    for i in range(4): A("buffer_store_dwordx4 %s, v29, %s, s%d offen sc1" % (V4(52+4*i), R(sWS), cdst[i]))
    A("s_mov_b64 exec, -1")
    A.label(nc)
    A("s_nop 1")

def spare_main():
    SW, STG = 63, 62
    A("s_lshl_b32 s%d, s%d, 4\ns_lshl_b32 s%d, s%d, 3\ns_add_u32 s%d, s%d, s%d\ns_add_u32 s%d, s%d, s%d" % (SW, sXCD, sT, sPAR, SW, SW, sT, SW, SW, sW))
    rl_consts()
    mats = ["wo", "w1", "w2"]
    def unit(i): A("s_add_u32 s%d, s%d, %d\ns_min_u32 s%d, s%d, 599" % (U, SW, 128*i, U, U))
    def stg(k): A("s_lshl_b32 s%d, s%d, 14\ns_add_u32 s%d, s%d, %d" % (STG, sW, STG, STG, 4096*k))
    for i in range(4):
        unit(i); rl_decode(mats); stg(i); rl_issue(STG)
    for i in range(5):
        unit(i); rl_decode(mats); stg(i % 4)
        if i == 0: A("s_waitcnt vmcnt(12)")
        else: A("s_waitcnt vmcnt(0)" if i in (1, 4) else "s_nop 0")
        rl_finish(STG, 1)
        if i == 1:
            unit(4); rl_decode(mats); stg(0); rl_issue(STG)
    dbg_issue(32, 34)
    dbg_check(32, 34, 35)
    A("v_lshlrev_b32 v20, 7, v%d\nv_add_u32 v20, s%d, v20\nv_min_u32 v20, 599, v20\nv_lshlrev_b32 v20, 2, v20\ns_mov_b32 s94, 0x%x" % (vL, SW, FW))
    A("s_mov_b64 exec, 31\nbuffer_store_dword v%d, v20, %s, s94 offen sc1\ns_mov_b64 exec, -1" % (vONE, R(sWS)))

def rl_batch2():
    sk = A.newlabel("RB")
    A("s_lshl_b32 s%d, s2, 2\ns_add_u32 s%d, s%d, s%d\ns_add_u32 s%d, s%d, 600" % (U, U, U, sW, U, U))
    A("s_cmp_ge_u32 s%d, 1560\ns_cbranch_scc1 %s" % (U, sk))
    rl_decode(["w3", "w4"])
    A("s_lshl_b32 s62, s%d, 12\ns_add_u32 s62, s62, %d" % (sW, PK))
    rl_issue(62)
    rl_consts()
    A("s_waitcnt vmcnt(0)")
    rl_finish(62, 2)
    A.label(sk)
def rl_batch2_flag():
    sk = A.newlabel("RB")
    A("s_lshl_b32 s94, s2, 2\ns_add_u32 s94, s94, s%d\ns_cmp_ge_u32 s94, 960\ns_cbranch_scc1 %s" % (sW, sk))
    A("s_lshl_b32 s94, s94, 2\ns_add_u32 s94, s94, 0x%x" % (FW + 2400))
    setflag(vZ, 94, " sc1", wait=False)
    A.label(sk)

def s1a_compute():
    ACC, CSA, SEL = 64, 128, 132
    XA, WA = 8, 16
    FB = 136
    A("s_lshr_b32 s%d, s%d, 1\ns_and_b32 s%d, s%d, 1" % (sT, sW, sT+1, sW))
    A("v_and_b32 v20, 31, v%d\nv_lshrrev_b32 v21, 5, v%d" % (vL, vL))
    A("s_lshl_b32 s%d, s%d, 13" % (sT+2, sT))
    A("v_lshlrev_b32 v22, 7, v20\nv_add_u32 v22, s%d, v22" % (sT+2))
    A("v_bfe_u32 v23, v20, 1, 3\nv_xor_b32 v23, v23, v21")
    for k in range(4):
        A("v_xor_b32 v24, %d, v23\nv_lshl_add_u32 v%d, v24, 4, v22\nv_add_u32 v%d, 0x10000, v%d" % (2*k, XA+2*k, XA+2*k+1, XA+2*k))
    A("v_bfe_u32 v24, v%d, 2, 2" % vL)
    A("v_lshl_add_u32 v25, v21, 3, v24\nv_lshlrev_b32 v25, 8, v25")
    A("v_and_b32 v26, 1, v%d\nv_lshlrev_b32 v26, 5, v26" % vG)
    A("v_and_b32 v27, 1, v%d\nv_lshl_add_u32 v26, v27, 4, v26" % vL)
    A("v_bfe_u32 v27, v%d, 1, 1\nv_lshl_add_u32 v26, v27, 3, v26" % vL)
    A("v_add_u32 v25, v25, v26\nv_add_u32 v25, 0x4000, v25")
    A("s_lshl_b32 s%d, s%d, 1\ns_add_u32 s%d, s%d, s%d" % (sT+2, sT+1, sT+2, sT+2, sT))
    for nt in range(2):
        A("s_xor_b32 s%d, s%d, %d" % (sT+3, sT+2, nt))
        A("v_xor_b32 v27, s%d, v24\nv_lshl_add_u32 v%d, v27, 6, v25\nv_add_u32 v%d, 0x10000, v%d" % (sT+3, WA+2*nt, WA+2*nt+1, WA+2*nt))
    A("v_and_b32 v27, 1, v%d\nv_cmp_eq_u32 vcc, v27, v%d\nv_mov_b32 v28, 0x3f803f80" % (vG, vTT))
    for i in range(4): A("v_cndmask_b32 v%d, 0, v28, vcc" % (SEL+i))
    for i in range(68): A("v_mov_b32 v%d, 0" % (ACC+i))
    def reads(n):
        ci, k = divmod(n, 4)
        slot = (ci % 4) * 32768; hi = slot >> 16; so = slot & 0xffff
        b = FB + 16*(n % 3)
        for mt in range(2): A("ds_read_b128 %s, v%d offset:%d" % (V4(b+4*mt), XA+2*k+hi, so + mt*4096))
        for nt in range(2):
            for hh in range(2):
                A("ds_read_b64_tr_b16 %s, v%d offset:%d" % (V2(b+8+4*nt+2*hh), WA+2*nt+hi, so + (16*k + 4*hh)*256))
    def step(n):
        b = FB + 16*(n % 3)
        for nt in range(2):
            for mt in range(2):
                a = ACC + 32*nt + 16*mt
                A("v_mfma_f32_32x32x16_bf16 v[%d:%d], %s, %s, v[%d:%d]" % (a, a+15, V4(b+8+4*nt), V4(b+4*mt), a, a+15))
        A(mfma16(CSA, b+8, SEL))
    A("s_waitcnt lgkmcnt(0)")
    stamp("s1_rdy")
    A("s_barrier")
    stamp("s1_b0")
    reads(0); reads(1)
    for n in range(40):
        ci, k = divmod(n, 4)
        if n + 2 < 40:
            if k == 2:
                A("s_waitcnt lgkmcnt(0)\ns_barrier"); reads(n+2)
            elif k == 3:
                reads(n+2)
            else:
                A("s_waitcnt lgkmcnt(6)"); reads(n+2)
        else:
            A("s_waitcnt lgkmcnt(%d)" % (6 if n == 38 else 0))
        step(n)
        if n == 16: dbg_issue(30, 32)
        if n == 30:
            dbg_check(30, 32, 33)
            A("s_lshl_b32 s%d, s%d, 7\ns_lshl_b32 s%d, s%d, 6\ns_add_u32 s%d, s%d, s%d" % (sT+2, sRT, sT+3, sT, sT+2, sT+2, sT+3))
            A("s_lshl_b32 s%d, s%d, 3\ns_add_u32 s%d, s%d, 0x%x" % (sT+3, sT+2, sT+3, sT+3, XS))
            A("v_lshlrev_b32 v30, 3, v20")
            A("buffer_load_dwordx2 v[32:33], v30, %s, s%d offen sc1" % (R(sWS), sT+3))
            A("buffer_load_dwordx2 v[34:35], v30, %s, s%d offen offset:256 sc1" % (R(sWS), sT+3))
            A("s_lshl_b32 s%d, s%d, 8\ns_add_u32 s%d, s%d, %d\ns_lshl_b32 s%d, s%d, 7" % (sT+4, sT+1, sT+4, sT+4, CS0, sT+5, sT))
            A("s_add_u32 s%d, s%d, s%d" % (sT+6, sT+4, sT+5))
            A("v_lshlrev_b32 v31, 6, v%d\nv_lshl_add_u32 v31, v%d, 4, v31\nv_add_u32 v31, s%d, v31" % (vTT, vG, sT+6))
            A("v_lshlrev_b32 v37, 4, v21\nv_add_u32 v38, s%d, v37" % (sT+6))
            A("s_xor_b32 s%d, s%d, 128\ns_add_u32 s%d, s%d, s%d" % (sT+5, sT+5, sT+6, sT+4, sT+5))
            A("v_add_u32 v39, s%d, v37" % (sT+6))
            A("v_lshrrev_b32 v40, 4, v20\nv_mul_u32_u24 v40, 61440, v40\nv_lshl_add_u32 v40, v21, 8, v40\nv_lshl_add_u32 v40, v%d, 4, v40" % vTT)
            A("s_lshr_b32 s%d, s%d, 4\ns_mul_i32 s%d, s%d, 61440\ns_add_u32 s%d, s%d, 0x%x" % (sT+2, sT+2, sT+2, sT+2, sT+2, sT+2, QKV))
            A("s_lshl_b32 s%d, s%d, 12\ns_lshl_b32 s%d, s%d, 11\ns_add_u32 s%d, s%d, s%d\ns_add_u32 s%d, s%d, s%d" % (sT+3, sCT, sT+4, sT+1, sT+2, sT+2, sT+3, sT+2, sT+2, sT+4))
            A("s_lshl_b32 s%d, s%d, 10\ns_add_u32 s%d, s%d, s%d" % (sT+3, sT, sT+4, sT+2, sT+3))
            A("s_xor_b32 s%d, s%d, 1024\ns_add_u32 s%d, s%d, s%d" % (sT+3, sT+3, sT+6, sT+2, sT+3))
            A("s_add_u32 s%d, s%d, %d\ns_add_u32 s%d, s%d, %d" % (sT+5, sT+4, 2*61440, sT+7, sT+6, 2*61440))
            A("s_lshl_b32 s%d, s%d, 1\ns_add_u32 s%d, s%d, s%d\ns_lshl_b32 s%d, s%d, 5" % (sT+8, sRT, sT+8, sT+8, sT, sT+8, sT+8))
            A("s_lshl_b32 s%d, s%d, 1\ns_add_u32 s%d, s%d, s%d\ns_add_u32 s%d, s%d, s%d\ns_lshl_b32 s%d, s%d, 2\ns_add_u32 s%d, s%d, 0x%x" % (sT+9, sCT, sT+8, sT+8, sT+9, sT+8, sT+8, sT+1, sT+8, sT+8, sT+8, sT+8, FQKV))
            A("v_mov_b32 v41, 0")
    stamp("s1_mm")
    A("s_mov_b32 exec_lo, 0x00030003\ns_mov_b32 exec_hi, 0x00030003")
    A("ds_write_b128 v31, %s" % V4(CSA))
    A("s_mov_b64 exec, -1")
    A("s_waitcnt vmcnt(0) lgkmcnt(0)\ns_barrier")
    CSR = 136
    for nt in range(2):
        for q in range(4): A("ds_read_b128 %s, v%d offset:%d" % (V4(CSR+16*nt+4*q), 38+nt, 32*q))
    for nt in range(2):
        for mt in range(2):
            a = ACC + 32*nt + 16*mt; st = 32 + 2*mt
            for i in range(0, 16, 2):
                A("v_pk_mul_f32 %s, %s, %s op_sel:[0,1] op_sel_hi:[1,1]" % (V2(a+i), V2(a+i), V2(st)))
    A("s_waitcnt lgkmcnt(0)")
    OUTR = 184
    def st(p):
        for nt in range(2):
            for mt in range(2):
                a = ACC + 32*nt + 16*mt; st = 32 + 2*mt
                for i in range(0, 16, 2):
                    A("v_pk_fma_f32 %s, %s, %s, %s op_sel_hi:[1,0,1] neg_lo:[0,1,0] neg_hi:[0,1,0]" % (V2(a+i), V2(CSR+16*nt+i), V2(st), V2(a+i)))
                o = OUTR + 8*(2*nt+mt)
                for i in range(8): A("v_cvt_pk_bf16_f32 v%d, v%d, v%d" % (o+i, a+2*i, a+2*i+1))
                for qq in range(2):
                    A("buffer_store_dwordx4 %s, v40, %s, s%d offen offset:%d%s" % (V4(o+4*qq), R(sWS), sT+4+2*nt+mt, 512*qq, p))
        setflag(41, sT+8, p)
    dual(st)

LOG2E = 1.4426950408889634
AFW, BQ, BV, P, E, PH = 64, 124, 136, 148, 168, 208
def phi_softmax(isq, mid=None):
    A("s_lshr_b32 s%d, s%d, 1\ns_mul_i32 s%d, s%d, 5\ns_lshl_b32 s%d, s%d, 1\ns_add_u32 s%d, s%d, s%d" % (sC0, sIDX, sC0, sC0, sT, sPAR, sC0, sC0, sT))
    A("v_bfe_u32 v6, v%d, 2, 2\nv_and_b32 v7, 3, v%d" % (vL, vL))
    A("s_mul_i32 s%d, s%d, 160\ns_sub_u32 s%d, %d, s%d" % (sT, sPAR, sT, WPHI + 160, sT))
    A("v_mul_u32_u24 v8, 40, v6\nv_add_u32 v8, s%d, v8\nv_mov_b32 v9, 0x%x" % (sT, MZ))
    A("v_cmp_eq_u32 vcc, v7, v%d\nv_cndmask_b32 v8, v9, v8, vcc" % vG)
    for u in range(3):
        if u: A("s_waitcnt lgkmcnt(0)")
        for tp in range(5):
            for hh in range(2):
                A("ds_read_b64_tr_b16 %s, v8 offset:%d" % (V2(AFW + 4*(5*u + tp) + 2*hh), (8*u+4*hh)*40 + 8*tp))
    A("s_lshl_b32 s%d, s%d, 2\ns_add_u32 s%d, s%d, s%d" % (sRB, sXCD, sRB, sRB, sWL))
    A("v_and_b32 v10, 1, v%d\nv_lshlrev_b32 v10, 1, v10" % vL)
    if not isq:
        A("v_bfe_u32 v11, v%d, 1, 1\nv_mul_u32_u24 v11, 80, v11\nv_add3_u32 v10, v10, v11, s%d\nv_add_u32 v10, 80, v10" % (vL, sC0))
    else:
        A("v_add_u32 v10, s%d, v10" % sC0)
    A("v_lshrrev_b32 v10, 3, v10\nv_lshlrev_b32 v10, 2, v10")
    A("s_lshl_b32 s%d, s%d, 7\ns_add_u32 s%d, s%d, 0x%x" % (sT, sRB, sT, sT, FQKV))
    A("v_mul_u32_u24 v12, 61440, v%d\nv_lshl_add_u32 v12, v%d, 4, v12" % (vG, vTT))
    A("s_mul_i32 s%d, s%d, %d\ns_lshl_b32 s%d, s%d, 8\ns_add_u32 s%d, s%d, s%d" % (sT+1, sRB, 4*61440, sT+2, sC0, sT+1, sT+1, sT+2))
    A("s_add_u32 s%d, s%d, %d\ns_add_u32 s%d, s%d, %d" % (sT+2, sT+1, QKV + 160*256, sT+1, sT+1, QKV + (0 if isq else 80*256)))
    if not isq:
        A("s_lshl_b32 s%d, s%d, 6" % (sT+3, sWL))
        A("v_add_u32 v13, s%d, v%d\nv_mul_u32_u24 v14, 48, v13\nv_add_u32 v14, 0x%x, v14" % (sT+3, vL, VV))
        A("v_mul_u32_u24 v13, 80, v13\nv_add_u32 v13, 0x%x, v13" % PK)
    poll(10, 11, sT, sleep=(1 if isq else 0))
    stamp("s1b_fl")
    for u in range(3): A("buffer_load_dwordx4 %s, v12, %s, s%d offen offset:%d sc1" % (V4(BQ+4*u), R(sWS), sT+1, 256*u))
    if not isq:
        for u in range(3): A("buffer_load_dwordx4 %s, v12, %s, s%d offen offset:%d sc1" % (V4(BV+4*u), R(sWS), sT+2, 256*u))
        lds_signal(0, 15)
    A("s_waitcnt lgkmcnt(0)")
    for u in range(3):
        A("s_waitcnt vmcnt(%d)" % ((0 if isq else 3) + 2 - u))
        for tp in range(5): A(mfma16(P+4*tp, AFW + 4*(5*u + tp), BQ+4*u, 0 if u == 0 else None))
    if not isq:
        A("s_waitcnt vmcnt(0)")
        od, dn = A.newlabel("OD"), A.newlabel("DN")
        A("s_cmp_eq_u32 s%d, 1\ns_cbranch_scc1 %s" % (sPAR, od))
        A("v_mov_b32 v%d, 0x3f80\nv_mov_b32 v%d, 0\ns_branch %s" % (BV+10, BV+11, dn))
        A.label(od)
        A("v_mov_b32 v%d, 0x3f80\nv_mov_b32 v%d, 0" % (BV, BV+1))
        A.label(dn)
        for u in range(3): A("ds_write_b128 v14, %s offset:%d" % (V4(BV+4*u), 16*u))
    if mid: mid()
    M, N = 16, 18
    A("s_mov_b32 s%d, 0x%x\ns_mov_b32 s%d, 0x%x" % (sT+2, f2u(LOG2E), sT+3, f2u(LOG2E)))
    A("v_max3_f32 v%d, v%d, v%d, v%d\nv_min3_f32 v%d, v%d, v%d, v%d" % (M, P, P+1, P+2, N, P, P+1, P+2))
    for i in range(3, 19, 2):
        A("v_max3_f32 v%d, v%d, v%d, v%d\nv_min3_f32 v%d, v%d, v%d, v%d" % (M, M, P+i, P+i+1, N, N, P+i, P+i+1))
    A("v_max_f32 v%d, v%d, v%d\nv_min_f32 v%d, v%d, v%d" % (M, M, P+19, N, N, P+19))
    A("v_mul_f32 v%d, s%d, v%d\nv_mul_f32 v%d, s%d, v%d" % (M, sT+2, M, N, sT+2, N))
    for i in range(0, 20, 2):
        A("v_pk_fma_f32 %s, %s, s[%d:%d], %s op_sel_hi:[1,1,0] neg_lo:[0,0,1] neg_hi:[0,0,1]" % (V2(E+i), V2(P+i), sT+2, sT+3, V2(M)))
        A("v_pk_fma_f32 %s, %s, s[%d:%d], %s op_sel_hi:[1,1,0] neg_lo:[1,0,0] neg_hi:[1,0,0]" % (V2(E+20+i), V2(P+i), sT+2, sT+3, V2(N)))
    for i in range(40): A("v_exp_f32 v%d, v%d" % (E+i, E+i))
    for hlf, S in ((0, M), (20, N)): A("v_pk_add_f32 %s, %s, %s" % (V2(S), V2(E+hlf), V2(E+hlf+2)))
    for i in range(4, 20, 2):
        for hlf, S in ((0, M), (20, N)): A("v_pk_add_f32 %s, %s, %s" % (V2(S), V2(S), V2(E+hlf+i)))
    A("v_add_f32 v%d, v%d, v%d\nv_add_f32 v%d, v%d, v%d" % (M, M, M+1, N, N, N+1))
    A("v_rcp_f32 v%d, v%d\nv_rcp_f32 v%d, v%d" % (M, M, N, N))
    for i in range(0, 40, 2):
        A("v_pk_mul_f32 %s, %s, %s op_sel_hi:[1,0]" % (V2(E+i), V2(E+i), V2(M if i < 20 else N)))
    for i in range(20): A("v_cvt_pk_bf16_f32 v%d, v%d, v%d" % (PH+i, E+2*i, E+2*i+1))

def s1b_k():
    A("s_setprio 1")
    phi_softmax(False)
    stamp("phi_k")
    for i in range(5): A("ds_write_b128 v13, %s offset:%d" % (V4(PH+4*i), 16*i))
    A("s_waitcnt lgkmcnt(0)")
    lds_signal(1, 15)
    skip = A.newlabel("KVS")
    A("s_cmp_eq_u32 s%d, 3\ns_cbranch_scc1 %s" % (sW, skip))
    A("v_lshl_add_u32 v8, v%d, 3, v6" % vG)
    A("s_lshl_b32 s%d, s%d, 5\ns_add_u32 s%d, s%d, %d" % (sT, sW, sT, sT, PK))
    A("v_mul_u32_u24 v9, 80, v8\nv_lshl_add_u32 v9, v7, 3, v9\nv_add_u32 v9, s%d, v9" % sT)
    A("s_lshl_b32 s%d, s%d, 3\ns_add_u32 s%d, s%d, %d" % (sT, sPAR, sT, sT, VV))
    A("v_mul_u32_u24 v10, 48, v8\nv_add_u32 v10, s%d, v10\nv_lshl_add_u32 v20, v7, 3, v10" % sT)
    A("s_mul_i32 s%d, s%d, 48\ns_sub_u32 s%d, 40, s%d" % (sT+1, sPAR, sT+1, sT+1))
    A("v_mov_b32 v12, s%d\nv_mov_b32 v21, 32\nv_cmp_eq_u32 vcc, 0, v7\nv_cndmask_b32 v12, v12, v21, vcc\nv_add_u32 v21, v12, v10" % (sT+1))
    F = 64; D0, D1 = 160, 164
    lds_wait(1, 4, 15, 16)
    stamp("s1b_B1")
    for s in range(8):
        r = F + 12*s
        for hh in range(2): A("ds_read_b64_tr_b16 %s, v9 offset:%d" % (V2(r+2*hh), (32*s+4*hh)*80))
        for k in range(2):
            for hh in range(2): A("ds_read_b64_tr_b16 %s, v%d offset:%d" % (V2(r+4+4*k+2*hh), 20+k, (32*s+4*hh)*48))
        if s >= 1:
            A("s_waitcnt lgkmcnt(6)")
            r = F + 12*(s-1)
            for k, D in ((1, D0), (2, D1)): A(mfma16(D, r+4*k, r, 0 if s == 1 else None))
    A("s_waitcnt lgkmcnt(0)")
    r = F + 84
    for k, D in ((1, D0), (2, D1)): A(mfma16(D, r+4*k, r))
    A("v_lshlrev_b32 v8, 4, v%d" % vL)
    A("s_mul_i32 s%d, s%d, 49152\ns_lshl_b32 s%d, s%d, 11\ns_add_u32 s%d, s%d, s%d\ns_add_u32 s%d, s%d, 0x%x" % (sT, sIDX, sT+1, sW, sT, sT, sT+1, sT, sT, KVP))
    A("s_mul_i32 s%d, s%d, 6144\ns_add_u32 s%d, s%d, s%d" % (sT+1, sXCD, sT+1, sT+1, sT))
    A("s_lshl_b32 s%d, s%d, 2\ns_add_u32 s%d, s%d, s%d\ns_lshl_b32 s%d, s%d, 5\ns_add_u32 s%d, s%d, 0x%x" % (sT+2, sIDX, sT+2, sT+2, sW, sT+2, sT+2, sT+2, sT+2, FKV))
    A("s_lshl_b32 s%d, s%d, 2\nv_mov_b32 v9, s%d" % (sT+3, sXCD, sT+3))
    A("buffer_store_dwordx4 %s, v8, %s, s%d offen sc1" % (V4(D0), R(sWS), sT+1))
    A("s_mov_b32 exec_hi, 0")
    A("buffer_store_dwordx4 %s, v8, %s, s%d offen offset:1024 sc1" % (V4(D1), R(sWS), sT+1))
    A("s_mov_b64 exec, -1")
    stamp("kv_st")
    setflag(9, sT+2, " sc1")
    stamp("kv_pub")
    A("v_and_b32 v9, 7, v%d\nv_lshlrev_b32 v9, 2, v9" % vL)
    A("v_and_b32 v11, 31, v%d\nv_lshlrev_b32 v11, 4, v11" % vL)
    poll(9, 10, sT+2, sleep=OPT.get("kvslp", 2))
    stamp("kv_fl")
    for x in range(8):
        for dt in range(2):
            A("buffer_load_dwordx4 %s, v%d, %s, s%d offen offset:%d sc1" % (V4(F + 8*x + 4*dt), 11 if dt else 8, R(sWS), sT, 1024*dt))
        if x < 7: A("s_add_u32 s%d, s%d, 6144" % (sT, sT))
    A("s_mul_i32 s%d, s%d, %d\ns_add_u32 s%d, s%d, %d" % (sT, sW, 16*48, sT, sT, KVT))
    A("v_mul_u32_u24 v9, 48, v%d\nv_lshl_add_u32 v9, v%d, 3, v9\nv_add_u32 v9, s%d, v9" % (vTT, vG, sT))
    for x in range(1, 8):
        A("s_waitcnt vmcnt(%d)" % (14 - 2*x))
        for i in range(0, 8, 2): A("v_pk_add_f32 %s, %s, %s" % (V2(F+i), V2(F+i), V2(F+8*x+i)))
    for i in range(4): A("v_cvt_pk_bf16_f32 v%d, v%d, v%d" % (10+i, F+2*i, F+2*i+1))
    A("ds_write_b64 v9, v[10:11]")
    A("s_mov_b32 exec_hi, 0\nds_write_b64 v9, v[12:13] offset:32\ns_mov_b64 exec, -1")
    A.label(skip)
    A("s_waitcnt lgkmcnt(0)\ns_barrier")
    stamp("s1b_B2")
    A("s_setprio 0")
    rl_batch2()
    stamp("rl2")

def pretouch():
    A("s_lshl_b32 s94, s%d, 5\ns_add_u32 s94, s94, s%d\ns_lshl_b32 s94, s94, 2\ns_add_u32 s94, s94, s%d" % (sXCD, sIDX, sWL))
    A("v_min_u32 v30, 19, v%d\nv_lshlrev_b32 v30, 7, v30\ns_mul_i32 s95, s94, 2560" % vL)
    A("buffer_load_dword v31, v30, %s, s95 offen sc1" % R(sWS))
    A("buffer_load_dword v31, v30, %s, s95 offen sc1" % R(sOUT))
    A("s_lshl_b32 s95, s94, 7\ns_add_u32 s95, s95, 0x%x\nv_mov_b32 v32, 0" % ST)
    A("buffer_load_dword v31, v32, %s, s95 offen sc1" % R(sWS))

def wtouch(mats, level):
    for p, nbytes in mats:
        srd(sT+12, p, nbytes)
        nl = nbytes // 128
        per = nl // (1024 if level == 0 else 128) + (1 if nl % (1024 if level == 0 else 128) else 0)
        if level == 0: A("s_lshl_b32 s94, s2, 2\ns_add_u32 s94, s94, s%d" % sWL)
        else: A("s_lshl_b32 s94, s%d, 2\ns_add_u32 s94, s94, s%d" % (sIDX, sWL))
        A("s_mul_i32 s94, s94, %d" % (per*128))
        for b in range(0, per, 64):
            A("v_add_u32 v30, %d, v%d\nv_min_u32 v30, %d, v30\nv_lshlrev_b32 v30, 7, v30" % (b, vL, per-1))
            A("buffer_load_dword v31, v30, %s, s94 offen" % R(sT+12))
W1_, W2_, W3_, W4_ = (pW1, 819200), (pW2, 819200), (pW3, 1966080), (pW4, 1966080)

def s1b_q():
    ld_setup()
    dbg_check(36, 34, 35)
    def mid():
        wflags(1)
        lds_wait(0, 4, 30, 31)
        stamp("wfl")
        if OPT.get("pt", 1): pretouch()
        for sg in range(5): ld_seg(sg)
        if OPT.get("wt", 1): wtouch([W3_, W4_], 0)
        stamp("w_iss")
    phi_softmax(True, mid)
    stamp("phi_q")
    A("v_mul_u32_u24 v8, 48, v6\nv_add_u32 v8, 0x%x, v8\nv_mov_b32 v9, 0x%x" % (KVT, MZ))
    A("v_cmp_eq_u32 vcc, v7, v%d\nv_cndmask_b32 v8, v9, v8, vcc" % vG)
    A("v_mul_u32_u24 v12, 20480, v%d\nv_lshl_add_u32 v12, v%d, 4, v12" % (vG, vTT))
    A("v_mov_b32 v13, 0")
    A("s_mul_i32 s%d, s%d, %d\ns_lshl_b32 s%d, s%d, 8\ns_add_u32 s%d, s%d, s%d\ns_add_u32 s%d, s%d, 0x%x" % (sT+1, sRB, 4*20480, sT+2, sC0, sT+1, sT+1, sT+2, sT+1, sT+1, OH))
    A("s_lshl_b32 s%d, s%d, 5\ns_add_u32 s%d, s%d, s%d\ns_lshl_b32 s%d, s%d, 2\ns_add_u32 s%d, s%d, 0x%x" % (sT+2, sRB, sT+2, sT+2, sIDX, sT+2, sT+2, sT+2, sT+2, FO))
    stamp("q_rdy")
    A("s_barrier")
    A("s_setprio 1")
    F = 64; D = 184
    order = [(u, tp) for u in range(5) for tp in range(6)]
    def rd(n):
        u, tp = order[n]
        for hh in range(2): A("ds_read_b64_tr_b16 %s, v8 offset:%d" % (V2(F+4*n+2*hh), (8*u+4*hh)*48 + 8*tp))
    for n in range(6): rd(n)
    for n in range(30):
        if n + 6 < 30: rd(n + 6)
        A("s_waitcnt lgkmcnt(%d)" % (2*min(6, 29 - n)))
        u, tp = order[n]
        A(mfma16(D+4*tp, F+4*n, PH+4*u, 0 if u == 0 else None))
    A("v_add_f32 v16, 0x%x, v%d\nv_rcp_f32 v16, v16" % (f2u(1e-6), D+20))
    for i in range(0, 20, 2): A("v_pk_mul_f32 %s, %s, v[16:17] op_sel_hi:[1,0]" % (V2(D+i), V2(D+i)))
    for i in range(10): A("v_cvt_pk_bf16_f32 v%d, v%d, v%d" % (20+i, D+2*i, D+2*i+1))
    def st(p):
        od, dn = A.newlabel("OD"), A.newlabel("DN")
        A("s_cmp_eq_u32 s%d, 1\ns_cbranch_scc1 %s" % (sPAR, od))
        A("buffer_store_dwordx4 v[20:23], v12, %s, s%d offen%s" % (R(sWS), sT+1, p))
        A("buffer_store_dwordx4 v[24:27], v12, %s, s%d offen offset:256%s" % (R(sWS), sT+1, p))
        A("buffer_store_dwordx2 v[28:29], v12, %s, s%d offen offset:512%s" % (R(sWS), sT+1, p))
        A("s_branch %s" % dn)
        A.label(od)
        A("buffer_store_dwordx2 v[20:21], v12, %s, s%d offen offset:8%s" % (R(sWS), sT+1, p))
        A("buffer_store_dwordx4 v[22:25], v12, %s, s%d offen offset:256%s" % (R(sWS), sT+1, p))
        A("buffer_store_dwordx4 v[26:29], v12, %s, s%d offen offset:512%s" % (R(sWS), sT+1, p))
        A.label(dn)
        setflag(13, sT+2, p)
    dual(st)
    A("s_setprio 0")
    stamp("o_end")

vLD = 5
def ld_setup():
    A("s_mul_i32 s%d, s%d, %d\ns_add_u32 s%d, s%d, 0x%x" % (sWB, sJ, WSL, sWB, sWB, WP))
    A("s_mul_i32 s%d, s%d, 5120" % (sLW, sWL))
    A("v_lshlrev_b32 v%d, 4, v%d\nv_add_u32 v%d, s%d, v%d" % (vLD, vL, vLD, sLW, vLD))
def ld_seg(sg):
    l = (sg % 7) * SEG
    A("s_add_u32 s94, s%d, %d\ns_add_u32 m0, s%d, %d" % (sWB, sg*SEG, sLW, l))
    for q in range(4): A("buffer_load_dwordx4 v%d, %s, s94 offen offset:%d sc1 lds" % (vLD, R(sWS), 1024*q))
    A("s_add_u32 s94, s94, 4096\ns_add_u32 m0, s%d, %d" % (sLW, l + 4096))
    A("buffer_load_dwordx4 v%d, %s, s94 offen sc1 lds" % (vLD, R(sWS)))
def wflags(batch):
    t = sT+4
    A("s_mul_i32 s%d, s%d, 5\ns_lshr_b32 s%d, s%d, 2" % (t, sJ, t, t))
    if batch == 1:
        A("s_mul_i32 s%d, s%d, 80\ns_add_u32 s%d, s%d, 0x%x" % (t+1, t, t+1, t+1, FW))
        A("v_min_u32 v30, 39, v%d\nv_lshlrev_b32 v30, 2, v30" % vL)
        def ld():
            for i in range(3): A("buffer_load_dword v%d, v30, %s, s%d offen offset:%d sc1" % (32+i, R(sWS), t+1, 800*i))
    else:
        A("s_mul_i32 s%d, s%d, 240\ns_add_u32 s%d, s%d, 0x%x" % (t+2, sJ, t+2, t+2, FW + UB["w3"]*4))
        A("s_mul_i32 s%d, s%d, 192\ns_add_u32 s%d, s%d, 0x%x" % (t+3, t, t+3, t+3, FW + UB["w4"]*4))
        A("v_min_u32 v31, 59, v%d\nv_lshlrev_b32 v31, 2, v31\nv_min_u32 v30, 47, v%d\nv_lshlrev_b32 v30, 3, v30" % (vL, vL))
        def ld():
            A("buffer_load_dword v34, v31, %s, s%d offen sc1" % (R(sWS), t+2))
            A("buffer_load_dwordx2 v[32:33], v30, %s, s%d offen sc1" % (R(sWS), t+3))
    spin(ld, lambda: A("v_min3_u32 v32, v32, v33, v34\nv_cmp_eq_u32 vcc, 0, v32"), sleep=4)
def cs_reduce(base, ncol, rowb, dst):
    va, vd = 30, 32
    A("s_lshl_b32 s%d, s%d, 6" % (sT, sWL))
    A("v_add_u32 v%d, s%d, v%d\nv_min_u32 v%d, %d, v%d\nv_lshlrev_b32 v%d, 2, v%d" % (va, sT, vL, va, ncol-1, va, va, va))
    A("s_mul_i32 s%d, s%d, %d\ns_add_u32 s%d, s%d, 0x%x" % (sT, sJ, ncol*4, sT, sT, base))
    for s in range(20):
        A("buffer_load_dword v%d, v%d, %s, s%d offen sc1" % (vd+s, va, R(sWS), sT))
        if s < 19: A("s_add_u32 s%d, s%d, %d" % (sT, sT, rowb))
    def fin(n):
        A("s_waitcnt vmcnt(%d)" % n)
        for s in range(1, 20): A("v_add_f32 v%d, v%d, v%d" % (vd, vd, vd+s))
        A("v_add_u32 v%d, 0x%x, v%d\nds_write_b32 v%d, v%d\ns_waitcnt lgkmcnt(0)" % (va, dst, va, va, vd))
    return fin

SCHED = [(0, 5, 5), (3, 5, 10), (5, 10, 10), (8, 10, 15), (10, 15, 15), (13, 15, 20),
         (15, 18, 20), (17, 20, 24), (19, 22, 26), (21, 24, 28), (23, 26, 30), (25, 28, 32),
         (27, 30, 34), (29, 32, 36), (31, 34, 38), (33, 36, 39), (35, 39, 39)]
def loader_main():
    issued = 5
    for (free, full, upto) in SCHED:
        assert full <= issued and upto <= free + 7
        A("s_waitcnt vmcnt(%d)" % min(63, (issued - full) * 5))
        if free < 19 or free in (25, 27, 31, 35): stamp("H_%d" % free)
        A("s_barrier")
        fin = None
        if free == 3: fin = cs_reduce(CSP1, 80, 2560, CS1)
        if free == 8:
            wflags(2); fin = cs_reduce(CSP3, 192, 6144, CS3)
        while issued < upto:
            ld_seg(issued); issued += 1
        if fin: fin(25)

vAF, vAS, vST, vSH, vRM, vRMH, vZ = 5, 6, 7, 8, 9, 10, 11
vWB = 12
vHP = 17
vMEAN, vRSTD, vSC = 18, 19, 20
vGC0 = 22
ACC = 24
WBUF = 44
HRES = 100
AFR = 120
vS4 = 200
TMP = 204
PKR = TMP + 16
LA = 13
EVEN = "s_mov_b32 exec_lo, 0xffff\ns_mov_b32 exec_hi, 0xffff"

def c_setup():
    A("s_and_b32 s%d, s%d, 3\ns_lshl_b32 s%d, s%d, 2\ns_add_u32 s%d, s%d, s%d" % (sRB, sIDX, sT, sXCD, sRB, sRB, sT))
    A("s_lshl_b32 s%d, s%d, 2\ns_add_u32 s%d, s%d, s%d" % (sTT, sRB, sTT, sTT, sW))
    A("s_lshr_b32 s%d, s%d, 1\ns_mul_i32 s%d, s%d, 5\ns_and_b32 s%d, s%d, 1" % (sT, sJ, sT, sT, sPAR, sJ))
    A("s_mul_i32 s%d, s%d, 3\ns_add_u32 s%d, s%d, s%d" % (sS0, sPAR, sS0, sS0, sT))
    A("s_lshl_b32 s%d, s%d, 10" % (sAOFF, sS0))
    A("s_add_u32 s%d, s%d, 2\ns_lshl_b32 s%d, s%d, 10\ns_lshl_b32 s%d, s%d, 9\ns_add_u32 s%d, s%d, s%d" % (sT+2, sT, sHOFF, sT+2, sT+3, sPAR, sHOFF, sHOFF, sT+3))
    A("v_lshlrev_b32 v%d, 4, v%d" % (vAF, vL))
    t = TMP
    A("v_and_b32 v%d, 1, v%d\nv_lshrrev_b32 v%d, 1, v%d\nv_lshl_add_u32 v%d, v%d, 1, v%d" % (t+4, vG, t+5, vG, t+4, t+4, t+5))
    A("v_lshlrev_b32 v%d, 4, v%d\nv_lshl_add_u32 v%d, v%d, 8, v%d\nv_lshl_add_u32 v%d, v%d, 8, v%d" % (t+6, vTT, vAS, t+4, t+6, vSH, t+5, t+6))
    A("v_lshlrev_b32 v%d, 6, v%d\nv_lshl_add_u32 v%d, v%d, 2, v%d" % (vST, t+5, vST, vTT, vST))
    A("s_lshl_b32 s%d, s%d, 4" % (sT+1, sTT))
    A("v_add_u32 v%d, s%d, v%d\nv_mul_u32_u24 v%d, 1280, v%d" % (t, sT+1, vTT, t+1, t))
    A("s_lshl_b32 s%d, s%d, 6" % (sT+3, sS0))
    A("v_lshl_add_u32 v%d, v%d, 4, v%d\nv_add_u32 v%d, s%d, v%d" % (vRM, t+4, t+1, vRM, sT+3, vRM))
    A("s_lshl_b32 s%d, s%d, 6\ns_lshl_b32 s%d, s%d, 5\ns_add_u32 s%d, s%d, s%d" % (sT+2, sT+2, sT+3, sPAR, sT+2, sT+2, sT+3))
    A("v_lshl_add_u32 v%d, v%d, 3, v%d\nv_add_u32 v%d, s%d, v%d" % (vRMH, vG, t+1, vRMH, sT+2, vRMH))
    A("v_mov_b32 v%d, 0" % vZ)
    A("s_lshr_b32 s%d, s%d, 4" % (sT+4, sTT))
    for q, dl in enumerate((-1, 1, -2, 2)):
        r = vS4 + q
        A("v_add_u32 v%d, %d, v%d\nv_lshrrev_b32 v%d, 4, v%d" % (t+2, dl, t, r, t+2))
        A("v_lshrrev_b32 v%d, 4, v%d\nv_and_b32 v%d, 1, v%d\nv_lshl_add_u32 v%d, v%d, 1, v%d" % (t+3, r, t+7, r, t+7, t+3, t+7))
        A("v_add_u32 v%d, %d, v%d\nv_cmp_eq_u32 vcc, s%d, v%d\nv_cndmask_b32 v%d, v%d, v%d, vcc" % (t+7, (HALO - OH)//20480, t+7, sT+4, t+3, r, t+7, r))
        A("v_mul_u32_u24 v%d, 20480, v%d" % (r, r))
        A("v_and_b32 v%d, 15, v%d\nv_lshl_add_u32 v%d, v%d, 4, v%d\nv_lshl_add_u32 v%d, v%d, 8, v%d" % (t+3, t+2, r, t+3, r, r, vG, r))
        A("v_bfrev_b32 v%d, 1\nv_cmp_gt_u32 vcc, 0x800, v%d\nv_cndmask_b32 v%d, v%d, v%d, vcc" % (t+3, t+2, r, t+3, r))
    A("s_and_b32 s%d, s%d, 15\ns_mov_b32 s%d, 0" % (sT+5, sTT, sEDGE))
    A("s_cmp_eq_u32 s%d, 0\ns_cselect_b32 s%d, 1, s%d\ns_cmp_eq_u32 s%d, 15\ns_cselect_b32 s%d, 2, s%d" % (sT+5, sEDGE, sEDGE, sT+5, sEDGE, sEDGE))
    A("s_cmp_eq_u32 s%d, 0\ns_cselect_b32 s%d, 0, s%d\ns_cmp_eq_u32 s%d, 127\ns_cselect_b32 s%d, 0, s%d" % (sTT, sEDGE, sEDGE, sTT, sEDGE, sEDGE))
    A("v_min_u32 v%d, 59, v%d\nv_mul_u32_u24 v%d, 205, v%d\nv_lshrrev_b32 v%d, 12, v%d" % (t+2, vL, t+3, t+2, t+3, t+3))
    A("v_mul_u32_u24 v%d, 20, v%d\nv_sub_u32 v%d, v%d, v%d" % (t+7, t+3, t+2, t+2, t+7))
    A("v_min_u32 v%d, 1, v%d\nv_mul_u32_u24 v%d, 40, v%d\nv_add_u32 v%d, v%d, v%d\nv_lshlrev_b32 v%d, 8, v%d" % (t+7, t+3, t+7, t+7, t+2, t+2, t+7, t+2, t+2))
    A("v_lshrrev_b32 v%d, 1, v%d\nv_lshlrev_b32 v%d, 4, v%d" % (t+3, t+3, t+3, t+3))
    A("s_cmp_eq_u32 s%d, 1\ns_cselect_b32 s%d, 240, 0" % (sEDGE, sT+5))
    A("v_xor_b32 v%d, s%d, v%d\nv_add_u32 v%d, v%d, v%d" % (t+3, sT+5, t+3, vHP, t+2, t+3))
    A("s_mul_i32 s%d, s%d, 40960\ns_add_u32 s%d, s%d, 0x%x" % (sT+5, sT+4, sT+5, sT+5, HALO - 20480))
    A("s_cmp_eq_u32 s%d, 2\ns_cselect_b32 s%d, %d, 0\ns_add_u32 s%d, s%d, s%d" % (sEDGE, sT+6, 3*20480 + 20*256, sT+5, sT+5, sT+6))
    A("s_cmp_eq_u32 s%d, 0\ns_cselect_b32 s%d, 0x80000000, s%d" % (sEDGE, sT+5, sT+5))
    A("v_add_u32 v%d, s%d, v%d" % (vHP, sT+5, vHP))
    A("v_mov_b32 v%d, v%d\nv_add_u32 v%d, 0x10000, v%d\nv_add_u32 v%d, 0x20000, v%d" % (vWB, vAF, vWB+1, vAF, vWB+2, vAF))
assert (HALO - OH) % 20480 == 0

def wread(dst, off):
    a = off % RING
    return ["ds_read_b128 %s, v%d offset:%d" % (V4(dst), vWB + (a >> 16), a & 0xffff)]
NB = 14
def stream_pre(fr):
    for n in range(LA):
        for l in wread(WBUF + 4*(n % NB), *fr[n][0]): A(l)
FILLRATE = 2
def stream(fr, G, aload, apre, bars, fill, gates=()):
    N = len(fr); na = max(f[3] for f in fr) + 1
    gates = list(gates)
    st = dict(ai=0)
    def issue_to(x):
        lim = gates[0][0] if gates else na
        while st["ai"] < min(lim, x):
            for l in aload(st["ai"]): A(l)
            st["ai"] += 1
    issue_to(apre)
    pend = []; waited = -1
    for n in range(N):
        if n in bars: A("s_barrier")
        if gates and n == gates[0][1]:
            assert st["ai"] == gates[0][0]
            gates[0][3]()
        if gates and n == gates[0][2]:
            gates[0][4](); waited = st["ai"] - 1; gates.pop(0); issue_to(fr[n][3] + apre)
        if n % G == 0:
            hi = min(N, n + G)
            needa = max(f[3] for f in fr[n:hi])
            w = "lgkmcnt(%d)" % (min(N, n + LA) - hi)
            assert st["ai"] > needa
            if needa > waited:
                w = "vmcnt(%d) " % (st["ai"] - 1 - needa) + w; waited = needa
            A("s_waitcnt " + w)
        ws, acc, ar, aidx, z = fr[n]
        A(mfma16(acc, WBUF + 4*(n % NB), ar, 0 if z else None))
        if n + LA < N:
            for l in wread(WBUF + 4*((n + LA) % NB), *fr[n+LA][0]): A(l)
        if n + 1 < N and fr[n+1][3] > aidx: issue_to(aidx + 1 + apre)
        if n in fill: pend += fill[n]
        k = FILLRATE if n + 1 < N else len(pend)
        for l in pend[:k]: A(l)
        pend = pend[k:]

def mk_aload(afr, nring, srdb, voff=None, kmap=None):
    def f(s):
        v = vAF if voff is None else voff + s // 5
        r = afr + 4*(s % nring)
        if kmap is None:
            o = ["buffer_load_dwordx4 %s, v%d, %s, s%d offen offset:%d sc1" % (V4(r), v, R(srdb), sAB, (s & 3)*1024)]
            if s & 3 == 3: o.append("s_add_u32 s%d, s%d, 4096" % (sAB, sAB))
        else:
            o = []
            if s & 1 == 0: o.append("s_add_u32 s93, s%d, %d" % (sAB, kmap(s)*1024))
            o.append("buffer_load_dwordx4 %s, v%d, %s, s93 offen offset:%d sc1" % (V4(r), v, R(srdb), (s & 1)*1024))
        return o
    return f
def abase(base, tstride):
    if tstride: A("s_mul_i32 s%d, s%d, %d\ns_add_u32 s%d, s%d, 0x%x" % (sAB, sTT, tstride, sAB, sAB, base))
    else: A("s_mov_b32 s%d, 0x%x" % (sAB, base))
def frags5(stage, nks, afr, nring, zero=False):
    return [((SB[stage] + s*5120 + t*1024,), ACC + 4*t, afr + 4*(s % nring), s, zero and s == 0) for s in range(nks) for t in range(5)]
def pre_bar(fr):
    A("s_waitcnt lgkmcnt(0)\ns_barrier"); stream_pre(fr)
def flag8(fbase, dst):
    A("s_lshl_b32 s%d, s%d, 5\ns_add_u32 s%d, s%d, 0x%x" % (dst, sTT, dst, dst, fbase))
def poll8(fbase):
    flag8(fbase, sT+1)
    A("v_and_b32 v%d, 7, v%d\nv_lshlrev_b32 v%d, 2, v%d" % (TMP, vL, TMP, TMP))
    poll(TMP, TMP+1, sT+1)
def swaps(pk, npair):
    for p in range(npair):
        A("v_permlane16_swap_b32 v%d, v%d\nv_permlane16_swap_b32 v%d, v%d" % (pk+4*p, pk+4*p+2, pk+4*p+1, pk+4*p+3))
def pack10(src, dst):
    for i in (8, 9): A("v_cvt_pk_bf16_f32 v%d, v%d, v%d\nv_cvt_pk_bf16_f32 v%d, v%d, v%d" % (dst+i, src+2*i, src+2*i+1, dst+i+2, src+2*i, src+2*i+1))
    for i in range(8): A("v_cvt_pk_bf16_f32 v%d, v%d, v%d" % (dst+i, src+2*i, src+2*i+1))
    A("v_permlane16_swap_b32 v%d, v%d\nv_permlane16_swap_b32 v%d, v%d" % (dst+8, dst+10, dst+9, dst+11))
    swaps(dst, 2)
def af_stores(pk, srdb, s0, s1, p, mask=None):
    if mask: A(mask[0])
    A("buffer_store_dwordx4 %s, v%d, %s, s%d offen%s" % (V4(pk), vAS, R(srdb), s0, p))
    A("buffer_store_dwordx4 %s, v%d, %s, s%d offen offset:1024%s" % (V4(pk+4), vAS, R(srdb), s0, p))
    A(mask[1] if mask else EVEN)
    A("buffer_store_dwordx4 %s, v%d, %s, s%d offen%s" % (V4(pk+8), vSH, R(srdb), s1, p))
    A("s_mov_b64 exec, -1")
def store_pre(base, fbase, stats):
    A("s_mul_i32 s%d, s%d, 20480\ns_add_u32 s%d, s%d, 0x%x" % (sT+8, sTT, sT+8, sT+8, base))
    A("s_add_u32 s%d, s%d, s%d\ns_add_u32 s%d, s%d, s%d" % (sT+9, sT+8, sHOFF, sT+8, sT+8, sAOFF))
    A("s_lshl_b32 s%d, s%d, 3\ns_add_u32 s%d, s%d, s%d" % (sT+10, sTT, sT+10, sT+10, sJ))
    if stats: A("s_lshl_b32 s%d, s%d, 7\ns_add_u32 s%d, s%d, 0x%x" % (sT+11, sT+10, sT+11, sT+11, ST))
    A("s_lshl_b32 s%d, s%d, 2\ns_add_u32 s%d, s%d, 0x%x" % (sT+10, sT+10, sT+10, sT+10, fbase))
def store_af(pk, srdb, stats):
    def st(p):
        af_stores(pk, srdb, sT+8, sT+9, p)
        if stats:
            stats_partial(ACC, TMP+12)
            A("buffer_store_dword v%d, v%d, %s, s%d offen%s" % (TMP+12, vST, R(sWS), sT+11, p))
        setflag(vZ, sT+10, p)
    dual(st)
def stats_partial(src, t):
    a, b = t, t+2
    A("v_pk_add_f32 %s, %s, %s" % (V2(a), V2(src), V2(src+2)))
    A("v_pk_mul_f32 %s, %s, %s" % (V2(b), V2(src), V2(src)))
    for i in range(2, 20, 2):
        if i > 2: A("v_pk_add_f32 %s, %s, %s" % (V2(a), V2(a), V2(src+i)))
        A("v_pk_fma_f32 %s, %s, %s, %s" % (V2(b), V2(src+i), V2(src+i), V2(b)))
    A("v_add_f32 v%d, v%d, v%d\nv_add_f32 v%d, v%d, v%d" % (a, a, a+1, b, b, b+1))
    A("v_permlane32_swap_b32 v%d, v%d\nv_add_f32 v%d, v%d, v%d\nv_mov_b32 v%d, v%d" % (a, b, a, a, b, b, a))
    A("v_permlane16_swap_b32 v%d, v%d\nv_add_f32 v%d, v%d, v%d" % (a, b, a, a, b))
def stats_load():
    A("s_lshl_b32 s%d, s%d, 10\ns_add_u32 s%d, s%d, 0x%x" % (sT+1, sTT, sT+1, sT+1, ST))
    for i in range(4):
        A("buffer_load_dword v%d, v%d, %s, s%d offen offset:%d sc1" % (TMP+4+i, TMP+2, R(sWS), sT+1, 64*i))
def stats_addr():
    A("v_lshlrev_b32 v%d, 8, v%d\nv_lshl_add_u32 v%d, v%d, 2, v%d" % (TMP+2, vG, TMP+2, vTT, TMP+2))
def stats_finish():
    a, b = TMP+4, TMP+5
    A("v_add_f32 v%d, v%d, v%d\nv_add_f32 v%d, v%d, v%d" % (a, a, TMP+6, b, b, TMP+7))
    A("v_permlane32_swap_b32 v%d, v%d\nv_add_f32 v%d, v%d, v%d\nv_mov_b32 v%d, v%d" % (a, b, a, a, b, b, a))
    A("v_permlane16_swap_b32 v%d, v%d\nv_add_f32 v%d, v%d, v%d\nv_mov_b32 v%d, v%d" % (a, b, a, a, b, b, a))
    A("v_permlane32_swap_b32 v%d, v%d" % (a, b))
    lnstats(a, b, vRSTD)
    A("v_mov_b32 v%d, v%d" % (vMEAN, a))
GC0 = -2*0.7978845608028654*LOG2E
GC1 = GC0*0.044715
def gelu(src, n, t, sc, cs):
    for i in range(0, n, 2): A("v_pk_fma_f32 %s, %s, %s, %s op_sel_hi:[1,0,1]" % (V2(src+i), V2(src+i), V2(sc), V2(cs+i)))
    for i in range(0, n, 2): A("v_pk_mul_f32 %s, %s, %s" % (V2(t+i), V2(src+i), V2(src+i)))
    for i in range(0, n, 2): A("v_pk_fma_f32 %s, %s, s[%d:%d], %s op_sel_hi:[1,1,0]" % (V2(t+i), V2(t+i), sK, sK+1, V2(vGC0)))
    for i in range(0, n, 2): A("v_pk_mul_f32 %s, %s, %s" % (V2(t+i), V2(t+i), V2(src+i)))
    for i in range(n): A("v_exp_f32 v%d, v%d" % (t+i, t+i))
    for i in range(0, n, 2): A("v_pk_add_f32 %s, %s, 1.0 op_sel_hi:[1,0]" % (V2(t+i), V2(t+i)))
    for i in range(n): A("v_rcp_f32 v%d, v%d" % (t+i, t+i))
    for i in range(0, n, 2): A("v_pk_mul_f32 %s, %s, %s" % (V2(src+i), V2(src+i), V2(t+i)))
def scale_cs(cs, n):
    for i in range(0, n, 2):
        A("v_pk_mul_f32 %s, %s, %s op_sel:[0,1] op_sel_hi:[1,1] neg_lo:[0,1] neg_hi:[0,1]" % (V2(cs+i), V2(cs+i), V2(vSC)))

APRE = OPT.get("apre", 14)
GW = OPT.get("gw", 5)
def c_main():
    c_setup()
    A("s_mov_b32 s%d, 0x%x\ns_mov_b32 s%d, 0x%x\nv_mov_b32 v%d, 0x%x" % (sK, f2u(GC1), sK+1, f2u(GC1), vGC0, f2u(GC0)))
    A("s_mov_b32 s%d, 0xffff0000" % (sK+2))
    CSV = TMP + 28
    A("buffer_load_dwordx4 %s, v%d, %s, 0 offen" % (V4(PKR), vRM, R(sX)))
    A("buffer_load_dwordx4 %s, v%d, %s, 0 offen offset:64" % (V4(PKR+4), vRM, R(sX)))
    A("buffer_load_dwordx2 %s, v%d, %s, 0 offen" % (V2(PKR+8), vRMH, R(sX)))
    stats_addr()
    A("s_lshl_b32 s%d, s%d, 7\ns_add_u32 s%d, s%d, 0x%x" % (sT+1, sRB, sT+1, sT+1, FO))
    A("v_and_b32 v%d, 31, v%d\nv_lshlrev_b32 v%d, 2, v%d" % (TMP, vL, TMP, TMP))
    abase(OH, 20480)
    store_pre(0, FH, True)
    A("s_waitcnt vmcnt(0)")
    rl_batch2_flag()
    swaps(PKR, 2)
    for i in range(10):
        A("v_lshlrev_b32 v%d, 16, v%d\nv_and_b32 v%d, s%d, v%d" % (ACC+2*i, PKR+i, ACC+2*i+1, sK+2, PKR+i))
    fr = frags5(2, 20, AFR, 20)
    pre_bar(fr)
    poll(TMP, TMP+1, sT+1)
    stamp("s2_fl")
    stream(fr, GW, mk_aload(AFR, 20, sWS), APRE, {60}, {})
    stamp("s2_mm")
    pack10(ACC, PKR)
    store_af(PKR, sOUT, True)
    stamp("s2_end")
    for i in range(20): A("v_mov_b32 v%d, v%d" % (HRES+i, ACC+i))
    A("v_lshlrev_b32 v%d, 4, v%d\nv_add_u32 v%d, 0x%x, v%d" % (TMP+3, vG, TMP+3, CS1, TMP+3))
    abase(0, 20480)
    store_pre(OH, FHH, False)
    e = sT+12
    A("s_lshr_b32 s%d, s%d, 4\ns_lshl_b32 s%d, s%d, 1\ns_add_u32 s%d, s%d, s%d\ns_mul_i32 s%d, s%d, 20480" % (e, sTT, e, e, e, e, sEDGE, e, e))
    A("s_add_u32 s%d, s%d, 0x%x\ns_add_u32 s%d, s%d, s%d\ns_add_u32 s%d, s%d, s%d" % (e, e, HALO - 20480, e+1, e, sHOFF, e, e, sAOFF))
    A("s_cmp_eq_u32 s%d, 1\ns_mov_b32 s%d, 0xc000c000\ns_cmov_b32 s%d, 0x00030003\ns_and_b32 s%d, s%d, 0xffff" % (sEDGE, e+2, e+2, e+3, e+2))
    fr = frags5(3, 20, AFR, 20, zero=True)
    pre_bar(fr)
    poll8(FH)
    stamp("s3_fl")
    stats_load()
    with Capture() as cp:
        stats_finish()
        A("v_mul_f32 v%d, v%d, v%d\nv_mul_f32 v%d, v%d, v%d" % (TMP+6, vRSTD, vRSTD, TMP+6, TMP+6, TMP+5))
        A("v_add_f32 v%d, 0x%x, v%d\nv_rsq_f32 v%d, v%d\nv_mul_f32 v%d, v%d, v%d" % (TMP+6, f2u(1e-5), TMP+6, TMP+6, TMP+6, vSC, TMP+6, vRSTD))
        A("v_mul_f32 v%d, v%d, v%d" % (vSC+1, vSC, vMEAN))
    fill = {5: cp.out}
    for t in range(5): fill[20 + 5*t] = ["ds_read_b128 %s, v%d offset:%d" % (V4(CSV+4*t), TMP+3, 64*t)]
    with Capture() as cp: scale_cs(CSV, 20)
    fill[62] = cp.out
    stream(fr, GW, mk_aload(AFR, 20, sOUT), APRE, {60}, fill)
    stamp("s3_mm")
    gelu(ACC, 20, WBUF, vSC, CSV)
    pack10(ACC, PKR)
    stamp("s3_ge")
    def st3(p):
        af_stores(PKR, sWS, sT+8, sT+9, p)
        ne, dn = A.newlabel("NE"), A.newlabel("DN")
        A("s_cmp_eq_u32 s%d, 0\ns_cbranch_scc1 %s" % (sEDGE, ne))
        af_stores(PKR, sWS, sT+12, sT+13, " sc1", mask=("s_mov_b32 exec_lo, s%d\ns_mov_b32 exec_hi, s%d" % (sT+14, sT+14), "s_mov_b32 exec_lo, s%d\ns_mov_b32 exec_hi, s%d" % (sT+15, sT+15)))
        A("s_waitcnt vmcnt(3)\ns_branch %s" % dn)
        A.label(ne)
        A("s_waitcnt vmcnt(0)")
        A.label(dn)
        setflag(vZ, sT+10, p, wait=False)
    dual(st3)
    stamp("s3_end")
    A("v_mul_f32 v%d, v%d, v%d" % (vMEAN, vMEAN, vRSTD))
    for i in range(0, 20, 2):
        A("v_pk_fma_f32 %s, %s, %s, %s op_sel:[0,1,0] op_sel_hi:[1,1,0] neg_lo:[0,0,1] neg_hi:[0,0,1]" % (V2(ACC+i), V2(HRES+i), V2(vMEAN), V2(vMEAN)))
    A("s_lshl_b32 s%d, s%d, 3\ns_sub_u32 s%d, s%d, 8\ns_and_b32 s%d, s%d, 0x380\ns_add_u32 s%d, s%d, 127" % (sT+2, sTT, sT+1, sT+2, sT+2, sT+2, sT+3, sT+2))
    A("v_min_u32 v%d, 23, v%d\nv_add_u32 v%d, s%d, v%d\nv_max_i32 v%d, s%d, v%d\nv_min_i32 v%d, s%d, v%d\nv_lshlrev_b32 v%d, 2, v%d" % (TMP, vL, TMP, sT+1, TMP, TMP, sT+2, TMP, TMP, sT+3, TMP, TMP, TMP))
    A("s_mov_b32 s%d, 0x%x" % (sT+1, FHH))
    abase(OH, 0)
    store_pre(0, FX1, True)
    fr = frags5(4, 20, AFR, 20)
    pre_bar(fr)
    def lds_():
        A("buffer_load_dword v%d, v%d, %s, s%d offen sc1" % (TMP+1, TMP, R(sWS), sT+1))
        A("buffer_load_dword v%d, v%d, %s, 0 offen sc1" % (TMP+4, vHP, R(sWS)))
    def cond_():
        A("v_not_b32 v%d, v%d\nv_min_u32 v%d, v%d, v%d\nv_cmp_eq_u32 vcc, 0, v%d" % (TMP+4, TMP+4, TMP+1, TMP+1, TMP+4, TMP+1))
    spin(lds_, cond_)
    stamp("s4_fl")
    stream(fr, GW, mk_aload(AFR, 20, sWS, voff=vS4), APRE, {60}, {})
    stamp("s4_mm")
    pack10(ACC, PKR)
    store_af(PKR, sOUT, True)
    stamp("s4_end")
    for i in range(0, 20, 2): A("v_pk_add_f32 %s, %s, %s" % (V2(HRES+i), V2(HRES+i), V2(ACC+i)))
    A("v_lshlrev_b32 v%d, 4, v%d\nv_add_u32 v%d, 0x%x, v%d" % (TMP+3, vG, TMP+3, CS3, TMP+3))
    abase(0, 20480)
    A("s_mul_i32 s%d, s%d, 61440\ns_mul_i32 s%d, s%d, 6144\ns_add_u32 s%d, s%d, s%d\ns_add_u32 s%d, s%d, 0x%x" % (sT+8, sTT, sT+9, sJ, sT+8, sT+8, sT+9, sT+8, sT+8, G_))
    A("s_add_u32 s%d, s%d, 4096" % (sT+9, sT+8))
    A("s_lshl_b32 s%d, s%d, 3\ns_add_u32 s%d, s%d, s%d\ns_lshl_b32 s%d, s%d, 2\ns_add_u32 s%d, s%d, 0x%x\ns_add_u32 s%d, s%d, 4096" % (sT+10, sTT, sT+10, sT+10, sJ, sT+10, sT+10, sT+10, sT+10, FG, sT+11, sT+10))
    A("s_add_u32 s%d, s%d, 4096" % (sT+12, sT+11))
    CS5, GT, GP = TMP + 8, TMP + 16, TMP + 24
    fr = [((SB[5] + p*40960 + s*2048 + t*1024,), ACC + 8*(p & 1) + 4*t, AFR + 4*s, s, s == 0) for p in range(6) for s in range(20) for t in range(2)]
    pre_bar(fr)
    poll8(FX1)
    stamp("s5_fl")
    stats_load()
    fill = {}
    with Capture() as cp:
        stats_finish()
        A("v_mov_b32 v%d, v%d\nv_mul_f32 v%d, v%d, v%d" % (vSC, vRSTD, vSC+1, vRSTD, vMEAN))
    fill[8] = cp.out
    def epi(p):
        a = ACC + 8*(p & 1); g = GP + 4*(p & 1)
        scale_cs(CS5, 8)
        gelu(a, 8, GT, vSC, CS5)
        for i in range(4): A("v_cvt_pk_bf16_f32 v%d, v%d, v%d" % (g+i, a+2*i, a+2*i+1))
        swaps(g, 1)
    def gst(p):
        dual(lambda pp: A("buffer_store_dwordx4 %s, v%d, %s, s%d offen offset:%d%s" % (V4(GP + 4*(p & 1)), vAS, R(sWS), sT+8 + (p >> 2), (p & 3)*1024, pp)))
    for p in range(6):
        fill.setdefault(40*p + 24, []).extend(["ds_read_b128 %s, v%d offset:%d" % (V4(CS5+4*t), TMP+3, 128*p + 64*t) for t in range(2)])
    for p in range(5):
        with Capture() as cp: epi(p)
        with Capture() as c2:
            if p in (2, 4): dual(lambda pp: setflag(vZ, sT+10 + (p >> 2), pp))
            gst(p)
        fill[40*(p+1) + 3] = cp.out + ["\n".join(c2.out)]
    stream(fr, 4, mk_aload(AFR, 20, sOUT), 20, set(range(40, 240, 40)), fill)
    stamp("s5_mm")
    epi(5); gst(5)
    for i in range(20): A("v_mov_b32 v%d, v%d" % (ACC+i, HRES+i))
    abase(G_, GST)
    fr = frags5(6, 48, HRES, 24)
    pre_bar(fr)
    stamp("s5_end")
    poll8(FG)
    dual(lambda pp: setflag(vZ, sT+12, pp, wait=False))
    stamp("s6_fl")
    gl = lambda: A("buffer_load_dword v%d, v%d, %s, s%d offen sc1" % (TMP+1, TMP, R(sWS), sT+1))
    def gi():
        A("s_add_u32 s%d, s%d, 4096" % (sT+1, sT+1)); gl()
    def gc():
        spin(gl, lambda: A("v_cmp_eq_u32 vcc, 0, v%d" % (TMP+1)), issued=True)
    kmap = lambda i: 6*((i >> 1) & 7) + 2*(i >> 4) + (i & 1)
    stream(fr, GW, mk_aload(HRES, 24, sWS, kmap=kmap), OPT.get("apre6", 16), {40, 80, 120, 160}, {},
           gates=[(16, 0, 35, gi, gc), (32, 85, 115, gi, gc)])
    stamp("s6_mm")
    pack10(ACC, PKR)
    A("buffer_store_dwordx4 %s, v%d, %s, 0 offen" % (V4(PKR), vRM, R(sOUT)))
    A("buffer_store_dwordx4 %s, v%d, %s, 0 offen offset:64" % (V4(PKR+4), vRM, R(sOUT)))
    A(EVEN)
    A("buffer_store_dwordx4 %s, v%d, %s, 0 offen" % (V4(PKR+8), vRMH, R(sOUT)))
    A("s_mov_b64 exec, -1")
    stamp("s6_end")

def ts_dump():
    if not OPT["ts"]: return
    A("s_waitcnt vmcnt(0)")
    stamp("fin")
    A("s_lshl_b32 s%d, s2, 3\ns_add_u32 s%d, s%d, s%d\ns_lshl_b32 s%d, s%d, 8\ns_add_u32 s%d, s%d, 0x%x" % (sT, sT, sT, sW, sT, sT, sT, sT, TS))
    A("v_lshlrev_b32 v63, 2, v%d" % vL)
    A("buffer_store_dword v253, v63, %s, s%d offen" % (R(sWS), sT))
    if OPT.get("dbgts"):
        A("s_cmp_lg_u32 s2, %d\ns_cbranch_scc1 L_end\ns_cmp_lg_u32 s%d, 0\ns_cbranch_scc1 L_end" % (OPT["dbgts"], sW))
        A("v_readlane_b32 s94, v253, 0\ns_nop 3\nv_subrev_u32 v253, s94, v253")
        A("s_mov_b64 exec, 0xffff\nbuffer_store_dword v253, v63, %s, 0 offen sc1" % R(sDBG))

def main():
    prologue()
    A("s_cmp_lt_u32 s%d, 4\ns_cbranch_scc1 L_C" % sW)
    A("s_cmp_ge_u32 s%d, 30\ns_cbranch_scc1 L_hsp" % sIDX)
    s1a_loader()
    A.label("L_h3")
    s1b_q()
    loader_main()
    A("s_branch L_fin")
    A.label("L_hsp")
    more_srds()
    A.label("L_spare")
    spare_main()
    stamp("sp_end")
    A("s_waitcnt lgkmcnt(0)\ns_barrier")
    A("s_cmp_lt_u32 s%d, 4\ns_cbranch_scc1 L_c3" % sW)
    dbg_issue(36, 34)
    A("s_branch L_h3")
    A.label("L_C")
    init_c()
    A("s_cmp_ge_u32 s%d, 30\ns_cbranch_scc1 L_spare" % sIDX)
    s1a_compute()
    stamp("s1_end")
    A.label("L_c3")
    s1b_k()
    c_main()
    A.label("L_fin")
    ts_dump()
    A.label("L_end")
    A("s_endpgm")
    body, nn = finalize(A.lines)
    hdr = open("sequential_preLN__linear_kernel_hedgehog__mixer_s_mlp__prompt.s.ref").read().split("; Override launch")[0]
    out = hdr + "; @launch grid=(256,1,1) block=(512,1,1) lds=%d\n" % LDS_BYTES
    out += '.amdgcn_target "amdgcn-amd-amdhsa--gfx950"\n.text\n.globl %s\n.p2align 8\n.type %s,@function\n%s:\n' % (KN, KN, KN)
    out += "\n".join(("" if l.endswith(":") else "  ") + l for l in body) + "\n"
    out += '.section .rodata,"a"\n.p2align 6\n.amdhsa_kernel %s\n' % KN
    out += "  .amdhsa_next_free_vgpr 256\n  .amdhsa_next_free_sgpr 102\n  .amdhsa_accum_offset 256\n  .amdhsa_group_segment_fixed_size 0\n  .amdhsa_kernarg_size 96\n  .amdhsa_user_sgpr_count 2\n  .amdhsa_user_sgpr_kernarg_segment_ptr 1\n  .amdhsa_system_sgpr_workgroup_id_x 1\n.end_amdhsa_kernel\n"
    open(sys.argv[1], "w").write(out)
    open(sys.argv[1] + ".names", "w").write(" ".join(STN))
    print("written", sys.argv[1], "lines", len(body), "nops", nn, "barriers", sum(l == "s_barrier" for l in body))
main()
```

```python
import sys, struct
from asmlib import *

KN = "sequential_preLN__linear_kernel_hedgehog__mixer_s_mlp__prompt_kernel"
OPT = dict(ts=0, rot=1, forceslow=0)
for a in sys.argv[2:]:
    k, v = a.split("="); OPT[k] = int(v)
WSOFF = OPT.get("wsoff", 0) << 20
def f2u(f): return struct.unpack("<I", struct.pack("<f", f))[0]

OH = 0x000000
QKV = 0x300000
G_ = QKV; GST = 61440
WP = 0xC00000; WSL = 798720
CSP1 = 0x1300000; CSP3 = 0x1310000
KVP = 0x1400000
ST = 0xB00000
XS = 0xB20000
HALO = 0xB40000
ZR = 0xB90000
FKV = ZR; FO = ZR + 4096; FH = ZR + 8192; FHH = ZR + 12288; FX1 = ZR + 16384; FG = ZR + 20480
FQKV = ZR + 32768; FW = ZR + 36864
TS = 0x2500000
SB = {2: 0, 3: 102400, 4: 204800, 5: 307200, 6: 552960}
UB = {"wo": 0, "w1": 200, "w2": 400, "w3": 600, "w4": 1080}
RING = 143360; SEG = 20480
PK = 102400; VV = 122880
MZ = 143360
WPHI = MZ + 2048 - 160
CNT = MZ + 3040
KVT = MZ + 3072
CS0 = MZ + 5632
CS1 = MZ + 6144
CS3 = MZ + 6656
LDS_BYTES = 163840
sW, sXCD, sIDX, sFAST, sCNT = 3, 4, 5, 6, 7
sX, sWQ, sWS, sOUT, sDBG, sSRC = 8, 12, 16, 20, 24, 28
sT = 32
sPAR, sRB, sJ, sTT, sS0, sAOFF, sHOFF, sAB, sLW, sWL, sC0, sEDGE, sWB, sRT, sCT = range(48, 63)
pWPHI, pWO, pW1, pW2, pW3, pW4 = 68, 70, 74, 76, 78, 80
sK = 88
vL, vG, vTT, vONE = 1, 2, 3, 4

A = Asm()
STN = []
KEEP = "entry s1_b0 s1_mm s1b_fl phi_k kv_pub s1b_B2 s2_fl s2_end s3_fl s3_end s4_end s5_fl s5_end s6_mm fin".split()
def stamp(name):
    if OPT.get("dbgts"):
        if name not in KEEP: return
        STN[:] = KEEP
    if OPT["ts"]:
        if name not in STN: STN.append(name)
        assert len(STN) <= 64
        A("%s s[100:101]\ns_waitcnt lgkmcnt(0)\nv_writelane_b32 v253, s100, %d" % ("s_memtime" if OPT["ts"] == 2 else "s_memrealtime", STN.index(name)))
class Capture:
    def __enter__(self):
        self.save = A.lines; A.lines = []; return self
    def __exit__(self, *a):
        self.out = A.lines; A.lines = self.save
def R(b): return "s[%d:%d]" % (b, b + 3)
def V4(b): return "v[%d:%d]" % (b, b + 3)
def V2(b): return "v[%d:%d]" % (b, b + 1)
def srd(dst, p, nbytes):
    A("s_mov_b32 s%d, s%d\ns_and_b32 s%d, s%d, 0xffff\ns_mov_b32 s%d, 0x%x\ns_mov_b32 s%d, 0x20000" % (dst, p, dst+1, p+1, dst+2, nbytes, dst+3))
def mfma16(d, a, b, c=None):
    return "v_mfma_f32_16x16x32_bf16 %s, %s, %s, %s" % (V4(d), V4(a), V4(b), "0" if c == 0 else V4(d))

POLL_LIMIT = 40000
def spin(loads, cond, sleep=0, issued=False):
    L, D, E = A.newlabel("P"), A.newlabel("PD"), A.newlabel("PE")
    A("s_mov_b32 s%d, %d" % (sCNT, POLL_LIMIT))
    if issued: A("s_branch %s" % E)
    A.label(L)
    loads()
    A.label(E)
    A("s_waitcnt vmcnt(0)")
    cond()
    A("s_cbranch_vccz %s" % D)
    if sleep: A("s_sleep %d" % sleep)
    A("s_sub_u32 s%d, s%d, 1\ns_cbranch_scc0 %s" % (sCNT, sCNT, L))
    A.label(D)
def poll(vaddr, vtmp, soff, sleep=0):
    spin(lambda: A("buffer_load_dword v%d, v%d, %s, s%d offen sc1" % (vtmp, vaddr, R(sWS), soff)),
         lambda: A("v_cmp_eq_u32 vcc, 0, v%d" % vtmp), sleep)
def dual(fn, sreg=sFAST):
    S, E = A.newlabel("SL"), A.newlabel("SE")
    A("s_cmp_eq_u32 s%d, 0\ns_cbranch_scc1 %s" % (sreg, S))
    fn("")
    A("s_branch %s" % E)
    A.label(S)
    A("s_nop 1")
    fn(" sc1")
    A.label(E)
def setflag(vz, soff, p, wait=True):
    if wait: A("s_waitcnt vmcnt(0)")
    A("s_mov_b64 exec, 1")
    A("buffer_store_dword v%d, v%d, %s, s%d offen%s" % (vONE, vz, R(sWS), soff, p))
    A("s_mov_b64 exec, -1")
def dbg_issue(va, vt):
    A("v_lshlrev_b32 v%d, 2, v%d" % (va, vL))
    A("buffer_load_dword v%d, v%d, %s, 0 offen sc1" % (vt, va, R(sDBG)))
def dbg_check(va, vt, vt2):
    A("s_mov_b32 s98, 0x01010101")
    def cond():
        A("v_subrev_u32 v%d, s98, v%d\nv_not_b32 v%d, v%d" % (vt2, vt, va+1, vt))
        A("v_and_b32 v%d, v%d, v%d\nv_and_b32 v%d, 0x80808080, v%d" % (vt2, vt2, va+1, vt2, vt2))
        A("v_cmp_ne_u32 vcc, 0, v%d" % vt2)
    spin(lambda: A("buffer_load_dword v%d, v%d, %s, 0 offen sc1" % (vt, va, R(sDBG))), cond, sleep=2, issued=True)
    A("s_getreg_b32 s94, hwreg(HW_REG_XCC_ID, 0, 4)")
    A("s_add_u32 s94, s94, 1\ns_mul_i32 s94, s94, s98")
    A("v_cmp_ne_u32 vcc, s94, v%d" % vt)
    A("s_lshl_b32 s95, s%d, 3\ns_nop 1" % sXCD)
    A("s_lshr_b64 s[96:97], vcc, s95\ns_and_b32 s96, s96, 0xff")
    A("s_cmp_eq_u32 s96, 0\ns_cselect_b32 s%d, 1, 0" % sFAST)
    if OPT["forceslow"]: A("s_mov_b32 s%d, 0" % sFAST)
def lds_signal(k, va):
    A("v_mov_b32 v%d, 0x%x" % (va, CNT + 4*k))
    A("s_mov_b64 exec, 1\nds_add_u32 v%d, v%d\ns_mov_b64 exec, -1" % (va, vONE))
def lds_wait(k, n, va, vt, sreg=None):
    L, D = A.newlabel("W"), A.newlabel("WD")
    if sreg is None: A("v_mov_b32 v%d, 0x%x" % (va, CNT + 4*k))
    else: A("v_mov_b32 v%d, s%d" % (va, sreg))
    A("s_mov_b32 s%d, %d" % (sCNT, 4000000))
    A.label(L)
    A("ds_read_b32 v%d, v%d\ns_waitcnt lgkmcnt(0)" % (vt, va))
    A("v_cmp_gt_u32 vcc, %d, v%d\ns_cbranch_vccz %s" % (n, vt, D))
    A("s_sub_u32 s%d, s%d, 1\ns_cbranch_scc0 %s" % (sCNT, sCNT, L))
    A.label(D)
def lnstats(s1, s2, rs):
    A("v_mul_f32 v%d, 0x%x, v%d\nv_mul_f32 v%d, 0x%x, v%d" % (s1, f2u(1/640), s1, s2, f2u(1/640), s2))
    A("v_fma_f32 v%d, -v%d, v%d, v%d\nv_max_f32 v%d, 0, v%d" % (s2, s1, s1, s2, s2, s2))
    A("v_add_f32 v%d, 0x%x, v%d\nv_rsq_f32 v%d, v%d" % (rs, f2u(1e-5), s2, rs, rs))

def prologue():
    A("s_cmp_ge_u32 s2, 256\ns_cbranch_scc1 L_end")
    if OPT["ts"]: A("v_mov_b32 v253, 0")
    stamp("entry")
    A("s_load_dwordx16 s[64:79], s[0:1], 0\ns_load_dwordx8 s[80:87], s[0:1], 64")
    A("v_and_b32 v%d, 63, v0\nv_lshrrev_b32 v5, 6, v0" % vL)
    A("v_lshrrev_b32 v%d, 4, v%d\nv_and_b32 v%d, 15, v%d\nv_mov_b32 v%d, 1" % (vG, vL, vTT, vL, vONE))
    A("v_readfirstlane_b32 s%d, v5" % sW)
    A("s_and_b32 s%d, s2, 7\ns_lshr_b32 s%d, s2, 3" % (sXCD, sIDX))
    A("s_mov_b32 s%d, 0\ns_and_b32 s%d, s%d, 3\ns_and_b32 s%d, s%d, 1" % (sFAST, sWL, sW, sPAR, sIDX))
    A("s_lshr_b32 s%d, s%d, 2" % (sJ, sIDX))
    A("s_lshl_b32 s%d, s%d, 1\ns_add_u32 s%d, s%d, s%d\ns_lshr_b32 s%d, s%d, 1" % (sRT, sXCD, sRT, sRT, sPAR, sCT, sIDX))
    A("s_waitcnt lgkmcnt(0)")
    if WSOFF: A("s_add_u32 s86, s86, 0x%x\ns_addc_u32 s87, s87, 0" % WSOFF)
    srd(sX, 64, 2621440); srd(sWQ, 66, 2457600)

def more_srds():
    srd(sWS, 86, 0x10000000 - WSOFF); srd(sOUT, 82, 2621440); srd(sDBG, 84, 256)

def init_c():
    l1, l2, l3 = A.newlabel("I"), A.newlabel("I"), A.newlabel("I")
    A("s_cmp_lg_u32 s%d, 0\ns_cbranch_scc1 %s" % (sW, l1))
    A("s_lshl_b32 s%d, s%d, 8\ns_lshl_b32 s%d, s%d, 3\ns_add_u32 s%d, s%d, s%d" % (sT, sXCD, sT+1, sIDX, sT, sT, sT+1))
    A("v_lshrrev_b32 v6, 3, v%d\nv_add_u32 v7, s%d, v6\nv_mul_u32_u24 v8, 1280, v7" % (vL, sT))
    A("v_and_b32 v9, 7, v%d\nv_lshl_add_u32 v8, v9, 4, v8" % vL)
    D = 64
    for i in range(10):
        A("buffer_load_dwordx4 %s, v8, %s, 0 offen offset:%d" % (V4(D+4*i), R(sX), 128*i))
    more_srds()
    A("v_lshlrev_b32 v10, 2, v%d\nv_mov_b32 v11, 0" % vL)
    A("s_lshl_b32 s%d, s2, 8\ns_add_u32 s%d, s%d, 0x%x" % (sT+1, sT+1, sT+1, ZR))
    A("buffer_store_dword v11, v10, %s, s%d offen sc1" % (R(sWS), sT+1))
    for r in (24, 25, 26, 27): A("v_mov_b32 v%d, -1" % r)
    A("v_lshlrev_b32 v10, 4, v%d\ns_mul_i32 s%d, s2, 1280\ns_add_u32 s%d, s%d, 0x%x" % (vL, sT+1, sT+1, sT+1, HALO))
    A("buffer_store_dwordx4 v[24:27], v10, %s, s%d offen sc1" % (R(sWS), sT+1))
    A("s_mov_b64 exec, 0xffff\nbuffer_store_dwordx4 v[24:27], v10, %s, s%d offen offset:1024 sc1\ns_mov_b64 exec, -1" % (R(sWS), sT+1))
    A("s_mov_b32 s%d, 0xffff0000" % (sT+2))
    s1, s2 = 12, 14
    for r in (12, 13, 14, 15): A("v_mov_b32 v%d, 0" % r)
    for i in range(10):
        A("s_waitcnt vmcnt(%d)" % (12 - i))
        for q in range(4):
            r = D + 4*i + q; t = 20 + 2*(q & 1)
            A("v_lshlrev_b32 v%d, 16, v%d\nv_and_b32 v%d, s%d, v%d" % (t, r, t+1, sT+2, r))
            A("v_pk_add_f32 %s, %s, %s" % (V2(s1), V2(s1), V2(t)))
            A("v_pk_fma_f32 %s, %s, %s, %s" % (V2(s2), V2(t), V2(t), V2(s2)))
    A("v_add_f32 v12, v12, v13\nv_add_f32 v14, v14, v15")
    for m in ("quad_perm:[1,0,3,2]", "quad_perm:[2,3,0,1]", "row_half_mirror"):
        for r in (s1, s2): A("v_add_f32_dpp v%d, v%d, v%d %s row_mask:0xf bank_mask:0xf" % (r, r, r, m))
    lnstats(s1, s2, s1+1)
    A("v_mul_f32 v12, v12, v13\nv_lshlrev_b32 v7, 3, v7\ns_mov_b32 s%d, 0x%x" % (sT+1, XS))
    A("s_mov_b32 exec_lo, 0x01010101\ns_mov_b32 exec_hi, 0x01010101")
    A("buffer_store_dwordx2 v[12:13], v7, %s, s%d offen sc1" % (R(sWS), sT+1))
    A("s_mov_b64 exec, -1")
    A("s_getreg_b32 s94, hwreg(HW_REG_XCC_ID, 0, 4)\ns_add_u32 s94, s94, 1")
    A("s_lshl_b32 s95, s%d, 5\ns_add_u32 s95, s95, s%d" % (sXCD, sIDX))
    A("v_mov_b32 v8, s95\nv_mov_b32 v9, s94")
    A("s_waitcnt vmcnt(0)")
    A("s_mov_b64 exec, 1\nbuffer_store_byte v9, v8, %s, 0 offen sc1\ns_mov_b64 exec, -1" % R(sDBG))
    stamp("pub")
    A("s_branch %s" % l3)
    A.label(l1)
    more_srds()
    if OPT.get("cpf"):
        A("s_cmp_lg_u32 s%d, 3\ns_cbranch_scc1 %s" % (sW, l2))
        A("s_getpc_b64 s[94:95]")
        A.label("L_pc")
        A("s_sub_u32 s94, s94, L_pc-%s\ns_subb_u32 s95, s95, 0" % KN)
        A("s_and_b32 s96, s%d, 15\ns_lshl_b32 s96, s96, 5" % sIDX)
        A("v_and_b32 v8, 31, v%d\nv_add_u32 v8, s96, v8\nv_min_u32 v8, (L_end-%s)/128, v8\nv_lshlrev_b32 v8, 7, v8" % (vL, KN))
        A("v_mov_b32 v9, s95\nv_add_co_u32 v8, vcc, s94, v8\nv_addc_co_u32 v9, vcc, 0, v9, vcc")
        A("global_load_dword v252, v[8:9], off")
        A.label(l2)
    A("s_cmp_lg_u32 s%d, 1\ns_cbranch_scc1 %s" % (sW, l3))
    srd(sSRC, pWPHI, 25600)
    A("v_lshlrev_b32 v6, 4, v%d\nv_add_u32 v7, 0x%x, v6\ns_mul_i32 s%d, s%d, 800" % (vL, MZ, sT, sIDX))
    A("buffer_load_dwordx4 v[12:15], v6, %s, s%d offen" % (R(sSRC), sT))
    for r in (8, 9, 10, 11): A("v_mov_b32 v%d, 0" % r)
    for i in range(3): A("ds_write_b128 v7, v[8:11] offset:%d" % (1024*i))
    A("s_waitcnt vmcnt(0)")
    A("v_cmp_gt_u32 vcc, 50, v%d\ns_and_saveexec_b64 s[96:97], vcc" % vL)
    A("ds_write_b128 v7, v[12:15] offset:2048")
    A("s_mov_b64 exec, -1")
    A.label(l3)

def stouch(pbase, soff, nbytes, off0=0):
    A("s_add_u32 s90, s%d, s%d\ns_addc_u32 s91, s%d, 0" % (pbase, soff, pbase+1))
    for o in range(off0, off0 + nbytes, 64): A("s_load_dword s99, s[90:91], 0x%x" % o)

def s1a_loader():
    A("v_lshrrev_b32 v6, 3, v%d" % vL)
    A("s_lshl_b32 s%d, s%d, 7\ns_lshl_b32 s%d, s%d, 5\ns_add_u32 s%d, s%d, s%d" % (sT+1, sRT, sT+2, sWL, sT+1, sT+1, sT+2))
    A("v_add_u32 v6, s%d, v6\nv_mul_u32_u24 v6, 1280, v6" % (sT+1))
    A("v_and_b32 v7, 7, v%d\nv_xor_b32 v7, v7, v%d" % (vL, vG))
    for i in range(4):
        A("v_xor_b32 v16, %d, v7\nv_lshl_add_u32 v%d, v16, 4, v6" % ((i & 1) << 2, 8+i))
        if i: A("v_add_u32 v%d, %d, v%d" % (8+i, i*10240 - i*1024, 8+i))
    A("s_lshl_b32 s%d, s%d, 4" % (sT+1, sWL))
    A("v_add_u32 v6, s%d, v%d\nv_mul_u32_u24 v6, 3840, v6" % (sT+1, vG))
    A("v_lshlrev_b32 v7, 2, v%d\nv_xor_b32 v7, v7, v%d\nv_lshlrev_b32 v7, 4, v7" % (vG, vTT))
    A("s_lshl_b32 s%d, s%d, 8" % (sT+1, sCT))
    A("v_add3_u32 v12, v6, v7, s%d" % (sT+1))
    for i in range(1, 4): A("v_add_u32 v%d, %d, v12" % (12+i, i*4*3840 - i*1024))
    C = sT+4
    if OPT["rot"]:
        A("s_mul_i32 s%d, s%d, 5\ns_add_u32 s%d, s%d, s%d" % (C, sPAR, C, C, sCT))
        A("s_cmp_ge_u32 s%d, 10\ns_cselect_b32 s%d, 10, 0\ns_sub_u32 s%d, s%d, s%d" % (C, sT+6, C, C, sT+6))
    else:
        A("s_mov_b32 s%d, 0" % C)
    A("s_lshl_b32 s%d, s%d, 12" % (sT+5, sWL))
    def issue(i):
        slot = (i % 4) * 32768
        A("s_lshl_b32 s%d, s%d, 7\ns_mul_i32 s%d, s%d, %d" % (sT+6, C, sT+7, C, 64*3840))
        A("s_add_u32 m0, s%d, %d" % (sT+5, slot))
        for q in range(4): A("buffer_load_dwordx4 v%d, %s, s%d offen offset:%d lds" % (8+q, R(sX), sT+6, q*1024))
        A("s_add_u32 m0, s%d, %d" % (sT+5, slot + 16384))
        for q in range(4): A("buffer_load_dwordx4 v%d, %s, s%d offen offset:%d lds" % (12+q, R(sWQ), sT+7, q*1024))
        A("s_add_u32 s%d, s%d, 1\ns_cmp_eq_u32 s%d, 10\ns_cselect_b32 s%d, 0, s%d" % (C, C, C, C, C))
    NI = OPT.get("ni", 2)
    for i in range(NI): issue(i)
    more_srds()
    stamp("H_iss")
    A("s_lshr_b32 s%d, s%d, 1\ns_lshl_b32 s%d, s%d, 1\ns_add_u32 s%d, s%d, s%d\ns_mul_i32 s%d, s%d, %d" % (sT+8, sWL, sT+9, sRT, sT+8, sT+8, sT+9, sT+8, sT+8, 4*61440))
    A("s_lshl_b32 s%d, s%d, 12\ns_add_u32 s%d, s%d, s%d\ns_and_b32 s%d, s%d, 1\ns_lshl_b32 s%d, s%d, 11" % (sT+9, sCT, sT+8, sT+8, sT+9, sT+9, sWL, sT+9, sT+9))
    A("s_add_u32 s%d, s%d, s%d\ns_add_u32 s%d, s%d, 0x%x" % (sT+8, sT+8, sT+9, sT+8, sT+8, QKV))
    issued = NI
    for i in range(10):
        A("s_waitcnt vmcnt(%d)" % ((issued - i - 1) * 8 + (1 if i == 9 else 0)))
        if i in (0, 1, 3, 6, 9): stamp("H_c%d" % i)
        A("s_barrier")
        tgt = min(10, i + 4, issued + OPT.get("nstep", 2))
        while issued < tgt:
            issue(issued); issued += 1
        if OPT.get("spt", 1) and i < 8:
            stouch(86, sT+8, 1024, off0=(i >> 1)*61440 + (i & 1)*1024)
        if i == 8: dbg_issue(36, 34)
    A("s_barrier")

U, CU, KS, RS, MT = sT+8, sT+9, sT+10, sT+11, sT+12
def rl_decode(mats):
    T1, T2 = sT+13, sT+1
    P = {"wo": pWO, "w1": pW1, "w2": pW2, "w3": pW3, "w4": pW4}; ID = {"wo": 0, "w1": 1, "w2": 2, "w3": 3, "w4": 4}
    m0 = mats[0]
    A("s_mov_b32 s%d, %d\ns_mov_b32 s%d, %d" % (MT, ID[m0], T2, UB[m0]))
    A("s_mov_b32 s%d, s%d\ns_mov_b32 s%d, s%d" % (sSRC, P[m0], sSRC+1, P[m0]+1))
    for nm in mats[1:]:
        A("s_cmp_ge_u32 s%d, %d" % (U, UB[nm]))
        A("s_cmov_b32 s%d, %d\ns_cmov_b32 s%d, %d\ns_cmov_b32 s%d, s%d\ns_cmov_b32 s%d, s%d" % (MT, ID[nm], T2, UB[nm], sSRC, P[nm], sSRC+1, P[nm]+1))
    A("s_sub_u32 s%d, s%d, s%d\ns_and_b32 s%d, s%d, 0xffff" % (T1, U, T2, sSRC+1, sSRC+1))
    A("s_mov_b32 s%d, %d\ns_mov_b32 s%d, 0x20000" % (sSRC+2, 819200 if m0 == "wo" else 1966080, sSRC+3))
    A("s_cmp_eq_u32 s%d, 3\ns_cselect_b32 s%d, 3072, 1280" % (MT, RS))
    A("s_cmp_eq_u32 s%d, 4\ns_cselect_b32 s%d, %d, %d" % (MT, T2, (1<<20)//48 + 1, (1<<20)//20 + 1))
    A("s_mul_i32 s%d, s%d, s%d\ns_lshr_b32 s%d, s%d, 20" % (CU, T1, T2, CU, CU))
    A("s_cmp_eq_u32 s%d, 4\ns_cselect_b32 s%d, 48, 20" % (MT, T2))
    A("s_mul_i32 s%d, s%d, s%d\ns_sub_u32 s%d, s%d, s%d" % (T2, CU, T2, KS, T1, T2))
def rl_issue(sst):
    A("v_lshrrev_b32 v20, 3, v%d\nv_mul_lo_u32 v20, v20, s%d" % (vL, RS))
    A("v_and_b32 v21, 7, v%d\nv_lshl_add_u32 v20, v21, 4, v20" % vL)
    A("s_mul_i32 s%d, s%d, s%d\ns_lshl_b32 s%d, s%d, 5" % (sT+13, KS, RS, sT+13, sT+13))
    A("s_lshl_b32 s%d, s%d, 7\ns_add_u32 s%d, s%d, s%d\ns_lshl_b32 s%d, s%d, 3" % (sT+1, CU, sT+13, sT+13, sT+1, sT+2, RS))
    for q in range(4):
        A("s_add_u32 m0, s%d, %d" % (sst, q*1024))
        A("buffer_load_dwordx4 v20, %s, s%d offen lds" % (R(sSRC), sT+13))
        if q < 3: A("s_add_u32 s%d, s%d, s%d" % (sT+13, sT+13, sT+2))
def rl_consts():
    for i in range(4): A("v_mov_b32 v%d, 0x3f803f80" % (24+i))
    A("v_lshlrev_b32 v28, 4, v%d\nv_lshlrev_b32 v29, 4, v%d" % (vL, vG))
    A("v_bfe_u32 v30, v%d, 2, 2\nv_lshl_add_u32 v30, v%d, 3, v30\nv_lshlrev_b32 v30, 7, v30" % (vL, vG))
    A("v_and_b32 v31, 3, v%d\nv_lshl_add_u32 v30, v31, 3, v30" % vL)
def rl_finish(sst, batch):
    A("v_add_u32 v31, s%d, v30" % sst)
    for i in range(4):
        for hh in range(2): A("ds_read_b64_tr_b16 %s, v31 offset:%d" % (V2(36+4*i+2*hh), 32*i + 512*hh))
    D, CA, T1, T2, BASE, CB = sT+2, sT+3, sT+13, sT+1, sT+4, sT+5
    w3, dn = A.newlabel("W3"), A.newlabel("DN")
    dst = [sT+14, sT+15, 92, 93]; cdst = [sT+6, sT+7, 88, 89]
    if batch == 2:
        A("s_cmp_eq_u32 s%d, 3\ns_cbranch_scc1 %s" % (MT, w3))
        A("s_mul_i32 s%d, s%d, 43\ns_lshr_b32 s%d, s%d, 8\ns_mul_i32 s%d, s%d, 6\ns_sub_u32 s%d, s%d, s%d" % (T1, KS, T1, T1, T2, T1, T2, KS, T2))
        A("s_lshl_b32 s%d, s%d, 1\ns_and_b32 s%d, s%d, 1\ns_add_u32 s%d, s%d, s%d\ns_lshr_b32 s%d, s%d, 1\ns_lshl_b32 s%d, s%d, 4\ns_add_u32 s%d, s%d, s%d" % (T1, T1, BASE, T2, T1, T1, BASE, T2, T2, T2, T2, T1, T1, T2))
        A("s_mul_i32 s%d, s%d, 5120\ns_add_u32 s%d, s%d, 0x%x" % (BASE, T1, BASE, BASE, WP + SB[6]))
    else:
        A("s_mul_i32 s%d, s%d, 5120\ns_mul_i32 s%d, s%d, 102400\ns_add_u32 s%d, s%d, s%d\ns_add_u32 s%d, s%d, 0x%x" % (BASE, KS, T1, MT, BASE, BASE, T1, BASE, BASE, WP))
        A("s_mul_i32 s%d, s%d, 2560\ns_add_u32 s%d, s%d, 0x%x" % (CB, KS, CB, CB, CSP1))
    for i in range(4):
        A("s_lshl_b32 s%d, s%d, 2\ns_add_u32 s%d, s%d, %d" % (D, CU, D, D, i))
        A("s_mul_i32 s%d, s%d, 52\ns_lshr_b32 s%d, s%d, 8\ns_mul_i32 s%d, s%d, 5\ns_sub_u32 s%d, s%d, s%d" % (T1, D, T1, T1, T2, T1, T2, D, T2))
        A("s_and_b32 s%d, s%d, 1\ns_sub_u32 s%d, s%d, s%d\ns_cmp_lt_i32 s%d, 0\ns_cselect_b32 s%d, 4, s%d" % (D, T1, T2, T2, D, T2, T2, T2))
        A("s_mul_i32 s%d, s%d, %d\ns_lshl_b32 s%d, s%d, 10\ns_add_u32 s%d, s%d, s%d\ns_add_u32 s%d, s%d, s%d" % (D, T1, WSL, CA, T2, D, D, CA, dst[i], D, BASE))
        if batch == 1:
            A("s_mul_i32 s%d, s%d, 320\ns_lshl_b32 s%d, s%d, 6\ns_add_u32 s%d, s%d, s%d\ns_add_u32 s%d, s%d, s%d" % (D, T1, CA, T2, D, D, CA, cdst[i], D, CB))
    if batch == 2:
        A("s_branch %s" % dn)
        A.label(w3)
        A("s_mul_i32 s%d, s%d, 43\ns_lshr_b32 s%d, s%d, 7\ns_mul_i32 s%d, s%d, 3\ns_sub_u32 s%d, s%d, s%d" % (T1, CU, T1, T1, T2, T1, T2, CU, T2))
        A("s_mul_i32 s%d, s%d, %d\ns_mul_i32 s%d, s%d, 81920\ns_add_u32 s%d, s%d, s%d" % (D, T1, WSL, T2, T2, D, D, T2))
        A("s_lshl_b32 s%d, s%d, 11\ns_add_u32 s%d, s%d, s%d\ns_add_u32 s%d, s%d, 0x%x" % (T2, KS, D, D, T2, dst[0], D, WP + SB[5]))
        A("s_add_u32 s%d, s%d, 1024\ns_add_u32 s%d, s%d, 40960\ns_add_u32 s%d, s%d, 41984" % (dst[1], dst[0], dst[2], dst[0], dst[3], dst[0]))
        A("s_mul_i32 s%d, s%d, 6144\ns_lshl_b32 s%d, s%d, 8\ns_add_u32 s%d, s%d, s%d\ns_add_u32 s%d, s%d, 0x%x" % (D, KS, T2, CU, D, D, T2, cdst[0], D, CSP3))
        for i in range(1, 4): A("s_add_u32 s%d, s%d, %d" % (cdst[i], cdst[0], 64*i))
        A.label(dn)
    A("s_waitcnt lgkmcnt(0)")
    for i in range(4): A("buffer_store_dwordx4 %s, v28, %s, s%d offen sc1" % (V4(36+4*i), R(sWS), dst[i]))
    nc = A.newlabel("NC")
    A("s_bitcmp1_b32 s%d, 0\ns_cbranch_scc0 %s" % (MT, nc))
    for i in range(4): A(mfma16(52+4*i, 36+4*i, 24, 0))
    A("s_mov_b32 exec_lo, 0x00010001\ns_mov_b32 exec_hi, 0x00010001")
    for i in range(4): A("buffer_store_dwordx4 %s, v29, %s, s%d offen sc1" % (V4(52+4*i), R(sWS), cdst[i]))
    A("s_mov_b64 exec, -1")
    A.label(nc)
    A("s_nop 1")

def spare_main():
    SW, STG = 63, 62
    A("s_lshl_b32 s%d, s%d, 4\ns_lshl_b32 s%d, s%d, 3\ns_add_u32 s%d, s%d, s%d\ns_add_u32 s%d, s%d, s%d" % (SW, sXCD, sT, sPAR, SW, SW, sT, SW, SW, sW))
    rl_consts()
    mats = ["wo", "w1", "w2"]
    def unit(i): A("s_add_u32 s%d, s%d, %d\ns_min_u32 s%d, s%d, 599" % (U, SW, 128*i, U, U))
    def stg(k): A("s_lshl_b32 s%d, s%d, 14\ns_add_u32 s%d, s%d, %d" % (STG, sW, STG, STG, 4096*k))
    for i in range(4):
        unit(i); rl_decode(mats); stg(i); rl_issue(STG)
    for i in range(5):
        unit(i); rl_decode(mats); stg(i % 4)
        if i == 0: A("s_waitcnt vmcnt(12)")
        else: A("s_waitcnt vmcnt(0)" if i in (1, 4) else "s_nop 0")
        rl_finish(STG, 1)
        if i == 1:
            unit(4); rl_decode(mats); stg(0); rl_issue(STG)
    dbg_issue(32, 34)
    dbg_check(32, 34, 35)
    A("v_lshlrev_b32 v20, 7, v%d\nv_add_u32 v20, s%d, v20\nv_min_u32 v20, 599, v20\nv_lshlrev_b32 v20, 2, v20\ns_mov_b32 s94, 0x%x" % (vL, SW, FW))
    A("s_mov_b64 exec, 31\nbuffer_store_dword v%d, v20, %s, s94 offen sc1\ns_mov_b64 exec, -1" % (vONE, R(sWS)))

def rl_batch2():
    sk = A.newlabel("RB")
    A("s_lshl_b32 s%d, s2, 2\ns_add_u32 s%d, s%d, s%d\ns_add_u32 s%d, s%d, 600" % (U, U, U, sW, U, U))
    A("s_cmp_ge_u32 s%d, 1560\ns_cbranch_scc1 %s" % (U, sk))
    rl_decode(["w3", "w4"])
    A("s_lshl_b32 s62, s%d, 12\ns_add_u32 s62, s62, %d" % (sW, PK))
    rl_issue(62)
    rl_consts()
    A("s_waitcnt vmcnt(0)")
    rl_finish(62, 2)
    A.label(sk)
def rl_batch2_flag():
    sk = A.newlabel("RB")
    A("s_lshl_b32 s94, s2, 2\ns_add_u32 s94, s94, s%d\ns_cmp_ge_u32 s94, 960\ns_cbranch_scc1 %s" % (sW, sk))
    A("s_lshl_b32 s94, s94, 2\ns_add_u32 s94, s94, 0x%x" % (FW + 2400))
    setflag(vZ, 94, " sc1", wait=False)
    A.label(sk)

def s1a_compute():
    ACC, CSA, SEL = 64, 128, 132
    XA, WA = 8, 16
    FB = 136
    A("s_lshr_b32 s%d, s%d, 1\ns_and_b32 s%d, s%d, 1" % (sT, sW, sT+1, sW))
    A("v_and_b32 v20, 31, v%d\nv_lshrrev_b32 v21, 5, v%d" % (vL, vL))
    A("s_lshl_b32 s%d, s%d, 13" % (sT+2, sT))
    A("v_lshlrev_b32 v22, 7, v20\nv_add_u32 v22, s%d, v22" % (sT+2))
    A("v_bfe_u32 v23, v20, 1, 3\nv_xor_b32 v23, v23, v21")
    for k in range(4):
        A("v_xor_b32 v24, %d, v23\nv_lshl_add_u32 v%d, v24, 4, v22\nv_add_u32 v%d, 0x10000, v%d" % (2*k, XA+2*k, XA+2*k+1, XA+2*k))
    A("v_bfe_u32 v24, v%d, 2, 2" % vL)
    A("v_lshl_add_u32 v25, v21, 3, v24\nv_lshlrev_b32 v25, 8, v25")
    A("v_and_b32 v26, 1, v%d\nv_lshlrev_b32 v26, 5, v26" % vG)
    A("v_and_b32 v27, 1, v%d\nv_lshl_add_u32 v26, v27, 4, v26" % vL)
    A("v_bfe_u32 v27, v%d, 1, 1\nv_lshl_add_u32 v26, v27, 3, v26" % vL)
    A("v_add_u32 v25, v25, v26\nv_add_u32 v25, 0x4000, v25")
    A("s_lshl_b32 s%d, s%d, 1\ns_add_u32 s%d, s%d, s%d" % (sT+2, sT+1, sT+2, sT+2, sT))
    for nt in range(2):
        A("s_xor_b32 s%d, s%d, %d" % (sT+3, sT+2, nt))
        A("v_xor_b32 v27, s%d, v24\nv_lshl_add_u32 v%d, v27, 6, v25\nv_add_u32 v%d, 0x10000, v%d" % (sT+3, WA+2*nt, WA+2*nt+1, WA+2*nt))
    A("v_and_b32 v27, 1, v%d\nv_cmp_eq_u32 vcc, v27, v%d\nv_mov_b32 v28, 0x3f803f80" % (vG, vTT))
    for i in range(4): A("v_cndmask_b32 v%d, 0, v28, vcc" % (SEL+i))
    for i in range(68): A("v_mov_b32 v%d, 0" % (ACC+i))
    def reads(n):
        ci, k = divmod(n, 4)
        slot = (ci % 4) * 32768; hi = slot >> 16; so = slot & 0xffff
        b = FB + 16*(n % 3)
        for mt in range(2): A("ds_read_b128 %s, v%d offset:%d" % (V4(b+4*mt), XA+2*k+hi, so + mt*4096))
        for nt in range(2):
            for hh in range(2):
                A("ds_read_b64_tr_b16 %s, v%d offset:%d" % (V2(b+8+4*nt+2*hh), WA+2*nt+hi, so + (16*k + 4*hh)*256))
    def step(n):
        b = FB + 16*(n % 3)
        for nt in range(2):
            for mt in range(2):
                a = ACC + 32*nt + 16*mt
                A("v_mfma_f32_32x32x16_bf16 v[%d:%d], %s, %s, v[%d:%d]" % (a, a+15, V4(b+8+4*nt), V4(b+4*mt), a, a+15))
        A(mfma16(CSA, b+8, SEL))
    A("s_waitcnt lgkmcnt(0)")
    stamp("s1_rdy")
    A("s_barrier")
    stamp("s1_b0")
    reads(0); reads(1)
    for n in range(40):
        ci, k = divmod(n, 4)
        if n + 2 < 40:
            if k == 2:
                A("s_waitcnt lgkmcnt(0)\ns_barrier"); reads(n+2)
            elif k == 3:
                reads(n+2)
            else:
                A("s_waitcnt lgkmcnt(6)"); reads(n+2)
        else:
            A("s_waitcnt lgkmcnt(%d)" % (6 if n == 38 else 0))
        step(n)
        if n == 16: dbg_issue(30, 32)
        if n == 30:
            dbg_check(30, 32, 33)
            A("s_lshl_b32 s%d, s%d, 7\ns_lshl_b32 s%d, s%d, 6\ns_add_u32 s%d, s%d, s%d" % (sT+2, sRT, sT+3, sT, sT+2, sT+2, sT+3))
            A("s_lshl_b32 s%d, s%d, 3\ns_add_u32 s%d, s%d, 0x%x" % (sT+3, sT+2, sT+3, sT+3, XS))
            A("v_lshlrev_b32 v30, 3, v20")
            A("buffer_load_dwordx2 v[32:33], v30, %s, s%d offen sc1" % (R(sWS), sT+3))
            A("buffer_load_dwordx2 v[34:35], v30, %s, s%d offen offset:256 sc1" % (R(sWS), sT+3))
            A("s_lshl_b32 s%d, s%d, 8\ns_add_u32 s%d, s%d, %d\ns_lshl_b32 s%d, s%d, 7" % (sT+4, sT+1, sT+4, sT+4, CS0, sT+5, sT))
            A("s_add_u32 s%d, s%d, s%d" % (sT+6, sT+4, sT+5))
            A("v_lshlrev_b32 v31, 6, v%d\nv_lshl_add_u32 v31, v%d, 4, v31\nv_add_u32 v31, s%d, v31" % (vTT, vG, sT+6))
            A("v_lshlrev_b32 v37, 4, v21\nv_add_u32 v38, s%d, v37" % (sT+6))
            A("s_xor_b32 s%d, s%d, 128\ns_add_u32 s%d, s%d, s%d" % (sT+5, sT+5, sT+6, sT+4, sT+5))
            A("v_add_u32 v39, s%d, v37" % (sT+6))
            A("v_lshrrev_b32 v40, 4, v20\nv_mul_u32_u24 v40, 61440, v40\nv_lshl_add_u32 v40, v21, 8, v40\nv_lshl_add_u32 v40, v%d, 4, v40" % vTT)
            A("s_lshr_b32 s%d, s%d, 4\ns_mul_i32 s%d, s%d, 61440\ns_add_u32 s%d, s%d, 0x%x" % (sT+2, sT+2, sT+2, sT+2, sT+2, sT+2, QKV))
            A("s_lshl_b32 s%d, s%d, 12\ns_lshl_b32 s%d, s%d, 11\ns_add_u32 s%d, s%d, s%d\ns_add_u32 s%d, s%d, s%d" % (sT+3, sCT, sT+4, sT+1, sT+2, sT+2, sT+3, sT+2, sT+2, sT+4))
            A("s_lshl_b32 s%d, s%d, 10\ns_add_u32 s%d, s%d, s%d" % (sT+3, sT, sT+4, sT+2, sT+3))
            A("s_xor_b32 s%d, s%d, 1024\ns_add_u32 s%d, s%d, s%d" % (sT+3, sT+3, sT+6, sT+2, sT+3))
            A("s_add_u32 s%d, s%d, %d\ns_add_u32 s%d, s%d, %d" % (sT+5, sT+4, 2*61440, sT+7, sT+6, 2*61440))
            A("s_lshl_b32 s%d, s%d, 1\ns_add_u32 s%d, s%d, s%d\ns_lshl_b32 s%d, s%d, 5" % (sT+8, sRT, sT+8, sT+8, sT, sT+8, sT+8))
            A("s_lshl_b32 s%d, s%d, 1\ns_add_u32 s%d, s%d, s%d\ns_add_u32 s%d, s%d, s%d\ns_lshl_b32 s%d, s%d, 2\ns_add_u32 s%d, s%d, 0x%x" % (sT+9, sCT, sT+8, sT+8, sT+9, sT+8, sT+8, sT+1, sT+8, sT+8, sT+8, sT+8, FQKV))
            A("v_mov_b32 v41, 0")
    stamp("s1_mm")
    A("s_mov_b32 exec_lo, 0x00030003\ns_mov_b32 exec_hi, 0x00030003")
    A("ds_write_b128 v31, %s" % V4(CSA))
    A("s_mov_b64 exec, -1")
    A("s_waitcnt vmcnt(0) lgkmcnt(0)\ns_barrier")
    CSR = 136
    for nt in range(2):
        for q in range(4): A("ds_read_b128 %s, v%d offset:%d" % (V4(CSR+16*nt+4*q), 38+nt, 32*q))
    for nt in range(2):
        for mt in range(2):
            a = ACC + 32*nt + 16*mt; st = 32 + 2*mt
            for i in range(0, 16, 2):
                A("v_pk_mul_f32 %s, %s, %s op_sel:[0,1] op_sel_hi:[1,1]" % (V2(a+i), V2(a+i), V2(st)))
    A("s_waitcnt lgkmcnt(0)")
    OUTR = 184
    def st(p):
        for nt in range(2):
            for mt in range(2):
                a = ACC + 32*nt + 16*mt; st = 32 + 2*mt
                for i in range(0, 16, 2):
                    A("v_pk_fma_f32 %s, %s, %s, %s op_sel_hi:[1,0,1] neg_lo:[0,1,0] neg_hi:[0,1,0]" % (V2(a+i), V2(CSR+16*nt+i), V2(st), V2(a+i)))
                o = OUTR + 8*(2*nt+mt)
                for i in range(8): A("v_cvt_pk_bf16_f32 v%d, v%d, v%d" % (o+i, a+2*i, a+2*i+1))
                for qq in range(2):
                    A("buffer_store_dwordx4 %s, v40, %s, s%d offen offset:%d%s" % (V4(o+4*qq), R(sWS), sT+4+2*nt+mt, 512*qq, p))
        setflag(41, sT+8, p)
    dual(st)

LOG2E = 1.4426950408889634
AFW, BQ, BV, P, E, PH = 64, 124, 136, 148, 168, 208
def phi_softmax(isq, mid=None):
    A("s_lshr_b32 s%d, s%d, 1\ns_mul_i32 s%d, s%d, 5\ns_lshl_b32 s%d, s%d, 1\ns_add_u32 s%d, s%d, s%d" % (sC0, sIDX, sC0, sC0, sT, sPAR, sC0, sC0, sT))
    A("v_bfe_u32 v6, v%d, 2, 2\nv_and_b32 v7, 3, v%d" % (vL, vL))
    A("s_mul_i32 s%d, s%d, 160\ns_sub_u32 s%d, %d, s%d" % (sT, sPAR, sT, WPHI + 160, sT))
    A("v_mul_u32_u24 v8, 40, v6\nv_add_u32 v8, s%d, v8\nv_mov_b32 v9, 0x%x" % (sT, MZ))
    A("v_cmp_eq_u32 vcc, v7, v%d\nv_cndmask_b32 v8, v9, v8, vcc" % vG)
    for u in range(3):
        if u: A("s_waitcnt lgkmcnt(0)")
        for tp in range(5):
            for hh in range(2):
                A("ds_read_b64_tr_b16 %s, v8 offset:%d" % (V2(AFW + 4*(5*u + tp) + 2*hh), (8*u+4*hh)*40 + 8*tp))
    A("s_lshl_b32 s%d, s%d, 2\ns_add_u32 s%d, s%d, s%d" % (sRB, sXCD, sRB, sRB, sWL))
    A("v_and_b32 v10, 1, v%d\nv_lshlrev_b32 v10, 1, v10" % vL)
    if not isq:
        A("v_bfe_u32 v11, v%d, 1, 1\nv_mul_u32_u24 v11, 80, v11\nv_add3_u32 v10, v10, v11, s%d\nv_add_u32 v10, 80, v10" % (vL, sC0))
    else:
        A("v_add_u32 v10, s%d, v10" % sC0)
    A("v_lshrrev_b32 v10, 3, v10\nv_lshlrev_b32 v10, 2, v10")
    A("s_lshl_b32 s%d, s%d, 7\ns_add_u32 s%d, s%d, 0x%x" % (sT, sRB, sT, sT, FQKV))
    A("v_mul_u32_u24 v12, 61440, v%d\nv_lshl_add_u32 v12, v%d, 4, v12" % (vG, vTT))
    A("s_mul_i32 s%d, s%d, %d\ns_lshl_b32 s%d, s%d, 8\ns_add_u32 s%d, s%d, s%d" % (sT+1, sRB, 4*61440, sT+2, sC0, sT+1, sT+1, sT+2))
    A("s_add_u32 s%d, s%d, %d\ns_add_u32 s%d, s%d, %d" % (sT+2, sT+1, QKV + 160*256, sT+1, sT+1, QKV + (0 if isq else 80*256)))
    if not isq:
        A("s_lshl_b32 s%d, s%d, 6" % (sT+3, sWL))
        A("v_add_u32 v13, s%d, v%d\nv_mul_u32_u24 v14, 48, v13\nv_add_u32 v14, 0x%x, v14" % (sT+3, vL, VV))
        A("v_mul_u32_u24 v13, 80, v13\nv_add_u32 v13, 0x%x, v13" % PK)
    poll(10, 11, sT, sleep=(1 if isq else 0))
    stamp("s1b_fl")
    for u in range(3): A("buffer_load_dwordx4 %s, v12, %s, s%d offen offset:%d sc1" % (V4(BQ+4*u), R(sWS), sT+1, 256*u))
    if not isq:
        for u in range(3): A("buffer_load_dwordx4 %s, v12, %s, s%d offen offset:%d sc1" % (V4(BV+4*u), R(sWS), sT+2, 256*u))
        lds_signal(0, 15)
    A("s_waitcnt lgkmcnt(0)")
    for u in range(3):
        A("s_waitcnt vmcnt(%d)" % ((0 if isq else 3) + 2 - u))
        for tp in range(5): A(mfma16(P+4*tp, AFW + 4*(5*u + tp), BQ+4*u, 0 if u == 0 else None))
    if not isq:
        A("s_waitcnt vmcnt(0)")
        od, dn = A.newlabel("OD"), A.newlabel("DN")
        A("s_cmp_eq_u32 s%d, 1\ns_cbranch_scc1 %s" % (sPAR, od))
        A("v_mov_b32 v%d, 0x3f80\nv_mov_b32 v%d, 0\ns_branch %s" % (BV+10, BV+11, dn))
        A.label(od)
        A("v_mov_b32 v%d, 0x3f80\nv_mov_b32 v%d, 0" % (BV, BV+1))
        A.label(dn)
        for u in range(3): A("ds_write_b128 v14, %s offset:%d" % (V4(BV+4*u), 16*u))
    if mid: mid()
    M, N = 16, 18
    A("s_mov_b32 s%d, 0x%x\ns_mov_b32 s%d, 0x%x" % (sT+2, f2u(LOG2E), sT+3, f2u(LOG2E)))
    A("v_max3_f32 v%d, v%d, v%d, v%d\nv_min3_f32 v%d, v%d, v%d, v%d" % (M, P, P+1, P+2, N, P, P+1, P+2))
    for i in range(3, 19, 2):
        A("v_max3_f32 v%d, v%d, v%d, v%d\nv_min3_f32 v%d, v%d, v%d, v%d" % (M, M, P+i, P+i+1, N, N, P+i, P+i+1))
    A("v_max_f32 v%d, v%d, v%d\nv_min_f32 v%d, v%d, v%d" % (M, M, P+19, N, N, P+19))
    A("v_mul_f32 v%d, s%d, v%d\nv_mul_f32 v%d, s%d, v%d" % (M, sT+2, M, N, sT+2, N))
    for i in range(0, 20, 2):
        A("v_pk_fma_f32 %s, %s, s[%d:%d], %s op_sel_hi:[1,1,0] neg_lo:[0,0,1] neg_hi:[0,0,1]" % (V2(E+i), V2(P+i), sT+2, sT+3, V2(M)))
        A("v_pk_fma_f32 %s, %s, s[%d:%d], %s op_sel_hi:[1,1,0] neg_lo:[1,0,0] neg_hi:[1,0,0]" % (V2(E+20+i), V2(P+i), sT+2, sT+3, V2(N)))
    for i in range(40): A("v_exp_f32 v%d, v%d" % (E+i, E+i))
    for hlf, S in ((0, M), (20, N)): A("v_pk_add_f32 %s, %s, %s" % (V2(S), V2(E+hlf), V2(E+hlf+2)))
    for i in range(4, 20, 2):
        for hlf, S in ((0, M), (20, N)): A("v_pk_add_f32 %s, %s, %s" % (V2(S), V2(S), V2(E+hlf+i)))
    A("v_add_f32 v%d, v%d, v%d\nv_add_f32 v%d, v%d, v%d" % (M, M, M+1, N, N, N+1))
    A("v_rcp_f32 v%d, v%d\nv_rcp_f32 v%d, v%d" % (M, M, N, N))
    for i in range(0, 40, 2):
        A("v_pk_mul_f32 %s, %s, %s op_sel_hi:[1,0]" % (V2(E+i), V2(E+i), V2(M if i < 20 else N)))
    for i in range(20): A("v_cvt_pk_bf16_f32 v%d, v%d, v%d" % (PH+i, E+2*i, E+2*i+1))

def s1b_k():
    A("s_setprio 1")
    phi_softmax(False)
    stamp("phi_k")
    for i in range(5): A("ds_write_b128 v13, %s offset:%d" % (V4(PH+4*i), 16*i))
    A("s_waitcnt lgkmcnt(0)")
    lds_signal(1, 15)
    skip = A.newlabel("KVS")
    A("s_cmp_eq_u32 s%d, 3\ns_cbranch_scc1 %s" % (sW, skip))
    A("v_lshl_add_u32 v8, v%d, 3, v6" % vG)
    A("s_lshl_b32 s%d, s%d, 5\ns_add_u32 s%d, s%d, %d" % (sT, sW, sT, sT, PK))
    A("v_mul_u32_u24 v9, 80, v8\nv_lshl_add_u32 v9, v7, 3, v9\nv_add_u32 v9, s%d, v9" % sT)
    A("s_lshl_b32 s%d, s%d, 3\ns_add_u32 s%d, s%d, %d" % (sT, sPAR, sT, sT, VV))
    A("v_mul_u32_u24 v10, 48, v8\nv_add_u32 v10, s%d, v10\nv_lshl_add_u32 v20, v7, 3, v10" % sT)
    A("s_mul_i32 s%d, s%d, 48\ns_sub_u32 s%d, 40, s%d" % (sT+1, sPAR, sT+1, sT+1))
    A("v_mov_b32 v12, s%d\nv_mov_b32 v21, 32\nv_cmp_eq_u32 vcc, 0, v7\nv_cndmask_b32 v12, v12, v21, vcc\nv_add_u32 v21, v12, v10" % (sT+1))
    F = 64; D0, D1 = 160, 164
    lds_wait(1, 4, 15, 16)
    stamp("s1b_B1")
    for s in range(8):
        r = F + 12*s
        for hh in range(2): A("ds_read_b64_tr_b16 %s, v9 offset:%d" % (V2(r+2*hh), (32*s+4*hh)*80))
        for k in range(2):
            for hh in range(2): A("ds_read_b64_tr_b16 %s, v%d offset:%d" % (V2(r+4+4*k+2*hh), 20+k, (32*s+4*hh)*48))
        if s >= 1:
            A("s_waitcnt lgkmcnt(6)")
            r = F + 12*(s-1)
            for k, D in ((1, D0), (2, D1)): A(mfma16(D, r+4*k, r, 0 if s == 1 else None))
    A("s_waitcnt lgkmcnt(0)")
    r = F + 84
    for k, D in ((1, D0), (2, D1)): A(mfma16(D, r+4*k, r))
    A("v_lshlrev_b32 v8, 4, v%d" % vL)
    A("s_mul_i32 s%d, s%d, 49152\ns_lshl_b32 s%d, s%d, 11\ns_add_u32 s%d, s%d, s%d\ns_add_u32 s%d, s%d, 0x%x" % (sT, sIDX, sT+1, sW, sT, sT, sT+1, sT, sT, KVP))
    A("s_mul_i32 s%d, s%d, 6144\ns_add_u32 s%d, s%d, s%d" % (sT+1, sXCD, sT+1, sT+1, sT))
    A("s_lshl_b32 s%d, s%d, 2\ns_add_u32 s%d, s%d, s%d\ns_lshl_b32 s%d, s%d, 5\ns_add_u32 s%d, s%d, 0x%x" % (sT+2, sIDX, sT+2, sT+2, sW, sT+2, sT+2, sT+2, sT+2, FKV))
    A("s_lshl_b32 s%d, s%d, 2\nv_mov_b32 v9, s%d" % (sT+3, sXCD, sT+3))
    A("buffer_store_dwordx4 %s, v8, %s, s%d offen sc1" % (V4(D0), R(sWS), sT+1))
    A("s_mov_b32 exec_hi, 0")
    A("buffer_store_dwordx4 %s, v8, %s, s%d offen offset:1024 sc1" % (V4(D1), R(sWS), sT+1))
    A("s_mov_b64 exec, -1")
    stamp("kv_st")
    setflag(9, sT+2, " sc1")
    stamp("kv_pub")
    A("v_and_b32 v9, 7, v%d\nv_lshlrev_b32 v9, 2, v9" % vL)
    A("v_and_b32 v11, 31, v%d\nv_lshlrev_b32 v11, 4, v11" % vL)
    poll(9, 10, sT+2, sleep=OPT.get("kvslp", 2))
    stamp("kv_fl")
    for x in range(8):
        for dt in range(2):
            A("buffer_load_dwordx4 %s, v%d, %s, s%d offen offset:%d sc1" % (V4(F + 8*x + 4*dt), 11 if dt else 8, R(sWS), sT, 1024*dt))
        if x < 7: A("s_add_u32 s%d, s%d, 6144" % (sT, sT))
    A("s_mul_i32 s%d, s%d, %d\ns_add_u32 s%d, s%d, %d" % (sT, sW, 16*48, sT, sT, KVT))
    A("v_mul_u32_u24 v9, 48, v%d\nv_lshl_add_u32 v9, v%d, 3, v9\nv_add_u32 v9, s%d, v9" % (vTT, vG, sT))
    for x in range(1, 8):
        A("s_waitcnt vmcnt(%d)" % (14 - 2*x))
        for i in range(0, 8, 2): A("v_pk_add_f32 %s, %s, %s" % (V2(F+i), V2(F+i), V2(F+8*x+i)))
    for i in range(4): A("v_cvt_pk_bf16_f32 v%d, v%d, v%d" % (10+i, F+2*i, F+2*i+1))
    A("ds_write_b64 v9, v[10:11]")
    A("s_mov_b32 exec_hi, 0\nds_write_b64 v9, v[12:13] offset:32\ns_mov_b64 exec, -1")
    A.label(skip)
    A("s_waitcnt lgkmcnt(0)\ns_barrier")
    stamp("s1b_B2")
    A("s_setprio 0")
    rl_batch2()
    stamp("rl2")

def pretouch():
    A("s_lshl_b32 s94, s%d, 5\ns_add_u32 s94, s94, s%d\ns_lshl_b32 s94, s94, 2\ns_add_u32 s94, s94, s%d" % (sXCD, sIDX, sWL))
    A("v_min_u32 v30, 19, v%d\nv_lshlrev_b32 v30, 7, v30\ns_mul_i32 s95, s94, 2560" % vL)
    A("buffer_load_dword v31, v30, %s, s95 offen sc1" % R(sWS))
    A("buffer_load_dword v31, v30, %s, s95 offen sc1" % R(sOUT))
    A("s_lshl_b32 s95, s94, 7\ns_add_u32 s95, s95, 0x%x\nv_mov_b32 v32, 0" % ST)
    A("buffer_load_dword v31, v32, %s, s95 offen sc1" % R(sWS))

def wtouch(mats, level):
    for p, nbytes in mats:
        srd(sT+12, p, nbytes)
        nl = nbytes // 128
        per = nl // (1024 if level == 0 else 128) + (1 if nl % (1024 if level == 0 else 128) else 0)
        if level == 0: A("s_lshl_b32 s94, s2, 2\ns_add_u32 s94, s94, s%d" % sWL)
        else: A("s_lshl_b32 s94, s%d, 2\ns_add_u32 s94, s94, s%d" % (sIDX, sWL))
        A("s_mul_i32 s94, s94, %d" % (per*128))
        for b in range(0, per, 64):
            A("v_add_u32 v30, %d, v%d\nv_min_u32 v30, %d, v30\nv_lshlrev_b32 v30, 7, v30" % (b, vL, per-1))
            A("buffer_load_dword v31, v30, %s, s94 offen" % R(sT+12))
W1_, W2_, W3_, W4_ = (pW1, 819200), (pW2, 819200), (pW3, 1966080), (pW4, 1966080)

def s1b_q():
    ld_setup()
    dbg_check(36, 34, 35)
    def mid():
        wflags(1)
        lds_wait(0, 4, 30, 31)
        stamp("wfl")
        if OPT.get("pt", 1): pretouch()
        for sg in range(5): ld_seg(sg)
        if OPT.get("wt", 1): wtouch([W3_, W4_], 0)
        stamp("w_iss")
    phi_softmax(True, mid)
    stamp("phi_q")
    A("v_mul_u32_u24 v8, 48, v6\nv_add_u32 v8, 0x%x, v8\nv_mov_b32 v9, 0x%x" % (KVT, MZ))
    A("v_cmp_eq_u32 vcc, v7, v%d\nv_cndmask_b32 v8, v9, v8, vcc" % vG)
    A("v_mul_u32_u24 v12, 20480, v%d\nv_lshl_add_u32 v12, v%d, 4, v12" % (vG, vTT))
    A("v_mov_b32 v13, 0")
    A("s_mul_i32 s%d, s%d, %d\ns_lshl_b32 s%d, s%d, 8\ns_add_u32 s%d, s%d, s%d\ns_add_u32 s%d, s%d, 0x%x" % (sT+1, sRB, 4*20480, sT+2, sC0, sT+1, sT+1, sT+2, sT+1, sT+1, OH))
    A("s_lshl_b32 s%d, s%d, 5\ns_add_u32 s%d, s%d, s%d\ns_lshl_b32 s%d, s%d, 2\ns_add_u32 s%d, s%d, 0x%x" % (sT+2, sRB, sT+2, sT+2, sIDX, sT+2, sT+2, sT+2, sT+2, FO))
    stamp("q_rdy")
    A("s_barrier")
    A("s_setprio 1")
    F = 64; D = 184
    order = [(u, tp) for u in range(5) for tp in range(6)]
    def rd(n):
        u, tp = order[n]
        for hh in range(2): A("ds_read_b64_tr_b16 %s, v8 offset:%d" % (V2(F+4*n+2*hh), (8*u+4*hh)*48 + 8*tp))
    for n in range(6): rd(n)
    for n in range(30):
        if n + 6 < 30: rd(n + 6)
        A("s_waitcnt lgkmcnt(%d)" % (2*min(6, 29 - n)))
        u, tp = order[n]
        A(mfma16(D+4*tp, F+4*n, PH+4*u, 0 if u == 0 else None))
    A("v_add_f32 v16, 0x%x, v%d\nv_rcp_f32 v16, v16" % (f2u(1e-6), D+20))
    for i in range(0, 20, 2): A("v_pk_mul_f32 %s, %s, v[16:17] op_sel_hi:[1,0]" % (V2(D+i), V2(D+i)))
    for i in range(10): A("v_cvt_pk_bf16_f32 v%d, v%d, v%d" % (20+i, D+2*i, D+2*i+1))
    def st(p):
        od, dn = A.newlabel("OD"), A.newlabel("DN")
        A("s_cmp_eq_u32 s%d, 1\ns_cbranch_scc1 %s" % (sPAR, od))
        A("buffer_store_dwordx4 v[20:23], v12, %s, s%d offen%s" % (R(sWS), sT+1, p))
        A("buffer_store_dwordx4 v[24:27], v12, %s, s%d offen offset:256%s" % (R(sWS), sT+1, p))
        A("buffer_store_dwordx2 v[28:29], v12, %s, s%d offen offset:512%s" % (R(sWS), sT+1, p))
        A("s_branch %s" % dn)
        A.label(od)
        A("buffer_store_dwordx2 v[20:21], v12, %s, s%d offen offset:8%s" % (R(sWS), sT+1, p))
        A("buffer_store_dwordx4 v[22:25], v12, %s, s%d offen offset:256%s" % (R(sWS), sT+1, p))
        A("buffer_store_dwordx4 v[26:29], v12, %s, s%d offen offset:512%s" % (R(sWS), sT+1, p))
        A.label(dn)
        setflag(13, sT+2, p)
    dual(st)
    A("s_setprio 0")
    stamp("o_end")

vLD = 5
def ld_setup():
    A("s_mul_i32 s%d, s%d, %d\ns_add_u32 s%d, s%d, 0x%x" % (sWB, sJ, WSL, sWB, sWB, WP))
    A("s_mul_i32 s%d, s%d, 5120" % (sLW, sWL))
    A("v_lshlrev_b32 v%d, 4, v%d\nv_add_u32 v%d, s%d, v%d" % (vLD, vL, vLD, sLW, vLD))
def ld_seg(sg):
    l = (sg % 7) * SEG
    A("s_add_u32 s94, s%d, %d\ns_add_u32 m0, s%d, %d" % (sWB, sg*SEG, sLW, l))
    for q in range(4): A("buffer_load_dwordx4 v%d, %s, s94 offen offset:%d sc1 lds" % (vLD, R(sWS), 1024*q))
    A("s_add_u32 s94, s94, 4096\ns_add_u32 m0, s%d, %d" % (sLW, l + 4096))
    A("buffer_load_dwordx4 v%d, %s, s94 offen sc1 lds" % (vLD, R(sWS)))
def wflags(batch):
    t = sT+4
    A("s_mul_i32 s%d, s%d, 5\ns_lshr_b32 s%d, s%d, 2" % (t, sJ, t, t))
    if batch == 1:
        A("s_mul_i32 s%d, s%d, 80\ns_add_u32 s%d, s%d, 0x%x" % (t+1, t, t+1, t+1, FW))
        A("v_min_u32 v30, 39, v%d\nv_lshlrev_b32 v30, 2, v30" % vL)
        def ld():
            for i in range(3): A("buffer_load_dword v%d, v30, %s, s%d offen offset:%d sc1" % (32+i, R(sWS), t+1, 800*i))
    else:
        A("s_mul_i32 s%d, s%d, 240\ns_add_u32 s%d, s%d, 0x%x" % (t+2, sJ, t+2, t+2, FW + UB["w3"]*4))
        A("s_mul_i32 s%d, s%d, 192\ns_add_u32 s%d, s%d, 0x%x" % (t+3, t, t+3, t+3, FW + UB["w4"]*4))
        A("v_min_u32 v31, 59, v%d\nv_lshlrev_b32 v31, 2, v31\nv_min_u32 v30, 47, v%d\nv_lshlrev_b32 v30, 3, v30" % (vL, vL))
        def ld():
            A("buffer_load_dword v34, v31, %s, s%d offen sc1" % (R(sWS), t+2))
            A("buffer_load_dwordx2 v[32:33], v30, %s, s%d offen sc1" % (R(sWS), t+3))
    spin(ld, lambda: A("v_min3_u32 v32, v32, v33, v34\nv_cmp_eq_u32 vcc, 0, v32"), sleep=4)
def cs_reduce(base, ncol, rowb, dst):
    va, vd = 30, 32
    A("s_lshl_b32 s%d, s%d, 6" % (sT, sWL))
    A("v_add_u32 v%d, s%d, v%d\nv_min_u32 v%d, %d, v%d\nv_lshlrev_b32 v%d, 2, v%d" % (va, sT, vL, va, ncol-1, va, va, va))
    A("s_mul_i32 s%d, s%d, %d\ns_add_u32 s%d, s%d, 0x%x" % (sT, sJ, ncol*4, sT, sT, base))
    for s in range(20):
        A("buffer_load_dword v%d, v%d, %s, s%d offen sc1" % (vd+s, va, R(sWS), sT))
        if s < 19: A("s_add_u32 s%d, s%d, %d" % (sT, sT, rowb))
    def fin(n):
        A("s_waitcnt vmcnt(%d)" % n)
        for s in range(1, 20): A("v_add_f32 v%d, v%d, v%d" % (vd, vd, vd+s))
        A("v_add_u32 v%d, 0x%x, v%d\nds_write_b32 v%d, v%d\ns_waitcnt lgkmcnt(0)" % (va, dst, va, va, vd))
    return fin

SCHED = [(0, 5, 5), (3, 5, 10), (5, 10, 10), (8, 10, 15), (10, 15, 15), (13, 15, 20),
         (15, 18, 20), (17, 20, 24), (19, 22, 26), (21, 24, 28), (23, 26, 30), (25, 28, 32),
         (27, 30, 34), (29, 32, 36), (31, 34, 38), (33, 36, 39), (35, 39, 39)]
def loader_main():
    issued = 5
    for (free, full, upto) in SCHED:
        assert full <= issued and upto <= free + 7
        A("s_waitcnt vmcnt(%d)" % min(63, (issued - full) * 5))
        if free < 19 or free in (25, 27, 31, 35): stamp("H_%d" % free)
        A("s_barrier")
        fin = None
        if free == 3: fin = cs_reduce(CSP1, 80, 2560, CS1)
        if free == 8:
            wflags(2); fin = cs_reduce(CSP3, 192, 6144, CS3)
        while issued < upto:
            ld_seg(issued); issued += 1
        if fin: fin(25)

vAF, vAS, vST, vSH, vRM, vRMH, vZ = 5, 6, 7, 8, 9, 10, 11
vWB = 12
vHP = 17
vMEAN, vRSTD, vSC = 18, 19, 20
vGC0 = 22
ACC = 24
WBUF = 44
HRES = 100
AFR = 120
vS4 = 200
TMP = 204
PKR = TMP + 16
LA = 13
EVEN = "s_mov_b32 exec_lo, 0xffff\ns_mov_b32 exec_hi, 0xffff"

def c_setup():
    A("s_and_b32 s%d, s%d, 3\ns_lshl_b32 s%d, s%d, 2\ns_add_u32 s%d, s%d, s%d" % (sRB, sIDX, sT, sXCD, sRB, sRB, sT))
    A("s_lshl_b32 s%d, s%d, 2\ns_add_u32 s%d, s%d, s%d" % (sTT, sRB, sTT, sTT, sW))
    A("s_lshr_b32 s%d, s%d, 1\ns_mul_i32 s%d, s%d, 5\ns_and_b32 s%d, s%d, 1" % (sT, sJ, sT, sT, sPAR, sJ))
    A("s_mul_i32 s%d, s%d, 3\ns_add_u32 s%d, s%d, s%d" % (sS0, sPAR, sS0, sS0, sT))
    A("s_lshl_b32 s%d, s%d, 10" % (sAOFF, sS0))
    A("s_add_u32 s%d, s%d, 2\ns_lshl_b32 s%d, s%d, 10\ns_lshl_b32 s%d, s%d, 9\ns_add_u32 s%d, s%d, s%d" % (sT+2, sT, sHOFF, sT+2, sT+3, sPAR, sHOFF, sHOFF, sT+3))
    A("v_lshlrev_b32 v%d, 4, v%d" % (vAF, vL))
    t = TMP
    A("v_and_b32 v%d, 1, v%d\nv_lshrrev_b32 v%d, 1, v%d\nv_lshl_add_u32 v%d, v%d, 1, v%d" % (t+4, vG, t+5, vG, t+4, t+4, t+5))
    A("v_lshlrev_b32 v%d, 4, v%d\nv_lshl_add_u32 v%d, v%d, 8, v%d\nv_lshl_add_u32 v%d, v%d, 8, v%d" % (t+6, vTT, vAS, t+4, t+6, vSH, t+5, t+6))
    A("v_lshlrev_b32 v%d, 6, v%d\nv_lshl_add_u32 v%d, v%d, 2, v%d" % (vST, t+5, vST, vTT, vST))
    A("s_lshl_b32 s%d, s%d, 4" % (sT+1, sTT))
    A("v_add_u32 v%d, s%d, v%d\nv_mul_u32_u24 v%d, 1280, v%d" % (t, sT+1, vTT, t+1, t))
    A("s_lshl_b32 s%d, s%d, 6" % (sT+3, sS0))
    A("v_lshl_add_u32 v%d, v%d, 4, v%d\nv_add_u32 v%d, s%d, v%d" % (vRM, t+4, t+1, vRM, sT+3, vRM))
    A("s_lshl_b32 s%d, s%d, 6\ns_lshl_b32 s%d, s%d, 5\ns_add_u32 s%d, s%d, s%d" % (sT+2, sT+2, sT+3, sPAR, sT+2, sT+2, sT+3))
    A("v_lshl_add_u32 v%d, v%d, 3, v%d\nv_add_u32 v%d, s%d, v%d" % (vRMH, vG, t+1, vRMH, sT+2, vRMH))
    A("v_mov_b32 v%d, 0" % vZ)
    A("s_lshr_b32 s%d, s%d, 4" % (sT+4, sTT))
    for q, dl in enumerate((-1, 1, -2, 2)):
        r = vS4 + q
        A("v_add_u32 v%d, %d, v%d\nv_lshrrev_b32 v%d, 4, v%d" % (t+2, dl, t, r, t+2))
        A("v_lshrrev_b32 v%d, 4, v%d\nv_and_b32 v%d, 1, v%d\nv_lshl_add_u32 v%d, v%d, 1, v%d" % (t+3, r, t+7, r, t+7, t+3, t+7))
        A("v_add_u32 v%d, %d, v%d\nv_cmp_eq_u32 vcc, s%d, v%d\nv_cndmask_b32 v%d, v%d, v%d, vcc" % (t+7, (HALO - OH)//20480, t+7, sT+4, t+3, r, t+7, r))
        A("v_mul_u32_u24 v%d, 20480, v%d" % (r, r))
        A("v_and_b32 v%d, 15, v%d\nv_lshl_add_u32 v%d, v%d, 4, v%d\nv_lshl_add_u32 v%d, v%d, 8, v%d" % (t+3, t+2, r, t+3, r, r, vG, r))
        A("v_bfrev_b32 v%d, 1\nv_cmp_gt_u32 vcc, 0x800, v%d\nv_cndmask_b32 v%d, v%d, v%d, vcc" % (t+3, t+2, r, t+3, r))
    A("s_and_b32 s%d, s%d, 15\ns_mov_b32 s%d, 0" % (sT+5, sTT, sEDGE))
    A("s_cmp_eq_u32 s%d, 0\ns_cselect_b32 s%d, 1, s%d\ns_cmp_eq_u32 s%d, 15\ns_cselect_b32 s%d, 2, s%d" % (sT+5, sEDGE, sEDGE, sT+5, sEDGE, sEDGE))
    A("s_cmp_eq_u32 s%d, 0\ns_cselect_b32 s%d, 0, s%d\ns_cmp_eq_u32 s%d, 127\ns_cselect_b32 s%d, 0, s%d" % (sTT, sEDGE, sEDGE, sTT, sEDGE, sEDGE))
    A("v_min_u32 v%d, 59, v%d\nv_mul_u32_u24 v%d, 205, v%d\nv_lshrrev_b32 v%d, 12, v%d" % (t+2, vL, t+3, t+2, t+3, t+3))
    A("v_mul_u32_u24 v%d, 20, v%d\nv_sub_u32 v%d, v%d, v%d" % (t+7, t+3, t+2, t+2, t+7))
    A("v_min_u32 v%d, 1, v%d\nv_mul_u32_u24 v%d, 40, v%d\nv_add_u32 v%d, v%d, v%d\nv_lshlrev_b32 v%d, 8, v%d" % (t+7, t+3, t+7, t+7, t+2, t+2, t+7, t+2, t+2))
    A("v_lshrrev_b32 v%d, 1, v%d\nv_lshlrev_b32 v%d, 4, v%d" % (t+3, t+3, t+3, t+3))
    A("s_cmp_eq_u32 s%d, 1\ns_cselect_b32 s%d, 240, 0" % (sEDGE, sT+5))
    A("v_xor_b32 v%d, s%d, v%d\nv_add_u32 v%d, v%d, v%d" % (t+3, sT+5, t+3, vHP, t+2, t+3))
    A("s_mul_i32 s%d, s%d, 40960\ns_add_u32 s%d, s%d, 0x%x" % (sT+5, sT+4, sT+5, sT+5, HALO - 20480))
    A("s_cmp_eq_u32 s%d, 2\ns_cselect_b32 s%d, %d, 0\ns_add_u32 s%d, s%d, s%d" % (sEDGE, sT+6, 3*20480 + 20*256, sT+5, sT+5, sT+6))
    A("s_cmp_eq_u32 s%d, 0\ns_cselect_b32 s%d, 0x80000000, s%d" % (sEDGE, sT+5, sT+5))
    A("v_add_u32 v%d, s%d, v%d" % (vHP, sT+5, vHP))
    A("v_mov_b32 v%d, v%d\nv_add_u32 v%d, 0x10000, v%d\nv_add_u32 v%d, 0x20000, v%d" % (vWB, vAF, vWB+1, vAF, vWB+2, vAF))
assert (HALO - OH) % 20480 == 0

def wread(dst, off):
    a = off % RING
    return ["ds_read_b128 %s, v%d offset:%d" % (V4(dst), vWB + (a >> 16), a & 0xffff)]
NB = 14
def stream_pre(fr):
    for n in range(LA):
        for l in wread(WBUF + 4*(n % NB), *fr[n][0]): A(l)
FILLRATE = 2
def stream(fr, G, aload, apre, bars, fill, gates=()):
    N = len(fr); na = max(f[3] for f in fr) + 1
    gates = list(gates)
    st = dict(ai=0)
    def issue_to(x):
        lim = gates[0][0] if gates else na
        while st["ai"] < min(lim, x):
            for l in aload(st["ai"]): A(l)
            st["ai"] += 1
    issue_to(apre)
    pend = []; waited = -1
    for n in range(N):
        if n in bars: A("s_barrier")
        if gates and n == gates[0][1]:
            assert st["ai"] == gates[0][0]
            gates[0][3]()
        if gates and n == gates[0][2]:
            gates[0][4](); waited = st["ai"] - 1; gates.pop(0); issue_to(fr[n][3] + apre)
        if n % G == 0:
            hi = min(N, n + G)
            needa = max(f[3] for f in fr[n:hi])
            w = "lgkmcnt(%d)" % (min(N, n + LA) - hi)
            assert st["ai"] > needa
            if needa > waited:
                w = "vmcnt(%d) " % (st["ai"] - 1 - needa) + w; waited = needa
            A("s_waitcnt " + w)
        ws, acc, ar, aidx, z = fr[n]
        A(mfma16(acc, WBUF + 4*(n % NB), ar, 0 if z else None))
        if n + LA < N:
            for l in wread(WBUF + 4*((n + LA) % NB), *fr[n+LA][0]): A(l)
        if n + 1 < N and fr[n+1][3] > aidx: issue_to(aidx + 1 + apre)
        if n in fill: pend += fill[n]
        k = FILLRATE if n + 1 < N else len(pend)
        for l in pend[:k]: A(l)
        pend = pend[k:]

def mk_aload(afr, nring, srdb, voff=None, kmap=None):
    def f(s):
        v = vAF if voff is None else voff + s // 5
        r = afr + 4*(s % nring)
        if kmap is None:
            o = ["buffer_load_dwordx4 %s, v%d, %s, s%d offen offset:%d sc1" % (V4(r), v, R(srdb), sAB, (s & 3)*1024)]
            if s & 3 == 3: o.append("s_add_u32 s%d, s%d, 4096" % (sAB, sAB))
        else:
            o = []
            if s & 1 == 0: o.append("s_add_u32 s93, s%d, %d" % (sAB, kmap(s)*1024))
            o.append("buffer_load_dwordx4 %s, v%d, %s, s93 offen offset:%d sc1" % (V4(r), v, R(srdb), (s & 1)*1024))
        return o
    return f
def abase(base, tstride):
    if tstride: A("s_mul_i32 s%d, s%d, %d\ns_add_u32 s%d, s%d, 0x%x" % (sAB, sTT, tstride, sAB, sAB, base))
    else: A("s_mov_b32 s%d, 0x%x" % (sAB, base))
def frags5(stage, nks, afr, nring, zero=False):
    return [((SB[stage] + s*5120 + t*1024,), ACC + 4*t, afr + 4*(s % nring), s, zero and s == 0) for s in range(nks) for t in range(5)]
def pre_bar(fr):
    A("s_waitcnt lgkmcnt(0)\ns_barrier"); stream_pre(fr)
def flag8(fbase, dst):
    A("s_lshl_b32 s%d, s%d, 5\ns_add_u32 s%d, s%d, 0x%x" % (dst, sTT, dst, dst, fbase))
def poll8(fbase):
    flag8(fbase, sT+1)
    A("v_and_b32 v%d, 7, v%d\nv_lshlrev_b32 v%d, 2, v%d" % (TMP, vL, TMP, TMP))
    poll(TMP, TMP+1, sT+1)
def swaps(pk, npair):
    for p in range(npair):
        A("v_permlane16_swap_b32 v%d, v%d\nv_permlane16_swap_b32 v%d, v%d" % (pk+4*p, pk+4*p+2, pk+4*p+1, pk+4*p+3))
def pack10(src, dst):
    for i in (8, 9): A("v_cvt_pk_bf16_f32 v%d, v%d, v%d\nv_cvt_pk_bf16_f32 v%d, v%d, v%d" % (dst+i, src+2*i, src+2*i+1, dst+i+2, src+2*i, src+2*i+1))
    for i in range(8): A("v_cvt_pk_bf16_f32 v%d, v%d, v%d" % (dst+i, src+2*i, src+2*i+1))
    A("v_permlane16_swap_b32 v%d, v%d\nv_permlane16_swap_b32 v%d, v%d" % (dst+8, dst+10, dst+9, dst+11))
    swaps(dst, 2)
def af_stores(pk, srdb, s0, s1, p, mask=None):
    if mask: A(mask[0])
    A("buffer_store_dwordx4 %s, v%d, %s, s%d offen%s" % (V4(pk), vAS, R(srdb), s0, p))
    A("buffer_store_dwordx4 %s, v%d, %s, s%d offen offset:1024%s" % (V4(pk+4), vAS, R(srdb), s0, p))
    A(mask[1] if mask else EVEN)
    A("buffer_store_dwordx4 %s, v%d, %s, s%d offen%s" % (V4(pk+8), vSH, R(srdb), s1, p))
    A("s_mov_b64 exec, -1")
def store_pre(base, fbase, stats):
    A("s_mul_i32 s%d, s%d, 20480\ns_add_u32 s%d, s%d, 0x%x" % (sT+8, sTT, sT+8, sT+8, base))
    A("s_add_u32 s%d, s%d, s%d\ns_add_u32 s%d, s%d, s%d" % (sT+9, sT+8, sHOFF, sT+8, sT+8, sAOFF))
    A("s_lshl_b32 s%d, s%d, 3\ns_add_u32 s%d, s%d, s%d" % (sT+10, sTT, sT+10, sT+10, sJ))
    if stats: A("s_lshl_b32 s%d, s%d, 7\ns_add_u32 s%d, s%d, 0x%x" % (sT+11, sT+10, sT+11, sT+11, ST))
    A("s_lshl_b32 s%d, s%d, 2\ns_add_u32 s%d, s%d, 0x%x" % (sT+10, sT+10, sT+10, sT+10, fbase))
def store_af(pk, srdb, stats):
    def st(p):
        af_stores(pk, srdb, sT+8, sT+9, p)
        if stats:
            stats_partial(ACC, TMP+12)
            A("buffer_store_dword v%d, v%d, %s, s%d offen%s" % (TMP+12, vST, R(sWS), sT+11, p))
        setflag(vZ, sT+10, p)
    dual(st)
def stats_partial(src, t):
    a, b = t, t+2
    A("v_pk_add_f32 %s, %s, %s" % (V2(a), V2(src), V2(src+2)))
    A("v_pk_mul_f32 %s, %s, %s" % (V2(b), V2(src), V2(src)))
    for i in range(2, 20, 2):
        if i > 2: A("v_pk_add_f32 %s, %s, %s" % (V2(a), V2(a), V2(src+i)))
        A("v_pk_fma_f32 %s, %s, %s, %s" % (V2(b), V2(src+i), V2(src+i), V2(b)))
    A("v_add_f32 v%d, v%d, v%d\nv_add_f32 v%d, v%d, v%d" % (a, a, a+1, b, b, b+1))
    A("v_permlane32_swap_b32 v%d, v%d\nv_add_f32 v%d, v%d, v%d\nv_mov_b32 v%d, v%d" % (a, b, a, a, b, b, a))
    A("v_permlane16_swap_b32 v%d, v%d\nv_add_f32 v%d, v%d, v%d" % (a, b, a, a, b))
def stats_load():
    A("s_lshl_b32 s%d, s%d, 10\ns_add_u32 s%d, s%d, 0x%x" % (sT+1, sTT, sT+1, sT+1, ST))
    for i in range(4):
        A("buffer_load_dword v%d, v%d, %s, s%d offen offset:%d sc1" % (TMP+4+i, TMP+2, R(sWS), sT+1, 64*i))
def stats_addr():
    A("v_lshlrev_b32 v%d, 8, v%d\nv_lshl_add_u32 v%d, v%d, 2, v%d" % (TMP+2, vG, TMP+2, vTT, TMP+2))
def stats_finish():
    a, b = TMP+4, TMP+5
    A("v_add_f32 v%d, v%d, v%d\nv_add_f32 v%d, v%d, v%d" % (a, a, TMP+6, b, b, TMP+7))
    A("v_permlane32_swap_b32 v%d, v%d\nv_add_f32 v%d, v%d, v%d\nv_mov_b32 v%d, v%d" % (a, b, a, a, b, b, a))
    A("v_permlane16_swap_b32 v%d, v%d\nv_add_f32 v%d, v%d, v%d\nv_mov_b32 v%d, v%d" % (a, b, a, a, b, b, a))
    A("v_permlane32_swap_b32 v%d, v%d" % (a, b))
    lnstats(a, b, vRSTD)
    A("v_mov_b32 v%d, v%d" % (vMEAN, a))
GC0 = -2*0.7978845608028654*LOG2E
GC1 = GC0*0.044715
def gelu(src, n, t, sc, cs):
    for i in range(0, n, 2): A("v_pk_fma_f32 %s, %s, %s, %s op_sel_hi:[1,0,1]" % (V2(src+i), V2(src+i), V2(sc), V2(cs+i)))
    for i in range(0, n, 2): A("v_pk_mul_f32 %s, %s, %s" % (V2(t+i), V2(src+i), V2(src+i)))
    for i in range(0, n, 2): A("v_pk_fma_f32 %s, %s, s[%d:%d], %s op_sel_hi:[1,1,0]" % (V2(t+i), V2(t+i), sK, sK+1, V2(vGC0)))
    for i in range(0, n, 2): A("v_pk_mul_f32 %s, %s, %s" % (V2(t+i), V2(t+i), V2(src+i)))
    for i in range(n): A("v_exp_f32 v%d, v%d" % (t+i, t+i))
    for i in range(0, n, 2): A("v_pk_add_f32 %s, %s, 1.0 op_sel_hi:[1,0]" % (V2(t+i), V2(t+i)))
    for i in range(n): A("v_rcp_f32 v%d, v%d" % (t+i, t+i))
    for i in range(0, n, 2): A("v_pk_mul_f32 %s, %s, %s" % (V2(src+i), V2(src+i), V2(t+i)))
def scale_cs(cs, n):
    for i in range(0, n, 2):
        A("v_pk_mul_f32 %s, %s, %s op_sel:[0,1] op_sel_hi:[1,1] neg_lo:[0,1] neg_hi:[0,1]" % (V2(cs+i), V2(cs+i), V2(vSC)))

APRE = OPT.get("apre", 14)
GW = OPT.get("gw", 5)
def c_main():
    c_setup()
    A("s_mov_b32 s%d, 0x%x\ns_mov_b32 s%d, 0x%x\nv_mov_b32 v%d, 0x%x" % (sK, f2u(GC1), sK+1, f2u(GC1), vGC0, f2u(GC0)))
    A("s_mov_b32 s%d, 0xffff0000" % (sK+2))
    CSV = TMP + 28
    A("buffer_load_dwordx4 %s, v%d, %s, 0 offen" % (V4(PKR), vRM, R(sX)))
    A("buffer_load_dwordx4 %s, v%d, %s, 0 offen offset:64" % (V4(PKR+4), vRM, R(sX)))
    A("buffer_load_dwordx2 %s, v%d, %s, 0 offen" % (V2(PKR+8), vRMH, R(sX)))
    stats_addr()
    A("s_lshl_b32 s%d, s%d, 7\ns_add_u32 s%d, s%d, 0x%x" % (sT+1, sRB, sT+1, sT+1, FO))
    A("v_and_b32 v%d, 31, v%d\nv_lshlrev_b32 v%d, 2, v%d" % (TMP, vL, TMP, TMP))
    abase(OH, 20480)
    store_pre(0, FH, True)
    A("s_waitcnt vmcnt(0)")
    rl_batch2_flag()
    swaps(PKR, 2)
    for i in range(10):
        A("v_lshlrev_b32 v%d, 16, v%d\nv_and_b32 v%d, s%d, v%d" % (ACC+2*i, PKR+i, ACC+2*i+1, sK+2, PKR+i))
    fr = frags5(2, 20, AFR, 20)
    pre_bar(fr)
    poll(TMP, TMP+1, sT+1)
    stamp("s2_fl")
    stream(fr, GW, mk_aload(AFR, 20, sWS), APRE, {60}, {})
    stamp("s2_mm")
    pack10(ACC, PKR)
    store_af(PKR, sOUT, True)
    stamp("s2_end")
    for i in range(20): A("v_mov_b32 v%d, v%d" % (HRES+i, ACC+i))
    A("v_lshlrev_b32 v%d, 4, v%d\nv_add_u32 v%d, 0x%x, v%d" % (TMP+3, vG, TMP+3, CS1, TMP+3))
    abase(0, 20480)
    store_pre(OH, FHH, False)
    e = sT+12
    A("s_lshr_b32 s%d, s%d, 4\ns_lshl_b32 s%d, s%d, 1\ns_add_u32 s%d, s%d, s%d\ns_mul_i32 s%d, s%d, 20480" % (e, sTT, e, e, e, e, sEDGE, e, e))
    A("s_add_u32 s%d, s%d, 0x%x\ns_add_u32 s%d, s%d, s%d\ns_add_u32 s%d, s%d, s%d" % (e, e, HALO - 20480, e+1, e, sHOFF, e, e, sAOFF))
    A("s_cmp_eq_u32 s%d, 1\ns_mov_b32 s%d, 0xc000c000\ns_cmov_b32 s%d, 0x00030003\ns_and_b32 s%d, s%d, 0xffff" % (sEDGE, e+2, e+2, e+3, e+2))
    fr = frags5(3, 20, AFR, 20, zero=True)
    pre_bar(fr)
    poll8(FH)
    stamp("s3_fl")
    stats_load()
    with Capture() as cp:
        stats_finish()
        A("v_mul_f32 v%d, v%d, v%d\nv_mul_f32 v%d, v%d, v%d" % (TMP+6, vRSTD, vRSTD, TMP+6, TMP+6, TMP+5))
        A("v_add_f32 v%d, 0x%x, v%d\nv_rsq_f32 v%d, v%d\nv_mul_f32 v%d, v%d, v%d" % (TMP+6, f2u(1e-5), TMP+6, TMP+6, TMP+6, vSC, TMP+6, vRSTD))
        A("v_mul_f32 v%d, v%d, v%d" % (vSC+1, vSC, vMEAN))
    fill = {5: cp.out}
    for t in range(5): fill[20 + 5*t] = ["ds_read_b128 %s, v%d offset:%d" % (V4(CSV+4*t), TMP+3, 64*t)]
    with Capture() as cp: scale_cs(CSV, 20)
    fill[62] = cp.out
    stream(fr, GW, mk_aload(AFR, 20, sOUT), APRE, {60}, fill)
    stamp("s3_mm")
    gelu(ACC, 20, WBUF, vSC, CSV)
    pack10(ACC, PKR)
    stamp("s3_ge")
    def st3(p):
        af_stores(PKR, sWS, sT+8, sT+9, p)
        ne, dn = A.newlabel("NE"), A.newlabel("DN")
        A("s_cmp_eq_u32 s%d, 0\ns_cbranch_scc1 %s" % (sEDGE, ne))
        af_stores(PKR, sWS, sT+12, sT+13, " sc1", mask=("s_mov_b32 exec_lo, s%d\ns_mov_b32 exec_hi, s%d" % (sT+14, sT+14), "s_mov_b32 exec_lo, s%d\ns_mov_b32 exec_hi, s%d" % (sT+15, sT+15)))
        A("s_waitcnt vmcnt(3)\ns_branch %s" % dn)
        A.label(ne)
        A("s_waitcnt vmcnt(0)")
        A.label(dn)
        setflag(vZ, sT+10, p, wait=False)
    dual(st3)
    stamp("s3_end")
    A("v_mul_f32 v%d, v%d, v%d" % (vMEAN, vMEAN, vRSTD))
    for i in range(0, 20, 2):
        A("v_pk_fma_f32 %s, %s, %s, %s op_sel:[0,1,0] op_sel_hi:[1,1,0] neg_lo:[0,0,1] neg_hi:[0,0,1]" % (V2(ACC+i), V2(HRES+i), V2(vMEAN), V2(vMEAN)))
    A("s_lshl_b32 s%d, s%d, 3\ns_sub_u32 s%d, s%d, 8\ns_and_b32 s%d, s%d, 0x380\ns_add_u32 s%d, s%d, 127" % (sT+2, sTT, sT+1, sT+2, sT+2, sT+2, sT+3, sT+2))
    A("v_min_u32 v%d, 23, v%d\nv_add_u32 v%d, s%d, v%d\nv_max_i32 v%d, s%d, v%d\nv_min_i32 v%d, s%d, v%d\nv_lshlrev_b32 v%d, 2, v%d" % (TMP, vL, TMP, sT+1, TMP, TMP, sT+2, TMP, TMP, sT+3, TMP, TMP, TMP))
    A("s_mov_b32 s%d, 0x%x" % (sT+1, FHH))
    abase(OH, 0)
    store_pre(0, FX1, True)
    fr = frags5(4, 20, AFR, 20)
    pre_bar(fr)
    def lds_():
        A("buffer_load_dword v%d, v%d, %s, s%d offen sc1" % (TMP+1, TMP, R(sWS), sT+1))
        A("buffer_load_dword v%d, v%d, %s, 0 offen sc1" % (TMP+4, vHP, R(sWS)))
    def cond_():
        A("v_not_b32 v%d, v%d\nv_min_u32 v%d, v%d, v%d\nv_cmp_eq_u32 vcc, 0, v%d" % (TMP+4, TMP+4, TMP+1, TMP+1, TMP+4, TMP+1))
    spin(lds_, cond_)
    stamp("s4_fl")
    stream(fr, GW, mk_aload(AFR, 20, sWS, voff=vS4), APRE, {60}, {})
    stamp("s4_mm")
    pack10(ACC, PKR)
    store_af(PKR, sOUT, True)
    stamp("s4_end")
    for i in range(0, 20, 2): A("v_pk_add_f32 %s, %s, %s" % (V2(HRES+i), V2(HRES+i), V2(ACC+i)))
    A("v_lshlrev_b32 v%d, 4, v%d\nv_add_u32 v%d, 0x%x, v%d" % (TMP+3, vG, TMP+3, CS3, TMP+3))
    abase(0, 20480)
    A("s_mul_i32 s%d, s%d, 61440\ns_mul_i32 s%d, s%d, 6144\ns_add_u32 s%d, s%d, s%d\ns_add_u32 s%d, s%d, 0x%x" % (sT+8, sTT, sT+9, sJ, sT+8, sT+8, sT+9, sT+8, sT+8, G_))
    A("s_add_u32 s%d, s%d, 4096" % (sT+9, sT+8))
    A("s_lshl_b32 s%d, s%d, 3\ns_add_u32 s%d, s%d, s%d\ns_lshl_b32 s%d, s%d, 2\ns_add_u32 s%d, s%d, 0x%x\ns_add_u32 s%d, s%d, 4096" % (sT+10, sTT, sT+10, sT+10, sJ, sT+10, sT+10, sT+10, sT+10, FG, sT+11, sT+10))
    A("s_add_u32 s%d, s%d, 4096" % (sT+12, sT+11))
    CS5, GT, GP = TMP + 8, TMP + 16, TMP + 24
    fr = [((SB[5] + p*40960 + s*2048 + t*1024,), ACC + 8*(p & 1) + 4*t, AFR + 4*s, s, s == 0) for p in range(6) for s in range(20) for t in range(2)]
    pre_bar(fr)
    poll8(FX1)
    stamp("s5_fl")
    stats_load()
    fill = {}
    with Capture() as cp:
        stats_finish()
        A("v_mov_b32 v%d, v%d\nv_mul_f32 v%d, v%d, v%d" % (vSC, vRSTD, vSC+1, vRSTD, vMEAN))
    fill[8] = cp.out
    def epi(p):
        a = ACC + 8*(p & 1); g = GP + 4*(p & 1)
        scale_cs(CS5, 8)
        gelu(a, 8, GT, vSC, CS5)
        for i in range(4): A("v_cvt_pk_bf16_f32 v%d, v%d, v%d" % (g+i, a+2*i, a+2*i+1))
        swaps(g, 1)
    def gst(p):
        dual(lambda pp: A("buffer_store_dwordx4 %s, v%d, %s, s%d offen offset:%d%s" % (V4(GP + 4*(p & 1)), vAS, R(sWS), sT+8 + (p >> 2), (p & 3)*1024, pp)))
    for p in range(6):
        fill.setdefault(40*p + 24, []).extend(["ds_read_b128 %s, v%d offset:%d" % (V4(CS5+4*t), TMP+3, 128*p + 64*t) for t in range(2)])
    for p in range(5):
        with Capture() as cp: epi(p)
        with Capture() as c2:
            if p in (2, 4): dual(lambda pp: setflag(vZ, sT+10 + (p >> 2), pp))
            gst(p)
        fill[40*(p+1) + 3] = cp.out + ["\n".join(c2.out)]
    stream(fr, 4, mk_aload(AFR, 20, sOUT), 20, set(range(40, 240, 40)), fill)
    stamp("s5_mm")
    epi(5); gst(5)
    for i in range(20): A("v_mov_b32 v%d, v%d" % (ACC+i, HRES+i))
    abase(G_, GST)
    fr = frags5(6, 48, HRES, 24)
    pre_bar(fr)
    stamp("s5_end")
    poll8(FG)
    dual(lambda pp: setflag(vZ, sT+12, pp, wait=False))
    stamp("s6_fl")
    gl = lambda: A("buffer_load_dword v%d, v%d, %s, s%d offen sc1" % (TMP+1, TMP, R(sWS), sT+1))
    def gi():
        A("s_add_u32 s%d, s%d, 4096" % (sT+1, sT+1)); gl()
    def gc():
        spin(gl, lambda: A("v_cmp_eq_u32 vcc, 0, v%d" % (TMP+1)), issued=True)
    kmap = lambda i: 6*((i >> 1) & 7) + 2*(i >> 4) + (i & 1)
    stream(fr, GW, mk_aload(HRES, 24, sWS, kmap=kmap), OPT.get("apre6", 16), {40, 80, 120, 160}, {},
           gates=[(16, 0, 35, gi, gc), (32, 85, 115, gi, gc)])
    stamp("s6_mm")
    pack10(ACC, PKR)
    A("buffer_store_dwordx4 %s, v%d, %s, 0 offen" % (V4(PKR), vRM, R(sOUT)))
    A("buffer_store_dwordx4 %s, v%d, %s, 0 offen offset:64" % (V4(PKR+4), vRM, R(sOUT)))
    A(EVEN)
    A("buffer_store_dwordx4 %s, v%d, %s, 0 offen" % (V4(PKR+8), vRMH, R(sOUT)))
    A("s_mov_b64 exec, -1")
    stamp("s6_end")

def ts_dump():
    if not OPT["ts"]: return
    A("s_waitcnt vmcnt(0)")
    stamp("fin")
    A("s_lshl_b32 s%d, s2, 3\ns_add_u32 s%d, s%d, s%d\ns_lshl_b32 s%d, s%d, 8\ns_add_u32 s%d, s%d, 0x%x" % (sT, sT, sT, sW, sT, sT, sT, sT, TS))
    A("v_lshlrev_b32 v63, 2, v%d" % vL)
    A("buffer_store_dword v253, v63, %s, s%d offen" % (R(sWS), sT))
    if OPT.get("dbgts"):
        A("s_cmp_lg_u32 s2, %d\ns_cbranch_scc1 L_end\ns_cmp_lg_u32 s%d, 0\ns_cbranch_scc1 L_end" % (OPT["dbgts"], sW))
        A("v_readlane_b32 s94, v253, 0\ns_nop 3\nv_subrev_u32 v253, s94, v253")
        A("s_mov_b64 exec, 0xffff\nbuffer_store_dword v253, v63, %s, 0 offen sc1" % R(sDBG))

def main():
    prologue()
    A("s_cmp_lt_u32 s%d, 4\ns_cbranch_scc1 L_C" % sW)
    A("s_cmp_ge_u32 s%d, 30\ns_cbranch_scc1 L_hsp" % sIDX)
    s1a_loader()
    A.label("L_h3")
    s1b_q()
    loader_main()
    A("s_branch L_fin")
    A.label("L_hsp")
    more_srds()
    A.label("L_spare")
    spare_main()
    stamp("sp_end")
    A("s_waitcnt lgkmcnt(0)\ns_barrier")
    A("s_cmp_lt_u32 s%d, 4\ns_cbranch_scc1 L_c3" % sW)
    dbg_issue(36, 34)
    A("s_branch L_h3")
    A.label("L_C")
    init_c()
    A("s_cmp_ge_u32 s%d, 30\ns_cbranch_scc1 L_spare" % sIDX)
    s1a_compute()
    stamp("s1_end")
    A.label("L_c3")
    s1b_k()
    c_main()
    A.label("L_fin")
    ts_dump()
    A.label("L_end")
    A("s_endpgm")
    body, nn = finalize(A.lines)
    hdr = open("sequential_preLN__linear_kernel_hedgehog__mixer_s_mlp__prompt.s.ref").read().split("; Override launch")[0]
    out = hdr + "; @launch grid=(256,1,1) block=(512,1,1) lds=%d\n" % LDS_BYTES
    out += '.amdgcn_target "amdgcn-amd-amdhsa--gfx950"\n.text\n.globl %s\n.p2align 8\n.type %s,@function\n%s:\n' % (KN, KN, KN)
    out += "\n".join(("" if l.endswith(":") else "  ") + l for l in body) + "\n"
    out += '.section .rodata,"a"\n.p2align 6\n.amdhsa_kernel %s\n' % KN
    out += "  .amdhsa_next_free_vgpr 256\n  .amdhsa_next_free_sgpr 102\n  .amdhsa_accum_offset 256\n  .amdhsa_group_segment_fixed_size 0\n  .amdhsa_kernarg_size 96\n  .amdhsa_user_sgpr_count 2\n  .amdhsa_user_sgpr_kernarg_segment_ptr 1\n  .amdhsa_system_sgpr_workgroup_id_x 1\n.end_amdhsa_kernel\n"
    open(sys.argv[1], "w").write(out)
    open(sys.argv[1] + ".names", "w").write(" ".join(STN))
    print("written", sys.argv[1], "lines", len(body), "nops", nn, "barriers", sum(l == "s_barrier" for l in body))
main()
```
